```python
import torch

def _softmax(x, axis=-1):
    return torch.softmax(x, dim=axis)
def _gelu(x):
    return torch.nn.functional.gelu(x, approximate="tanh")
def _silu(x):
    return torch.nn.functional.silu(x)
def _sigmoid(x):
    return torch.sigmoid(x)
def _layernorm(x, axis=-1, eps=1e-5):
    m = x.mean(dim=axis, keepdim=True)
    v = x.var(dim=axis, keepdim=True, unbiased=False)
    return (x - m) / torch.sqrt(v + eps)
def _scatter_add(tgt, idx, src, axis=0):
    return tgt.clone().index_add_(axis, idx, src)
def _segment_sum(src, seg, n):
    out = torch.zeros((n,) + src.shape[1:], dtype=src.dtype)
    return out.index_add_(0, seg, src)
def _pad(x, pw):
    flat = tuple(v for pair in reversed(pw) for v in pair)
    return torch.nn.functional.pad(x, flat)

kernel_name = 'recurrent_scan__gqa_block_cached__glu_gated_swiglu__decode'

def setup_inputs():

    _w = (lambda a: (lambda t: t.to(torch.bfloat16) if t.is_floating_point() else t)(torch.as_tensor(a)))
    def _A_setup():
        B, Sq, D = 4, 1, 448
        Hq, Hkv, Sk, Dh = 16, 8, 4096, 256
        assert Hq % Hkv == 0, (Hq, Hkv)
        return {
            "x": _w((lambda *s: torch.randn(*s, dtype=torch.bfloat16) * 0.05)(B, Sq, D)),
            "k_cache": _w((lambda *s: torch.randn(*s, dtype=torch.bfloat16) * 3.2)(B, Hkv, Sk, Dh)),
            "v_cache": _w((lambda *s: torch.randn(*s, dtype=torch.bfloat16) * 3.2)(B, Hkv, Sk, Dh)),
            "wq": _w((lambda *s: torch.randn(*s, dtype=torch.bfloat16) * 3.2)(D, Hq * Dh) * (D ** -0.5)),
            "wo": _w((lambda *s: torch.randn(*s, dtype=torch.bfloat16) * 3.2)(Hq * Dh, D) * ((Hq * Dh) ** -0.5)),
        }
    _A_in = _A_setup()

    def _B_setup():
        B, S, D, F = 4, 1, 448, 1792
        return {
            "x": _w((lambda *s: torch.randn(*s, dtype=torch.bfloat16) * 0.05)(B, S, D)),
            "w1": _w((lambda *s: torch.randn(*s, dtype=torch.bfloat16) * 0.4)(D, F) * (2.0 / D) ** 0.5),
            "w3": _w((lambda *s: torch.randn(*s, dtype=torch.bfloat16) * 0.4)(D, F) * (2.0 / D) ** 0.5),
            "w2": _w((lambda *s: torch.randn(*s, dtype=torch.bfloat16) * 0.4)(F, D) * (2.0 / F) ** 0.5),
        }
    _B_in = _B_setup()

    return {
        "A_x": _A_in["x"],
        "A_k_cache": _A_in["k_cache"],
        "A_v_cache": _A_in["v_cache"],
        "A_wq": _A_in["wq"],
        "A_wo": _A_in["wo"],
        "B_x": _B_in["x"],
        "B_w1": _B_in["w1"],
        "B_w3": _B_in["w3"],
        "B_w2": _B_in["w2"],
    }

def reference(A_x, A_k_cache, A_v_cache, A_wq, A_wo, B_x, B_w1, B_w3, B_w2):
    def _A_ref(x, k_cache, v_cache, wq, wo):
        B, Sq, D = x.shape
        Hq, Dh = 16, 256
        Hkv = k_cache.shape[1]
        rep = Hq // Hkv
        q = (lambda x, *d: x.permute(*d))((x @ wq).reshape(B, Sq, Hq, Dh), 0, 2, 1, 3)
        k = (lambda x, n, axis: torch.repeat_interleave(x, n, dim=axis))(k_cache, rep, axis=1)
        v = (lambda x, n, axis: torch.repeat_interleave(x, n, dim=axis))(v_cache, rep, axis=1)
        scores = torch.einsum("bhqd,bhkd->bhqk", q, k) * (Dh ** -0.5)
        p = _softmax(scores, axis=-1)
        o = torch.einsum("bhqk,bhkd->bhqd", p, v)
        return (lambda x, *d: x.permute(*d))(o, 0, 2, 1, 3).reshape(B, Sq, Hq * Dh) @ wo

    def _B_ref(x, w1, w3, w2):
        gate = torch.einsum("bsd,df->bsf", x, w1)
        up = torch.einsum("bsd,df->bsf", x, w3)
        h = _silu(gate) * up
        out = torch.einsum("bsf,fd->bsd", h, w2)
        return out

    x = A_x
    xn = _layernorm(x, axis=-1)
    s = _A_ref(xn, A_k_cache, A_v_cache, A_wq, A_wo)
    g = _silu(_B_ref(xn, B_w1, B_w3, B_w2))
    return x + s * g
```

```python
import re

VCCBR = 0
TRANS = ("v_exp_f32", "v_log_f32", "v_rcp_f32", "v_rsq_f32", "v_sqrt_f32", "v_sin_f32", "v_cos_f32")

def regs_of(tok):
    tok = tok.strip()
    tok = re.sub(r"^-", "", tok)
    m = re.match(r"^abs\((.*)\)$", tok)
    if m: tok = m.group(1)
    m = re.match(r"^\|(.*)\|$", tok)
    if m: tok = m.group(1)
    m = re.match(r"^([vsa])(\d+)$", tok)
    if m: return [(m.group(1), int(m.group(2)))]
    m = re.match(r"^([vsa])\[(\d+):(\d+)\]$", tok)
    if m: return [(m.group(1), i) for i in range(int(m.group(2)), int(m.group(3)) + 1)]
    if tok == "vcc": return [("s", "vcc")]
    if tok in ("vcc_lo", "vcc_hi"): return [("s", "vcc")]
    if tok == "exec": return [("s", "exec")]
    if tok in ("exec_lo", "exec_hi"): return [("s", "exec")]
    if tok == "m0": return [("s", "m0")]
    return []

def split_ops(s):
    out = []; depth = 0; cur = ""
    for ch in s:
        if ch in "[(": depth += 1
        if ch in "])": depth -= 1
        if ch == "," and depth == 0:
            out.append(cur.strip()); cur = ""
        else: cur += ch
    if cur.strip(): out.append(cur.strip())
    return out

class Asm:
    def __init__(self):
        self.lines = []
        self.pos = 0
        self.valu_w = {}
        self.trans_w = {}
        self.mfma_w = {}
        self.mfma_c = {}
        self.store_d = {}
        self.m0_w = -100
        self.nops = 0
    def raw(self, s): self.lines.append(s)
    def label(self, name):
        self.lines.append(name + ":")
    def comment(self, s): self.lines.append("    ; " + s)
    def nop(self, n):
        while n > 0:
            k = min(n, 16)
            self.lines.append(f"    s_nop {k-1}")
            self.pos += k; n -= k; self.nops += 1
    def __call__(self, text):
        for t in text.split("\n"):
            t = t.strip()
            if not t: continue
            if t.startswith(";"): self.lines.append("    " + t); continue
            if t.endswith(":"): self.label(t[:-1]); continue
            self.ins(t)
    def ins(self, t):
        code = t.split(";")[0].strip()
        parts = code.split(None, 1)
        op = parts[0]; rest = parts[1] if len(parts) > 1 else ""
        if op.startswith("."):
            self.lines.append("    " + t); return
        if op == "s_nop":
            self.lines.append("    " + t); self.pos += int(rest, 0) + 1; return
        ops = split_ops(rest)
        mods = ""
        if ops:
            sp = ops[-1].split(None, 1)
            if len(sp) > 1 and not ops[-1].startswith("hwreg") and not op.startswith("s_waitcnt"):
                ops[-1] = sp[0]; mods = sp[1]
        need = 0
        def req(p, n):
            nonlocal need
            if p is None: return
            d = self.pos - p - 1
            if d < n: need = max(need, n - d)
        is_mfma = op.startswith("v_mfma")
        is_valu = op.startswith("v_") and not is_mfma
        is_ds = op.startswith("ds_")
        is_vmem = op.startswith("buffer_") or op.startswith("global_") or op.startswith("flat_")
        is_salu = op.startswith("s_")
        dst = []; src = []
        if is_mfma:
            dst = regs_of(ops[0]); A = regs_of(ops[1]); B = regs_of(ops[2]); C = regs_of(ops[3])
            passes = 8 if "32x32" in op else 4
            for r in A + B + C: req(self.valu_w.get(r), 2)
            for r in A + B:
                if r in self.mfma_w: req(self.mfma_w[r][0], {4: 8, 8: 12}[self.mfma_w[r][1]])
            key = (ops[0], passes)
            for r in C:
                if r in self.mfma_w:
                    p, ps, k = self.mfma_w[r]
                    if k == (ops[3], passes): pass
                    else: req(p, {4: 6, 8: 10}[ps])
            for r in dst:
                if r in self.mfma_w and r not in C:
                    req(self.mfma_w[r][0], {4: 8, 8: 12}[self.mfma_w[r][1]])
            req(self.valu_w.get(("s", "exec")), 4)
            self._pad(need); self.lines.append("    " + t)
            for r in dst: self.mfma_w[r] = (self.pos, passes, key); self.valu_w.pop(r, None); self.trans_w.pop(r, None)
            for r in C: self.mfma_c[r] = (self.pos, passes)
            self.pos += 1
            return
        if is_valu:
            base = op.replace("_e32", "").replace("_e64", "").replace("_dpp", "").replace("_sdwa", "")
            isdpp = ("row_" in mods) or ("quad_perm" in mods) or op.endswith("_dpp")
            if base.startswith("v_cmp"):
                dst = regs_of(ops[0]); src = sum((regs_of(o) for o in ops[1:]), [])
                if base.startswith("v_cmpx"): dst = dst + [("s", "exec")]
            elif base.startswith("v_permlane") and "swap" in base:
                dst = regs_of(ops[0]) + regs_of(ops[1]); src = list(dst)
            elif base in ("v_add_co_u32", "v_sub_co_u32", "v_addc_co_u32", "v_subb_co_u32", "v_div_scale_f32", "v_mad_u64_u32"):
                dst = regs_of(ops[0]) + regs_of(ops[1]); src = sum((regs_of(o) for o in ops[2:]), [])
            else:
                dst = regs_of(ops[0]); src = sum((regs_of(o) for o in ops[1:]), [])
                if base in ("v_fmac_f32", "v_dot2c_f32_bf16", "v_writelane_b32") or isdpp: src = src + dst
                if base == "v_cndmask_b32" and len(ops) == 3: src = src + [("s", "vcc")]
            for r in src:
                if r[0] == "s": req(self.valu_w.get(r), 2)
                if r[0] == "v":
                    if isdpp or base.startswith("v_permlane"): req(self.valu_w.get(r), 2)
                    if base in ("v_readfirstlane_b32", "v_readlane_b32"): req(self.valu_w.get(r), 1)
                    if base not in TRANS: req(self.trans_w.get(r), 1)
                    else: req(self.trans_w.get(r), 1)
            if isdpp: req(self.valu_w.get(("s", "exec")), 5)
            if base.startswith("v_permlane") or base in ("v_readfirstlane_b32", "v_readlane_b32"): req(self.valu_w.get(("s", "exec")), 4)
            for r in src + dst:
                if r in self.mfma_w: req(self.mfma_w[r][0], {4: 8, 8: 12}[self.mfma_w[r][1]])
            for r in dst:
                if r in self.mfma_c: req(self.mfma_c[r][0], {4: 3, 8: 7}[self.mfma_c[r][1]])
                if r in self.store_d: req(self.store_d[r], 2)
            self._pad(need); self.lines.append("    " + t)
            for r in dst:
                self.valu_w[r] = self.pos; self.trans_w.pop(r, None); self.mfma_w.pop(r, None)
                if base in TRANS: self.trans_w[r] = self.pos
            self.pos += 1
            return
        if is_ds or is_vmem:
            allr = sum((regs_of(o) for o in ops), [])
            for r in allr:
                if r[0] == "s": req(self.valu_w.get(r), 5)
                if r in self.mfma_w: req(self.mfma_w[r][0], {4: 8, 8: 12}[self.mfma_w[r][1]])
                if r[0] == "v": req(self.trans_w.get(r), 1)
            if " lds" in (" " + mods) or "_lds_" in op: req(self.m0_w, 1)
            isload = ("load" in op or "read" in op or "permute" in op or "swizzle" in op) and " lds" not in (" " + mods) and "_lds_" not in op
            if isload:
                for r in regs_of(ops[0]):
                    if r in self.store_d: req(self.store_d[r], 2)
                    if r in self.mfma_c: req(self.mfma_c[r][0], {4: 3, 8: 7}[self.mfma_c[r][1]])
            self._pad(need); self.lines.append("    " + t)
            if is_vmem and "store" in op and ("x4" in op or "x3" in op):
                d = ops[0] if op.startswith("buffer") else ops[1]
                for r in regs_of(d): self.store_d[r] = self.pos
            if isload:
                for r in regs_of(ops[0]):
                    self.valu_w.pop(r, None); self.trans_w.pop(r, None); self.mfma_w.pop(r, None)
            self.pos += 1
            return
        if is_salu and ops:
            srcs = sum((regs_of(o) for o in ops), [])
            for r in srcs:
                if r[0] == "s": req(self.valu_w.get(r), 1)
        if op.startswith("s_cbranch_vcc"): req(self.valu_w.get(("s", "vcc")), VCCBR)
        self._pad(need); self.lines.append("    " + t)
        if is_salu and ops and not op.startswith(("s_cmp", "s_cbranch", "s_branch", "s_waitcnt", "s_barrier", "s_sleep", "s_setprio", "s_endpgm")):
            for r in regs_of(ops[0]):
                if r == ("s", "m0"): self.m0_w = self.pos
                self.valu_w.pop(r, None)
        self.pos += 1
    def _pad(self, n):
        if n > 0: self.nop(n)
    def text(self): return "\n".join(self.lines) + "\n"
```

```python
import sys
from asmlib import Asm
KNAME = "recurrent_scan__gqa_block_cached__glu_gated_swiglu__decode"

SLOT = 16384; NS = 9
MISC = NS * SLOT
CTRL = MISC; XN = MISC + 256; HA = XN + 3584; QI = HA + 3584; PB = QI + 1024; LDS_END = PB + 2048
C_CP = 0; C_QP = 16; C_FP = 20; C_FILL = 32; C_XNF = 48; C_QRDY = 64; C_MXF = 80; C_PF = 96; C_FACF = 112
C_MX = 128; C_LS = 160; C_FAC = 192; C_TAIL = 208
W_E = 0; W_QG = 0x1000; W_HG = 0x20000; W_OG = 0x30000; W_MLG = 0x40000; W_H1 = 0x100000; W_H2 = 0x200000; W_DIAG = 0x400000
BIG = 1000
CEXP = 0.09016844005556021
LOG2E = 1.4426950408889634

import struct
def f2u(f): return struct.unpack("<I", struct.pack("<f", f))[0]

def gen(diag=False, kvflags="nt", wflags="", woflags="", win=32, prefetch_code=True, dump=False):
    a = Asm()
    kvf = (" " + kvflags) if kvflags else ""
    wf = (" " + wflags) if wflags else ""
    wof = (" " + woflags) if woflags else ""
    hdr = open("cdna_kernels/" + KNAME + ".s.ref").read().split("; Override launch")[0]
    a.raw(hdr.rstrip())
    a.raw(f"; @launch grid=(256,1,1) block=(512,1,1) lds={LDS_END}")
    a.raw('.amdgcn_target "amdgcn-amd-amdhsa--gfx950"')
    a.raw(".text"); a.raw(f".globl {KNAME}_kernel"); a.raw(".p2align 8"); a.raw(f".type {KNAME}_kernel,@function"); a.raw(f"{KNAME}_kernel:")
    nstamp = [0]
    def stamp(i):
        if diag:
            a(f"s_memrealtime s[{64+2*i}:{65+2*i}]"); a("s_waitcnt lgkmcnt(0)")
    def dump_stamps(n):
        if diag:
            a("s_mov_b64 exec, 1")
            a("s_lshl_b32 s60, s2, 3"); a("s_add_u32 s60, s60, s3"); a("s_lshl_b32 s60, s60, 7"); a(f"s_add_u32 s60, s60, {W_DIAG}")
            a("v_mov_b32 v250, s60")
            for i in range(n):
                a(f"v_mov_b32 v252, s{64+2*i}"); a(f"v_mov_b32 v253, s{65+2*i}")
                a(f"global_store_dwordx2 v250, v[252:253], s[30:31] offset:{8*i}")
                a("s_nop 1")
    lbl = [0]
    def newlabel(p):
        lbl[0] += 1; return f"L_{p}_{lbl[0]}"
    def budget():
        a("s_sub_u32 s62, s62, 1"); a("s_cbranch_scc1 L_fail")
    def spin_ge(vtmp, vctl, off, sval, sleep=1, stmp="s59"):
        L = newlabel("spin"); Ld = newlabel("spind")
        a(f"{L}:")
        a(f"ds_read_b32 {vtmp}, {vctl} offset:{off}")
        a("s_waitcnt lgkmcnt(0)")
        a(f"v_readfirstlane_b32 {stmp}, {vtmp}")
        a(f"s_cmp_ge_u32 {stmp}, {sval}")
        a(f"s_cbranch_scc1 {Ld}")
        if sleep: a(f"s_sleep {sleep}")
        a("s_sub_u32 s62, s62, 1"); a(f"s_cbranch_scc0 {L}"); a("s_branch L_fail"); a(f"{Ld}:")
    def spin_all4(vt, vctl, off, sleep=1):
        L = newlabel("spin4"); Ld = newlabel("spin4d")
        a(f"{L}:")
        a(f"ds_read_b128 v[{vt}:{vt+3}], {vctl} offset:{off}")
        a("s_waitcnt lgkmcnt(0)")
        a(f"v_min_u32 v{vt}, v{vt}, v{vt+1}")
        a(f"v_min3_u32 v{vt}, v{vt}, v{vt+2}, v{vt+3}")
        a(f"v_readfirstlane_b32 s59, v{vt}")
        a("s_cmp_lg_u32 s59, 0")
        a(f"s_cbranch_scc1 {Ld}")
        if sleep: a(f"s_sleep {sleep}")
        a("s_sub_u32 s62, s62, 1"); a(f"s_cbranch_scc0 {L}"); a("s_branch L_fail"); a(f"{Ld}:")
    def tagcheck(tags, vacc, vacc2, retry):
        h = (len(tags) + 1) // 2
        t1, t2 = tags[:h], tags[h:]
        a(f"v_xor_b32 {vacc}, s33, {t1[0]}")
        if t2: a(f"v_xor_b32 {vacc2}, s33, {t2[0]}")
        for i in range(1, h):
            a(f"v_bitop3_b32 {vacc}, {t1[i]}, s33, {vacc} bitop3:0xbe")
            if i < len(t2): a(f"v_bitop3_b32 {vacc2}, {t2[i]}, s33, {vacc2} bitop3:0xbe")
        if t2: a(f"v_or_b32 {vacc}, {vacc}, {vacc2}")
        a(f"v_cmp_ne_u32 vcc, 0, {vacc}")
        a(f"s_cbranch_vccnz {retry}")
    def rbf(dst, src):
        a(f"v_cvt_pk_bf16_f32 {dst}, {src}, {src}")
        a(f"v_and_b32 {dst}, 0xffff0000, {dst}")
    DPPF = "row_mask:0xf bank_mask:0xf"
    def red16(op, v):
        for m in ("quad_perm:[1,0,3,2]", "quad_perm:[2,3,0,1]", "row_half_mirror", "row_mirror"):
            a(f"{op}_dpp {v}, {v}, {v} {m} {DPPF}")
    def swapred(op, v, t, which):
        a(f"v_mov_b32 {t}, {v}")
        a(f"v_permlane{which}_swap_b32 {v}, {t}")
        a(f"{op} {v}, {v}, {t}")

    if diag: a("s_memrealtime s[64:65]")
    a("s_cmp_ge_u32 s2, 256")
    a("s_cbranch_scc1 L_end")
    a("s_load_dwordx16 s[8:23], s[0:1], 0")
    a("s_load_dwordx8 s[24:31], s[0:1], 64")
    a("v_lshrrev_b32 v1, 6, v0")
    a("v_and_b32 v0, 63, v0")
    a("v_readfirstlane_b32 s3, v1")
    a("s_and_b32 s4, s2, 7")
    a("s_lshr_b32 s5, s2, 3")
    a("s_and_b32 s6, s5, 3")
    a("s_lshr_b32 s7, s5, 2")
    a("v_lshrrev_b32 v2, 1, v0")
    a("v_and_b32 v3, 1, v0")
    a("v_lshlrev_b32 v3, 4, v3")
    a("v_lshl_add_u32 v8, v2, 13, v3")
    a("v_lshlrev_b32 v9, 4, v0")
    a(f"v_mov_b32 v10, {CTRL}")
    a("s_lshl_b32 s48, s4, 10"); a("s_lshl_b32 s49, s5, 5"); a("s_add_u32 s48, s48, s49")
    a("s_mov_b32 s38, 3670016"); a("s_mov_b32 s39, 0x20000")
    a("s_mov_b32 s62, 0x20000")
    a("s_waitcnt lgkmcnt(0)")
    a("s_load_dword s32, s[30:31], 0")
    a("s_cmp_eq_u32 s3, 4")
    a("s_cbranch_scc1 L_loader")
    a("s_cmp_ge_u32 s3, 4")
    a("s_cbranch_scc1 L_nox")
    a("s_mul_i32 s50, s3, 896")
    a("v_add_u32 v11, s50, v9")
    a("v_mov_b32 v4, 0"); a("v_mov_b32 v5, 0"); a("v_mov_b32 v6, 0"); a("v_mov_b32 v7, 0")
    a("s_mov_b32 exec_hi, 0x00ffffff")
    a("global_load_dwordx4 v[4:7], v11, s[8:9]")
    a("s_mov_b32 exec_hi, -1")
    a("L_nox:")
    a("v_add_u32 v12, 3, v0")
    a("v_cmp_gt_u32 vcc, 4, v0")
    a("v_cndmask_b32 v12, 0, v12, vcc")
    a("v_cmp_eq_u32 vcc, 4, v0")
    a("v_cndmask_b32 v12, v12, 2, vcc")
    a("s_cmp_ge_u32 s2, 224"); a(f"s_cselect_b32 s50, {BIG}, 0")
    a("v_mov_b32 v13, s50")
    a("v_cmp_eq_u32 vcc, 5, v0")
    a("v_cndmask_b32 v12, v12, v13, vcc")
    a("v_lshl_add_u32 v13, v0, 2, v10")
    a("ds_write_b32 v13, v12")
    a("s_waitcnt lgkmcnt(0)")
    a("s_mul_i32 s33, s32, 0x9E3779B1"); a("s_add_u32 s33, s33, 0x7F4A7C15")
    a("s_barrier")
    a("s_cmp_lt_u32 s3, 4"); a("s_cbranch_scc1 L_C")
    a("s_cmp_eq_u32 s3, 5"); a("s_cbranch_scc1 L_Q")
    a("s_cmp_eq_u32 s3, 6"); a("s_cbranch_scc1 L_F")
    a("s_branch L_R")

    a("L_loader:")
    a("s_setprio 3")
    a("s_mov_b32 s36, s14"); a("s_mov_b32 s37, s15")
    a(f"s_mov_b32 m0, {8*SLOT}")
    a("s_mov_b32 s50, 14")
    a("L_wq:")
    a(f"buffer_load_dwordx4 v8, s[36:39], s48 offen{wf} lds")
    a("s_add_u32 m0, m0, 1024")
    a(f"s_add_u32 s48, s48, {32*8192}")
    a("s_sub_u32 s50, s50, 1"); a("s_cmp_lg_u32 s50, 0"); a("s_cbranch_scc1 L_wq")
    a("v_lshrrev_b32 v12, 5, v0")
    a("v_and_b32 v13, 31, v0")
    a("v_lshlrev_b32 v14, 9, v12")
    a("v_xor_b32 v15, v13, v12")
    for p in range(8):
        if p: a(f"v_xor_b32 v{16+p}, {2*p}, v15")
        else: a("v_mov_b32 v16, v15")
        a(f"v_lshl_add_u32 v{16+p}, v{16+p}, 4, v14")
    a("s_mov_b32 s40, s10"); a("s_mov_b32 s41, s11"); a("s_mov_b32 s42, 0x4000000"); a("s_mov_b32 s43, 0x20000")
    a("s_lshl_b32 s52, s6, 3"); a("s_add_u32 s52, s52, s4"); a("s_lshl_b32 s52, s52, 21")
    a("s_lshl_b32 s53, s7, 18"); a("s_add_u32 s54, s52, s53")
    a("s_mov_b32 s52, s54")
    a("s_mov_b32 s50, 0")
    a("s_mov_b32 s51, 0")
    a("L_item:")
    a("s_cmp_lt_u32 s50, 6"); a("s_cbranch_scc1 L_item_special")
    a("s_cmp_eq_u32 s50, 16"); a("s_cbranch_scc1 L_item_tov")
    a("L_item_check:")
    a("s_waitcnt lgkmcnt(0)")
    a("v_min3_u32 v40, v40, v41, v42")
    a("v_min3_u32 v40, v40, v43, v44")
    a("v_min_u32 v40, v40, v45")
    a("s_sub_u32 s56, s50, 6")
    a("v_readfirstlane_b32 s55, v40")
    a("s_cmp_gt_u32 s55, s56")
    a("s_cbranch_scc0 L_item_slow")
    a("L_item_go:")
    for grp in range(4):
        if grp == 0: a("s_mov_b32 m0, s51")
        else:
            a("s_add_u32 m0, m0, 4096"); a("s_add_u32 s52, s52, 4096")
        if grp == 2:
            a(f"ds_read_b128 v[40:43], v10 offset:{C_CP}"); a(f"ds_read_b64 v[44:45], v10 offset:{C_QP}")
        for q in range(4):
            n = grp * 4 + q
            a(f"s_waitcnt vmcnt({win-1})")
            if n == 15:
                a("v_mov_b32 v46, s50"); a(f"ds_write_b32 v10, v46 offset:{C_FILL}")
            a(f"buffer_load_dwordx4 v{16+(n&7)}, s[40:43], s52 offen offset:{1024*q}{kvf} lds")
    a("s_add_u32 s52, s52, 4096")
    a(f"s_add_u32 s51, s51, {SLOT}"); a(f"s_cmp_eq_u32 s51, {NS*SLOT}"); a("s_cselect_b32 s51, 0, s51")
    a("s_add_u32 s50, s50, 1"); a("s_cmp_lt_u32 s50, 32"); a("s_cbranch_scc1 L_item")
    stamp(1)
    a("L_wo_check:")
    a("s_waitcnt lgkmcnt(0)")
    a("v_min3_u32 v40, v40, v41, v42")
    a("v_min_u32 v40, v40, v43")
    a("s_mov_b32 s36, s16"); a("s_mov_b32 s37, s17")
    a("v_readfirstlane_b32 s55, v40")
    a("s_cmp_gt_u32 s55, 29")
    a("s_cbranch_scc1 L_wo_go")
    budget()
    a(f"ds_read_b128 v[40:43], v10 offset:{C_CP}")
    a("s_branch L_wo_check")
    a("L_wo_go:")
    a("s_lshl_b32 s52, s4, 3"); a("s_add_u32 s52, s52, s7"); a(f"s_mul_i32 s52, s52, {64*896}")
    a(f"s_mov_b32 m0, {5*SLOT}")
    a("s_mov_b32 s50, 1")
    a("L_wo:")
    for q in range(4):
        a(f"s_waitcnt vmcnt({win-1})")
        if q == 3:
            a("s_lshr_b32 s55, s50, 2"); a("s_min_u32 s55, s55, 2"); a("s_add_u32 s55, s55, 31")
            a("v_mov_b32 v46, s55"); a(f"ds_write_b32 v10, v46 offset:{C_FILL}")
        a(f"buffer_load_dwordx4 v9, s[36:39], s52 offen offset:{1024*q}{wof} lds")
    a("s_add_u32 m0, m0, 4096"); a("s_add_u32 s52, s52, 4096")
    a("s_add_u32 s50, s50, 1"); a("s_cmp_lt_u32 s50, 15"); a("s_cbranch_scc1 L_wo")
    stamp(2)
    a("s_waitcnt vmcnt(0)")
    a("v_mov_b32 v46, 34"); a(f"ds_write_b32 v10, v46 offset:{C_FILL}")
    stamp(3)
    dump_stamps(4)
    a("s_endpgm")
    a("L_item_slow:")
    budget()
    a(f"ds_read_b128 v[40:43], v10 offset:{C_CP}"); a(f"ds_read_b64 v[44:45], v10 offset:{C_QP}")
    a("s_branch L_item_check")
    a("L_item_tov:")
    a("s_mov_b32 s40, s12"); a("s_mov_b32 s41, s13"); a("s_mov_b32 s52, s54")
    a("v_lshlrev_b32 v15, 1, v12"); a("v_xor_b32 v15, v15, v13")
    for p in range(8):
        f = 4 * (p & 1) + 8 * ((p >> 2) & 1)
        a(f"v_xor_b32 v{16+p}, {f}, v15")
        a(f"v_lshl_add_u32 v{16+p}, v{16+p}, 4, v14")
    a("s_branch L_item_check")
    a("L_item_special:")
    a("s_cmp_eq_u32 s50, 1"); a("s_cbranch_scc0 L_item_n1")
    a("s_barrier"); a("s_branch L_item_go")
    a("L_item_n1:")
    a("s_cmp_eq_u32 s50, 2"); a("s_cbranch_scc0 L_item_go")
    a("s_cmp_ge_u32 s2, 224"); a("s_cbranch_scc1 L_item_go")
    a("s_cmp_ge_u32 s2, 112"); a("s_cbranch_scc1 L_f2")
    a("s_mov_b32 s36, s20"); a("s_mov_b32 s37, s21"); a("s_mov_b32 s38, 1605632")
    a("s_movk_i32 s57, 3584"); a("s_lshl_b32 s48, s2, 5"); a("s_mov_b32 s58, 2")
    a("s_branch L_fgo")
    a("L_f2:")
    a("s_mov_b32 s36, s24"); a("s_mov_b32 s37, s25"); a("s_mov_b32 s38, 1605632")
    a("s_movk_i32 s57, 896"); a("s_mov_b32 s58, 1")
    a("s_sub_u32 s55, s2, 112"); a("s_mul_i32 s56, s55, 2341"); a("s_lshr_b32 s56, s56, 16")
    a("s_mul_i32 s48, s56, 28"); a("s_sub_u32 s55, s55, s48")
    a(f"s_mul_i32 s48, s56, {448*896}"); a("s_lshl_b32 s55, s55, 5"); a("s_add_u32 s48, s48, s55")
    a("L_fgo:")
    a("v_mad_u32_u24 v8, v2, s57, v3")
    a("s_lshl_b32 s57, s57, 5")
    a(f"s_mov_b32 m0, {7*SLOT}")
    a("L_fitem:")
    a("s_mov_b32 s55, 14"); a("s_mov_b32 s56, s48")
    a("L_fi:")
    a(f"s_waitcnt vmcnt({win-1})")
    a(f"buffer_load_dwordx4 v8, s[36:39], s56 offen{wf} lds")
    a("s_add_u32 m0, m0, 1024"); a("s_add_u32 s56, s56, s57")
    a("s_sub_u32 s55, s55, 1"); a("s_cmp_lg_u32 s55, 0"); a("s_cbranch_scc1 L_fi")
    a("s_mov_b32 s36, s22"); a("s_mov_b32 s37, s23"); a(f"s_mov_b32 m0, {6*SLOT}")
    a("s_sub_u32 s58, s58, 1"); a("s_cmp_lg_u32 s58, 0"); a("s_cbranch_scc1 L_fitem")
    a("s_mov_b32 s38, 3670016")
    a("s_branch L_item_go")

    a("L_C:")
    a("s_waitcnt vmcnt(0)")
    stamp(1)
    for i in range(4):
        a(f"v_lshlrev_b32 v{16+2*i}, 16, v{4+i}"); a(f"v_and_b32 v{17+2*i}, 0xffff0000, v{4+i}")
    a("v_add_f32 v24, v16, v17"); a("v_add_f32 v25, v18, v19"); a("v_add_f32 v26, v20, v21"); a("v_add_f32 v27, v22, v23")
    a("v_add_f32 v24, v24, v25"); a("v_add_f32 v26, v26, v27"); a("v_add_f32 v24, v24, v26")
    red16("v_add_f32", "v24"); swapred("v_add_f32", "v24", "v25", 16); swapred("v_add_f32", "v24", "v25", 32)
    a(f"v_mul_f32 v24, {hex(f2u(1.0/448))}, v24")
    a("v_mov_b32 v26, 0")
    a("s_mov_b32 exec_hi, 0x00ffffff")
    for i in range(8):
        a(f"v_sub_f32 v{28+i}, v{16+i}, v24")
    for i in range(8):
        a(f"v_fmac_f32 v26, v{28+i}, v{28+i}")
    a("s_mov_b32 exec_hi, -1")
    rbf("v25", "v24")
    red16("v_add_f32", "v26"); swapred("v_add_f32", "v26", "v27", 16); swapred("v_add_f32", "v26", "v27", 32)
    a(f"v_mul_f32 v26, {hex(f2u(1.0/448))}, v26")
    rbf("v26", "v26")
    a(f"v_add_f32 v26, {hex(f2u(1e-5))}, v26")
    rbf("v26", "v26")
    a("v_sqrt_f32 v26, v26")
    for i in range(8):
        a(f"v_sub_f32 v{28+i}, v{16+i}, v25")
    rbf("v26", "v26")
    a("v_rcp_f32 v26, v26")
    for i in range(4):
        a(f"v_cvt_pk_bf16_f32 v{16+i}, v{28+2*i}, v{29+2*i}")
    for i in range(4):
        a(f"v_lshlrev_b32 v{28+2*i}, 16, v{16+i}"); a(f"v_and_b32 v{29+2*i}, 0xffff0000, v{16+i}")
    for i in range(8):
        a(f"v_mul_f32 v{28+i}, v{28+i}, v26")
    for i in range(4):
        a(f"v_cvt_pk_bf16_f32 v{16+i}, v{28+2*i}, v{29+2*i}")
    a(f"v_add_u32 v11, {XN}, v11")
    a("s_lshl_b32 s50, s3, 2"); a("v_add_u32 v12, s50, v10")
    a("v_mov_b32 v13, 1")
    a("s_mov_b32 exec_hi, 0x00ffffff")
    a("ds_write_b128 v11, v[16:19]")
    a("s_mov_b32 exec_hi, -1")
    a(f"ds_write_b32 v12, v13 offset:{C_XNF}")
    stamp(2)
    a("v_and_b32 v14, 15, v0")
    a("v_lshrrev_b32 v15, 4, v0")
    a("v_xor_b32 v16, v15, v14")
    a("v_lshlrev_b32 v17, 9, v14")
    for s in range(4):
        if s: a(f"v_xor_b32 v{20+s}, {4*s}, v16")
        else: a("v_mov_b32 v20, v16")
        a(f"v_lshl_add_u32 v{20+s}, v{20+s}, 4, v17")
    a("v_lshrrev_b32 v16, 2, v14")
    a("v_lshl_add_u32 v17, v15, 3, v16")
    a("v_lshlrev_b32 v17, 9, v17")
    a("v_and_b32 v18, 1, v14"); a("v_lshl_add_u32 v17, v18, 3, v17")
    a("v_and_b32 v18, 1, v15"); a("v_lshl_add_u32 v18, v18, 2, v16"); a("v_lshlrev_b32 v18, 1, v18")
    a("v_bfe_u32 v19, v14, 1, 1")
    a("s_lshl_b32 s50, s3, 3"); a("v_add_u32 v19, s50, v19")
    a("v_xor_b32 v18, v18, v19")
    for tt in range(4):
        if tt: a(f"v_xor_b32 v{24+tt}, {2*tt}, v18")
        else: a("v_mov_b32 v24, v18")
        a(f"v_lshl_add_u32 v{24+tt}, v{24+tt}, 4, v17")
    a("v_and_b32 v16, 1, v0")
    a("v_lshlrev_b32 v17, 4, v15")
    a("v_lshl_add_u32 v28, v16, 9, v17"); a(f"v_add_u32 v28, {QI}, v28")
    a("v_lshl_add_u32 v29, v16, 10, v17"); a(f"v_add_u32 v29, {PB}, v29")
    a("v_lshrrev_b32 v16, 5, v0"); a("v_and_b32 v17, 31, v0"); a("s_lshl_b32 s50, s3, 5"); a("v_add_u32 v17, s50, v17")
    a("v_lshlrev_b32 v17, 1, v17"); a("v_lshl_add_u32 v30, v16, 10, v17"); a(f"v_add_u32 v30, {PB}, v30")
    a("v_lshl_add_u32 v31, v16, 4, v10")
    a("v_lshl_add_u32 v33, v16, 2, v10")
    a("s_lshl_b32 s50, s3, 2"); a("v_add_u32 v32, s50, v31")
    a("v_lshrrev_b32 v16, 2, v14"); a("v_lshl_add_u32 v16, v15, 2, v16"); a("s_movk_i32 s50, 896"); a("v_mul_u32_u24 v16, s50, v16")
    a("v_and_b32 v17, 3, v14"); a("v_lshl_add_u32 v16, v17, 3, v16"); a("s_mul_i32 s50, s3, 224"); a(f"s_add_u32 s50, s50, {5*SLOT}")
    a("v_add_u32 v34, s50, v16")
    a("s_lshl_b32 s50, s6, 3"); a("s_add_u32 s50, s50, s4")
    a("s_lshl_b32 s51, s50, 3"); a("s_add_u32 s52, s51, s3"); a("s_lshl_b32 s52, s52, 3"); a("s_add_u32 s52, s52, s7"); a("s_lshl_b32 s52, s52, 9")
    a(f"s_add_u32 s52, s52, {W_H1}")
    a("v_lshrrev_b32 v16, 5, v0"); a("v_and_b32 v17, 31, v0"); a("v_lshlrev_b32 v17, 4, v17"); a("v_lshl_add_u32 v16, v16, 14, v17")
    a("v_add_u32 v35, s52, v16")
    a("s_add_u32 s52, s51, s7"); a("s_lshl_b32 s52, s52, 12"); a(f"s_add_u32 s52, s52, {W_H1}")
    a("v_and_b32 v16, 7, v14"); a("v_lshlrev_b32 v16, 9, v16"); a("v_lshrrev_b32 v17, 3, v14"); a("v_lshl_add_u32 v16, v17, 8, v16")
    a("v_lshl_add_u32 v16, v15, 6, v16"); a("v_add_u32 v36, s52, v16")
    a("s_lshl_b32 s52, s6, 2"); a("s_add_u32 s52, s52, s3"); a("s_lshl_b32 s52, s52, 16")
    a("s_lshl_b32 s53, s4, 3"); a("s_add_u32 s53, s53, s7"); a("s_lshl_b32 s53, s53, 6"); a("s_add_u32 s52, s52, s53"); a(f"s_add_u32 s52, s52, {W_H2}")
    a("v_lshrrev_b32 v16, 2, v0"); a("v_lshlrev_b32 v16, 12, v16"); a("v_and_b32 v17, 3, v0"); a("v_lshl_add_u32 v16, v17, 4, v16")
    a("v_add_u32 v37, s52, v16")
    a("s_mov_b32 s44, 0xffff0000"); a("s_mov_b32 s45, 0xffff0000")
    a("s_mov_b32 s46, 0"); a("s_mov_b32 s47, -1")
    spin_ge("v16", "v10", C_QRDY, 1)
    stamp(3)
    for s in range(8):
        a(f"ds_read_b128 v[{64+4*s}:{67+4*s}], v28 offset:{64*s}")
    a("s_mov_b32 s50, s3")
    a("L_kitem:")
    a("s_add_u32 s51, s50, 2")
    spin_ge("v16", "v10", C_FILL, "s51")
    a("s_sub_u32 s52, s50, 9"); a("s_cmp_ge_u32 s50, 9"); a("s_cselect_b32 s52, s52, s50"); a("s_lshl_b32 s52, s52, 14")
    for s in range(4): a(f"v_add_u32 v{40+s}, s52, v{20+s}")
    for s in range(8):
        for tl in range(2):
            a(f"ds_read_b128 v[{96+8*s+4*tl}:{99+8*s+4*tl}], v{40+(s&3)} offset:{(s>>2)*256 + tl*8192}")
    a("s_add_u32 s51, s50, 4"); a("s_min_u32 s51, s51, 16"); a("s_add_u32 s51, s51, 3")
    a("v_mov_b32 v16, s51")
    a(f"ds_write_b32 v12, v16 offset:{C_CP}")
    a("v_mov_b32 v63, v62"); a("v_mov_b32 v62, v61"); a("v_mov_b32 v61, v60")
    for s in range(8):
        if s % 2 == 0: a(f"s_waitcnt lgkmcnt({min(15, 13 - 2*s)})" if 13 - 2*s >= 0 else "s_waitcnt lgkmcnt(0)")
        for tl in range(2):
            c = "0" if s == 0 else f"v[{48+4*tl}:{51+4*tl}]"
            a(f"v_mfma_f32_16x16x32_bf16 v[{48+4*tl}:{51+4*tl}], v[{64+4*s}:{67+4*s}], v[{96+8*s+4*tl}:{99+8*s+4*tl}], {c}")
    a("v_cndmask_b32 v16, v48, v52, s[44:45]"); a("v_cndmask_b32 v17, v49, v53, s[44:45]"); a("v_cndmask_b32 v16, v16, v17, s[46:47]")
    rbf("v60", "v16")
    a("s_add_u32 s50, s50, 4"); a("s_cmp_lt_u32 s50, 16"); a("s_cbranch_scc1 L_kitem")
    stamp(4)
    a("v_max_f32 v16, v60, v61"); a("v_max3_f32 v16, v16, v62, v63")
    red16("v_max_f32", "v16"); swapred("v_max_f32", "v16", "v17", 16)
    a(f"ds_write_b32 v32, v16 offset:{C_MX}")
    a(f"ds_write_b32 v12, v13 offset:{C_MXF}")
    spin_all4(40, "v10", C_MXF, sleep=0)
    a(f"ds_read_b128 v[40:43], v31 offset:{C_MX}")
    a("s_waitcnt lgkmcnt(0)")
    a("v_max_f32 v16, v40, v41"); a("v_max3_f32 v16, v16, v42, v43")
    a(f"s_mov_b32 s50, {hex(f2u(CEXP))}")
    for i in range(4): a(f"v_sub_f32 v{60+i}, v{60+i}, v16")
    for i in range(4): a(f"v_mul_f32 v{60+i}, s50, v{60+i}")
    for i in range(4): a(f"v_exp_f32 v{60+i}, v{60+i}")
    a("v_add_f32 v17, v60, v61"); a("v_add_f32 v18, v62, v63"); a("v_add_f32 v17, v17, v18")
    a("v_cvt_pk_bf16_f32 v40, v63, v62"); a("v_cvt_pk_bf16_f32 v41, v61, v60")
    a("ds_write_b16 v30, v40 offset:0"); a("ds_write_b16_d16_hi v30, v40 offset:256")
    a("ds_write_b16 v30, v41 offset:512"); a("ds_write_b16_d16_hi v30, v41 offset:768")
    red16("v_add_f32", "v17"); swapred("v_add_f32", "v17", "v18", 16)
    a(f"ds_write_b32 v32, v17 offset:{C_LS}")
    a(f"ds_write_b32 v12, v13 offset:{C_PF}")
    for i in range(16): a(f"v_mov_b32 v{64+i}, 0")
    spin_all4(40, "v10", C_PF, sleep=0)
    stamp(5)
    a("s_mov_b32 s50, 0")
    a(f"s_mov_b32 s52, {(16 % NS) * SLOT}")
    a("L_vitem:")
    a("ds_read_b128 v[44:47], v29")
    a("v_add_u32 v29, 64, v29")
    for tt in range(4): a(f"v_add_u32 v{40+tt}, s52, v{24+tt}")
    a("s_add_u32 s51, s50, 18")
    spin_ge("v16", "v10", C_FILL, "s51", sleep=0)
    for tt in range(4):
        a(f"ds_read_b64_tr_b16 v[{96+4*tt}:{97+4*tt}], v{40+tt}")
        a(f"ds_read_b64_tr_b16 v[{98+4*tt}:{99+4*tt}], v{40+tt} offset:2048")
    a("s_add_u32 s51, s50, 20"); a("v_mov_b32 v16, s51")
    a(f"ds_write_b32 v12, v16 offset:{C_CP}")
    a(f"s_add_u32 s52, s52, {SLOT}"); a(f"s_cmp_eq_u32 s52, {NS*SLOT}"); a("s_cselect_b32 s52, 0, s52")
    for tt in range(4):
        a(f"s_waitcnt lgkmcnt({7-2*tt})")
        a(f"v_mfma_f32_16x16x32_bf16 v[{64+4*tt}:{67+4*tt}], v[44:47], v[{96+4*tt}:{99+4*tt}], v[{64+4*tt}:{67+4*tt}]")
    a("s_add_u32 s50, s50, 1"); a("s_cmp_lt_u32 s50, 15"); a("s_cbranch_scc1 L_vitem")
    a("s_cmp_eq_u32 s50, 16"); a("s_cbranch_scc1 L_vdone")
    spin_ge("v16", "v10", C_FACF, 1, sleep=0)
    a(f"ds_read_b32 v38, v33 offset:{C_FAC}")
    a("v_mov_b32 v81, s33"); a("v_mov_b32 v83, s33")
    a("s_branch L_vitem")
    a("L_vdone:")
    stamp(6)
    a("v_cndmask_b32 v16, v64, v72, s[44:45]"); a("v_cndmask_b32 v17, v65, v73, s[44:45]")
    a("v_cndmask_b32 v18, v68, v76, s[44:45]"); a("v_cndmask_b32 v19, v69, v77, s[44:45]")
    a("v_cndmask_b32 v16, v16, v17, s[46:47]"); a("v_cndmask_b32 v18, v18, v19, s[46:47]")
    a("v_mul_f32 v80, v16, v38"); a("v_mul_f32 v82, v18, v38")
    a("global_store_dwordx4 v35, v[80:83], s[30:31] sc1")
    for i in range(4): a(f"global_load_dwordx4 v[{96+4*i}:{99+4*i}], v36, s[30:31] offset:{16*i} sc1")
    stamp(7)
    spin_ge("v16", "v10", C_FILL, 34, sleep=0)
    for s in range(2):
        for tau in range(7):
            r = 128 + (s * 7 + tau) * 4
            a(f"ds_read_b64_tr_b16 v[{r}:{r+1}], v34 offset:{tau*32 + s*28672}")
            a(f"ds_read_b64_tr_b16 v[{r+2}:{r+3}], v34 offset:{tau*32 + s*28672 + 14336}")
    stamp(8)
    a("s_branch L_h1_chk")
    a("L_h1_retry:")
    budget()
    for i in range(4): a(f"global_load_dwordx4 v[{96+4*i}:{99+4*i}], v36, s[30:31] offset:{16*i} sc1")
    a("L_h1_chk:")
    a("s_waitcnt vmcnt(0)")
    tagcheck([f"v{97+2*i}" for i in range(8)], "v16", "v17", "L_h1_retry")
    a(f"ds_write_b32 v12, v13 offset:{C_TAIL}")
    stamp(9)
    vals = [96 + 2 * i for i in range(8)]
    for m in ("quad_perm:[1,0,3,2]", "quad_perm:[2,3,0,1]", "row_half_mirror"):
        for v in vals: a(f"v_add_f32_dpp v{v}, v{v}, v{v} {m} {DPPF}")
    a("v_cvt_pk_bf16_f32 v112, v96, v100"); a("v_cvt_pk_bf16_f32 v113, v104, v108")
    a("v_cvt_pk_bf16_f32 v114, v98, v102"); a("v_cvt_pk_bf16_f32 v115, v106, v110")
    for i in range(4): a(f"v_mov_b32 v{116+i}, v{112+i}")
    for i in range(4): a(f"v_mov_b32_dpp v{116+i}, v{112+i} row_ror:8 row_mask:0xf bank_mask:0x3")
    for i in range(4): a(f"v_mov_b32_dpp v{112+i}, v{112+i} row_ror:8 row_mask:0xf bank_mask:0xc")
    a("s_waitcnt lgkmcnt(0)")
    for s in range(2):
        for tau in range(7):
            r = 128 + (s * 7 + tau) * 4
            c = "0" if s == 0 else f"v[{192+4*tau}:{195+4*tau}]"
            a(f"v_mfma_f32_16x16x32_bf16 v[{192+4*tau}:{195+4*tau}], v[{112+4*s}:{115+4*s}], v[{r}:{r+3}], {c}")
    D = lambda tau: f"v{192+4*tau}"
    a(f"v_cndmask_b32 v16, {D(0)}, {D(2)}, s[44:45]"); a(f"v_cndmask_b32 v18, {D(1)}, {D(3)}, s[44:45]")
    a(f"v_cndmask_b32 v17, {D(4)}, {D(6)}, s[44:45]")
    a(f"v_cndmask_b32 v82, v18, {D(5)}, s[46:47]"); a("v_cndmask_b32 v80, v16, v17, s[46:47]")
    a("global_store_dwordx4 v37, v[80:83], s[30:31] sc1")
    stamp(10)
    dump_stamps(11)
    a("s_endpgm")

    def proj_addrs():
        a("v_and_b32 v14, 15, v0"); a("v_lshrrev_b32 v15, 4, v0")
        a("v_lshrrev_b32 v16, 2, v14"); a("v_lshl_add_u32 v16, v15, 3, v16"); a("v_lshlrev_b32 v16, 5, v16")
        a("v_and_b32 v17, 3, v14"); a("v_lshl_add_u32 v20, v17, 3, v16")
        a("s_movk_i32 s50, 896"); a("v_mul_u32_u24 v16, s50, v17"); a("v_lshl_add_u32 v21, v15, 4, v16")
    def act_reads(vaddr):
        for s in range(14): a(f"ds_read_b128 v[{64+4*s}:{67+4*s}], {vaddr} offset:{64*s}")
    def proj(vaddr, acc):
        for s in range(14):
            a(f"ds_read_b64_tr_b16 v[{128+4*s}:{129+4*s}], {vaddr} offset:{1024*s}")
            a(f"ds_read_b64_tr_b16 v[{130+4*s}:{131+4*s}], {vaddr} offset:{1024*s+128}")
        for s in range(14):
            n = 26 - 2 * s
            if n <= 15 and (s % 2 == 0 or s == 13): a(f"s_waitcnt lgkmcnt({max(0, n-2) if s != 13 else 0})")
            elif s == 0: a("s_waitcnt lgkmcnt(14)")
            c = "0" if s == 0 else f"v[{acc}:{acc+3}]"
            a(f"v_mfma_f32_16x16x32_bf16 v[{acc}:{acc+3}], v[{128+4*s}:{131+4*s}], v[{64+4*s}:{67+4*s}], {c}")

    a("L_Q:")
    proj_addrs()
    a(f"v_add_u32 v22, {8*SLOT}, v20"); a(f"v_add_u32 v23, {XN}, v21")
    a("s_lshl_b32 s50, s4, 7"); a("s_lshl_b32 s51, s5, 2"); a("s_add_u32 s50, s50, s51"); a("s_lshl_b32 s50, s50, 4"); a(f"s_add_u32 s50, s50, {W_QG}")
    a("v_lshlrev_b32 v16, 14, v14"); a("v_lshl_add_u32 v16, v15, 4, v16"); a("v_add_u32 v24, s50, v16")
    a("s_lshl_b32 s50, s6, 10"); a("s_lshl_b32 s51, s4, 7"); a("s_add_u32 s50, s50, s51"); a("s_lshl_b32 s50, s50, 4"); a(f"s_add_u32 s50, s50, {W_QG}")
    a("v_add_u32 v25, s50, v9")
    a("v_lshlrev_b32 v26, 3, v0"); a(f"v_add_u32 v26, {QI}, v26")
    a("v_mov_b32 v41, s33"); a("v_mov_b32 v43, s33")
    spin_all4(44, "v10", C_XNF, sleep=0)
    stamp(1)
    act_reads("v23")
    spin_ge("v16", "v10", C_FILL, 1, sleep=0)
    stamp(2)
    proj("v22", 48)
    a(f"v_mov_b32 v16, {BIG}"); a(f"ds_write_b32 v10, v16 offset:{C_QP}")
    a("v_cvt_pk_bf16_f32 v40, v48, v49"); a("v_cvt_pk_bf16_f32 v42, v50, v51")
    a("s_mov_b32 exec_lo, 0x000f000f"); a("s_mov_b32 exec_hi, 0x000f000f")
    a("global_store_dwordx4 v24, v[40:43], s[30:31] sc1")
    a("s_mov_b64 exec, -1")
    stamp(3)
    a("L_q_retry:")
    budget()
    a("global_load_dwordx4 v[48:51], v25, s[30:31] sc1")
    a("global_load_dwordx4 v[52:55], v25, s[30:31] offset:1024 sc1")
    a("s_waitcnt vmcnt(0)")
    tagcheck(["v49", "v51", "v53", "v55"], "v16", "v17", "L_q_retry")
    a("ds_write2_b32 v26, v48, v50 offset0:0 offset1:1")
    a("ds_write2_b32 v26, v52, v54 offset0:128 offset1:129")
    a("v_mov_b32 v16, 1"); a(f"ds_write_b32 v10, v16 offset:{C_QRDY}")
    stamp(4)
    a("s_lshl_b32 s50, s6, 3"); a("s_add_u32 s50, s50, s4"); a("s_lshl_b32 s50, s50, 8"); a(f"s_add_u32 s50, s50, {W_MLG}")
    a("v_lshlrev_b32 v16, 4, v14"); a("v_add_u32 v25, s50, v16")
    a("s_lshl_b32 s51, s7, 5"); a("s_add_u32 s50, s50, s51")
    a("v_and_b32 v17, 1, v0"); a("v_lshlrev_b32 v16, 4, v17"); a("v_add_u32 v24, s50, v16")
    a("v_add_u32 v27, v16, v10")
    a("v_lshl_add_u32 v28, v17, 2, v10")
    spin_all4(44, "v10", C_PF, sleep=4)
    a(f"ds_read_b128 v[44:47], v27 offset:{C_MX}"); a(f"ds_read_b128 v[48:51], v27 offset:{C_LS}")
    a("s_waitcnt lgkmcnt(0)")
    a("v_max_f32 v40, v44, v45"); a("v_max3_f32 v40, v40, v46, v47")
    a("v_add_f32 v48, v48, v49"); a("v_add_f32 v50, v50, v51"); a("v_add_f32 v42, v48, v50")
    a("s_mov_b64 exec, 3")
    a("global_store_dwordx4 v24, v[40:43], s[30:31] sc1")
    a("s_mov_b64 exec, -1")
    stamp(5)
    a("L_ml_retry:")
    budget()
    a("s_sleep 4")
    a("global_load_dwordx4 v[48:51], v25, s[30:31] sc1")
    a("s_waitcnt vmcnt(0)")
    tagcheck(["v49", "v51"], "v16", "v17", "L_ml_retry")
    a(f"s_mov_b32 s50, {hex(f2u(CEXP))}")
    a("v_mov_b32 v44, v48")
    for m in ("quad_perm:[2,3,0,1]", "row_ror:4", "row_ror:8"): a(f"v_max_f32_dpp v44, v44, v44 {m} {DPPF}")
    a("v_sub_f32 v45, v48, v44"); a("v_sub_f32 v46, v40, v44")
    a("v_mul_f32 v45, s50, v45"); a("v_mul_f32 v46, s50, v46")
    a("v_exp_f32 v45, v45"); a("v_exp_f32 v46, v46")
    a("v_mul_f32 v45, v45, v50")
    for m in ("quad_perm:[2,3,0,1]", "row_ror:4", "row_ror:8"): a(f"v_add_f32_dpp v45, v45, v45 {m} {DPPF}")
    a("v_rcp_f32 v45, v45")
    a("v_mul_f32 v46, v46, v45")
    a(f"ds_write_b32 v28, v46 offset:{C_FAC}")
    a("v_mov_b32 v16, 1"); a(f"ds_write_b32 v10, v16 offset:{C_FACF}")
    stamp(6)
    dump_stamps(7)
    a("s_endpgm")

    a("L_F:")
    a("s_cmp_ge_u32 s2, 224"); a("s_cbranch_scc1 L_end")
    proj_addrs()
    a(f"v_add_u32 v22, {7*SLOT}, v20"); a(f"v_add_u32 v29, {6*SLOT}, v20")
    a("v_mov_b32 v41, s33"); a("v_mov_b32 v43, s33")
    a("s_cmp_ge_u32 s2, 112"); a("s_cbranch_scc1 L_F2")
    a(f"v_add_u32 v23, {XN}, v21")
    a("s_mul_i32 s50, s2, 2341"); a("s_lshr_b32 s50, s50, 16"); a("s_mul_i32 s51, s50, 28"); a("s_sub_u32 s51, s2, s51")
    a("s_mul_i32 s50, s50, 448"); a("s_lshl_b32 s51, s51, 2"); a("s_add_u32 s50, s50, s51"); a("s_lshl_b32 s50, s50, 4"); a(f"s_add_u32 s50, s50, {W_HG}")
    a("s_movk_i32 s51, 112"); a("v_mad_u32_u24 v16, v14, s51, v15"); a("v_lshlrev_b32 v16, 4, v16"); a("v_add_u32 v24, s50, v16")
    spin_all4(44, "v10", C_XNF, sleep=2)
    act_reads("v23")
    spin_ge("v16", "v10", C_FILL, 3, sleep=2)
    stamp(1)
    proj("v22", 48)
    proj("v29", 52)
    a(f"v_mov_b32 v16, {BIG}"); a(f"ds_write_b32 v10, v16 offset:{C_FP}")
    a(f"s_mov_b32 s50, {hex(f2u(-LOG2E))}")
    for i in range(4): rbf(f"v{48+i}", f"v{48+i}")
    for i in range(4): rbf(f"v{52+i}", f"v{52+i}")
    for i in range(4): a(f"v_mul_f32 v{56+i}, s50, v{48+i}")
    for i in range(4): a(f"v_exp_f32 v{56+i}, v{56+i}")
    for i in range(4): a(f"v_add_f32 v{56+i}, 1.0, v{56+i}")
    for i in range(4): a(f"v_rcp_f32 v{56+i}, v{56+i}")
    for i in range(4): a(f"v_mul_f32 v{56+i}, v{56+i}, v{48+i}")
    for i in range(4): rbf(f"v{56+i}", f"v{56+i}")
    for i in range(4): a(f"v_mul_f32 v{56+i}, v{56+i}, v{52+i}")
    a("v_cvt_pk_bf16_f32 v40, v56, v57"); a("v_cvt_pk_bf16_f32 v42, v58, v59")
    a("s_mov_b32 exec_lo, 0x000f000f"); a("s_mov_b32 exec_hi, 0x000f000f")
    a("global_store_dwordx4 v24, v[40:43], s[30:31] sc1")
    stamp(2)
    dump_stamps(3)
    a("s_endpgm")
    a("L_F2:")
    a(f"v_add_u32 v23, {HA}, v21")
    a("s_sub_u32 s52, s2, 112"); a("s_mul_i32 s50, s52, 2341"); a("s_lshr_b32 s50, s50, 16"); a("s_mul_i32 s51, s50, 28"); a("s_sub_u32 s51, s52, s51")
    a(f"s_mul_i32 s52, s50, {448*16}"); a(f"s_add_u32 s52, s52, {W_HG}"); a("v_add_u32 v25, s52, v9"); a("v_add_u32 v27, 4096, v25")
    a(f"s_mul_i32 s52, s50, {4*448*8}"); a("s_lshl_b32 s51, s51, 7"); a("s_add_u32 s52, s52, s51"); a(f"s_add_u32 s52, s52, {W_OG}")
    a(f"s_movk_i32 s51, {448*8}"); a("v_lshlrev_b32 v16, 5, v15"); a("v_mad_u32_u24 v16, v14, s51, v16"); a("v_add_u32 v24, s52, v16")
    a("v_lshlrev_b32 v26, 3, v0"); a(f"v_add_u32 v26, {HA}, v26")
    spin_ge("v16", "v10", C_QRDY, 1, sleep=4)
    stamp(1)
    a("L_h_retry:")
    budget()
    for i in range(7):
        a(f"global_load_dwordx4 v[{64+4*i}:{67+4*i}], {'v25' if i < 4 else 'v27'}, s[30:31] offset:{1024*(i&3)} sc1")
    a("s_waitcnt vmcnt(0)")
    tagcheck([f"v{65+2*i}" for i in range(14)], "v16", "v17", "L_h_retry")
    for i in range(7):
        if i == 2: a("v_add_u32 v26, 1024, v26")
        if i == 4: a("v_add_u32 v26, 1024, v26")
        if i == 6: a("v_add_u32 v26, 1024, v26")
        a(f"ds_write2_b32 v26, v{64+4*i}, v{66+4*i} offset0:{128*(i&1)} offset1:{128*(i&1)+1}")
    a("s_waitcnt lgkmcnt(0)")
    act_reads("v23")
    spin_ge("v16", "v10", C_FILL, 3, sleep=2)
    stamp(2)
    proj("v22", 48)
    a(f"v_mov_b32 v16, {BIG}"); a(f"ds_write_b32 v10, v16 offset:{C_FP}")
    a("v_mov_b32 v40, v48"); a("v_mov_b32 v42, v49")
    a("v_mov_b32 v44, v50"); a("v_mov_b32 v45, s33"); a("v_mov_b32 v46, v51"); a("v_mov_b32 v47, s33")
    a("s_mov_b32 exec_lo, 0x000f000f"); a("s_mov_b32 exec_hi, 0x000f000f")
    a("global_store_dwordx4 v24, v[40:43], s[30:31] sc1")
    a("global_store_dwordx4 v24, v[44:47], s[30:31] offset:16 sc1")
    stamp(3)
    dump_stamps(4)
    a("s_endpgm")

    a("L_R:")
    if prefetch_code:
        a("s_getpc_b64 s[48:49]")
        a("L_pc:")
        a(f"s_sub_u32 s48, s48, L_pc-{KNAME}_kernel"); a("s_subb_u32 s49, s49, 0")
        a("s_lshl_b32 s50, s5, 10"); a(f"s_cmp_lt_u32 s50, L_end-{KNAME}_kernel-1024"); a("s_cbranch_scc0 L_nopf")
        a("v_add_u32 v16, s50, v9")
        a("global_load_dwordx4 v[20:23], v16, s[48:49]")
        a("L_nopf:")
    a("s_lshr_b32 s50, s2, 6"); a("s_and_b32 s51, s2, 63"); a("s_lshr_b32 s52, s51, 4"); a("s_mul_i32 s52, s52, 112")
    a("s_bfe_u32 s53, s51, 0x20002"); a("s_lshl_b32 s54, s53, 5"); a("s_add_u32 s52, s52, s54")
    a("s_and_b32 s54, s51, 3"); a("s_lshl_b32 s54, s54, 2"); a("s_add_u32 s52, s52, s54")
    a("s_cmp_eq_u32 s53, 3"); a("s_cselect_b32 s54, 0, 16"); a("s_cselect_b32 s55, 0, 15")
    a("s_mul_i32 s56, s50, 448"); a("s_add_u32 s52, s52, s56")
    a("v_lshrrev_b32 v16, 5, v0"); a("v_and_b32 v17, 3, v0"); a("v_mad_u32_u24 v16, v16, s54, v17"); a("v_add_u32 v16, s52, v16")
    a("v_lshlrev_b32 v24, 1, v16")
    a("global_load_ushort v30, v24, s[8:9]")
    a("v_bfe_u32 v17, v0, 2, 2"); a(f"s_movk_i32 s56, {4*448}"); a("v_mad_u32_u24 v16, v17, s56, v16")
    a("v_lshlrev_b32 v16, 3, v16"); a(f"v_add_u32 v25, {W_OG}, v16")
    a("s_lshl_b32 s56, s2, 12"); a(f"s_add_u32 s56, s56, {W_H2}"); a("v_add_u32 v26, s56, v9")
    spin_ge("v16", "v10", C_FILL, 12, sleep=16)
    stamp(1)
    a("L_og_retry:")
    budget()
    a("s_sleep 4")
    a("global_load_dwordx2 v[32:33], v25, s[30:31] sc1")
    a("s_waitcnt vmcnt(0)")
    tagcheck(["v33"], "v16", "v17", "L_og_retry")
    for m in ("row_ror:4", "row_ror:8"): a(f"v_add_f32_dpp v32, v32, v32 {m} {DPPF}")
    rbf("v32", "v32")
    a(f"v_mul_f32 v33, {hex(f2u(-LOG2E))}, v32"); a("v_exp_f32 v33, v33"); a("v_add_f32 v33, 1.0, v33"); a("v_rcp_f32 v33, v33")
    a("v_mul_f32 v32, v32, v33"); rbf("v32", "v32")
    a("v_lshlrev_b32 v30, 16, v30")
    stamp(2)
    spin_ge("v16", "v10", C_FILL, 33, sleep=8)
    spin_ge("v16", "v10", C_TAIL, 1, sleep=0)
    stamp(3)
    a("L_h2_retry:")
    budget()
    for i in range(4): a(f"global_load_dwordx4 v[{48+4*i}:{51+4*i}], v26, s[30:31] offset:{1024*i} sc1")
    a("s_waitcnt vmcnt(0)")
    tagcheck([f"v{49+2*i}" for i in range(8)], "v16", "v17", "L_h2_retry")
    stamp(4)
    a("v_add_f32 v48, v48, v52"); a("v_add_f32 v50, v50, v54"); a("v_add_f32 v56, v56, v60"); a("v_add_f32 v58, v58, v62")
    a("v_add_f32 v48, v48, v56"); a("v_add_f32 v50, v50, v58")
    a("v_permlane32_swap_b32 v48, v50"); a("v_add_f32 v48, v48, v50")
    swapred("v_add_f32", "v48", "v50", 16)
    for m in ("row_ror:4", "row_ror:8"): a(f"v_add_f32_dpp v48, v48, v48 {m} {DPPF}")
    rbf("v48", "v48")
    a("v_mul_f32 v48, v48, v32"); rbf("v48", "v48")
    a("v_add_f32 v48, v48, v30"); a("v_cvt_pk_bf16_f32 v48, v48, v48")
    a("s_mov_b32 exec_lo, 15"); a("s_mov_b32 exec_hi, s55")
    a("global_store_short v24, v48, s[26:27]")
    a("s_cmp_lg_u32 s2, 0"); a("s_cbranch_scc1 L_rdone")
    a("s_mov_b64 exec, 1")
    a("v_mov_b32 v16, 0"); a("v_mov_b32 v17, s33")
    a("global_store_dword v16, v17, s[30:31]")
    a("L_rdone:")
    stamp(5)
    dump_stamps(6)
    a("L_end:")
    a("s_endpgm")
    a("L_fail:")
    a("s_mov_b64 exec, 1")
    a("s_lshl_b32 s60, s3, 2"); a("s_or_b32 s61, s2, 0xbad00000")
    a("v_mov_b32 v16, s60"); a("v_mov_b32 v17, s61")
    a("global_store_dword v16, v17, s[28:29]")
    a("s_endpgm")
    a.raw('.section .rodata,"a"'); a.raw(".p2align 6"); a.raw(f".amdhsa_kernel {KNAME}_kernel")
    a.raw("  .amdhsa_next_free_vgpr 256"); a.raw("  .amdhsa_next_free_sgpr 96"); a.raw("  .amdhsa_accum_offset 256")
    a.raw("  .amdhsa_group_segment_fixed_size 0"); a.raw("  .amdhsa_kernarg_size 96"); a.raw("  .amdhsa_user_sgpr_count 2")
    a.raw("  .amdhsa_user_sgpr_kernarg_segment_ptr 1"); a.raw("  .amdhsa_system_sgpr_workgroup_id_x 1"); a.raw(".end_amdhsa_kernel")
    return a.text()

if __name__ == "__main__":
    import ast
    kw = {}
    for x in sys.argv[2:]:
        k, v = x.split("=", 1)
        try: kw[k] = ast.literal_eval(v)
        except Exception: kw[k] = v
    open(sys.argv[1], "w").write(gen(**kw))
```

```python
import sys, struct
from asmlib import Asm
KNAME = "recurrent_scan__gqa_block_cached__glu_gated_swiglu__decode"

SLOT = 16384; NS = 9
RING = 0; RING_END = RING + NS * SLOT; BIGW = 6 * SLOT; WOB = 5 * SLOT; F2B = 8 * SLOT
CTRL = BIGW + 57344; XN = CTRL + 256; QI = XN + 3584; PB = QI + 1024; HA = PB + 2048; OAI = HA + 1024; LDS_END = OAI + 128; OI = XN
assert LDS_END <= 163840
C_CP = 0; C_FP = 16; C_FILL = 32; C_XNF = 48; C_QRDY = 64; C_MXF = 80; C_PF = 96; C_FACF = 112
C_MX = 128; C_LS = 160; C_FAC = 192; C_TAIL = 208; C_OF = 224; C_LOC = 200
OA = None
W_E = 0; W_QG = 0x1000; W_GU = 0x20000; W_OG = 0x40000; W_MLG = 0x80000; W_H1 = 0x100000; W_H2 = 0x200000; W_H1L = 0x300000; W_DIAG = 0x400000
BIG = 1000
DEFCLS = 'g'
CEXP = 0.09016844005556021
LOG2E = 1.4426950408889634
def f2u(f): return struct.unpack("<I", struct.pack("<f", f))[0]

def gen(diag=False, kvflags="nt", wflags="nt", woflags="", win=21, winB=None, prefetch_code=True, qpoll_fill=4, cls='g', h1dual=False, qpipe=0, kvsleep=0, noffn=False, noq=False, noml=False, notail=False, wo_lead=8, nowo=False, og_fill=32, gu_fill=10, h1sleep=2, h2sleep=2, qsleep=4, pretouch=False, h1fill=32, e_fill=26, noe=False, nost1=False, nost2=False, rounds1=None, rounds2=None, ml_fill=27, forcesc1=False, noh2=False, noog=False):
    a = Asm()
    winA = win
    if winB is None: winB = win
    assert 17 <= winA <= 32 and 17 <= winB <= 32
    kvf = (" " + kvflags) if kvflags else ""
    wf = (" " + wflags) if wflags else ""
    wof = (" " + woflags) if woflags else ""
    hdr = open("cdna_kernels/" + KNAME + ".s.ref").read().split("; Override launch")[0]
    a.raw(hdr.rstrip())
    a.raw(f"; @launch grid=(256,1,1) block=(512,1,1) lds={LDS_END}")
    a.raw('.amdgcn_target "amdgcn-amd-amdhsa--gfx950"')
    a.raw(".text"); a.raw(f".globl {KNAME}_kernel"); a.raw(".p2align 8"); a.raw(f".type {KNAME}_kernel,@function"); a.raw(f"{KNAME}_kernel:")
    def stamp(i):
        if diag:
            a(f"s_memrealtime s[64:65]"); a("s_waitcnt lgkmcnt(0)"); a(f"v_writelane_b32 v247, s64, {2*i}"); a(f"v_writelane_b32 v247, s65, {2*i+1}")
    def dump_stamps(n):
        if diag:
            a("s_mov_b32 exec_lo, -1"); a("s_mov_b32 exec_hi, 0")
            a("s_lshl_b32 s60, s2, 3"); a("s_add_u32 s60, s60, s3"); a("s_lshl_b32 s60, s60, 7"); a(f"s_add_u32 s60, s60, {W_DIAG}")
            a("v_lshl_add_u32 v246, v0, 2, s60")
            a("global_store_dword v246, v247, s[30:31]")
    lbl = [0]
    def newlabel(p):
        lbl[0] += 1; return f"L_{p}_{lbl[0]}"
    def budget():
        a("s_sub_u32 s62, s62, 1"); a("s_cbranch_scc1 L_fail")
    def _spin_tail(L, Ld, sleep):
        a(f"s_cbranch_scc1 {Ld}")
        if sleep: a(f"s_sleep {sleep}")
        a("s_sub_u32 s62, s62, 1"); a(f"s_cbranch_scc0 {L}"); a("s_branch L_fail"); a(f"{Ld}:")
    def spin_ge(vtmp, vctl, off, sval, sleep=1):
        L = newlabel("spin"); Ld = newlabel("spind")
        a(f"{L}:")
        a(f"ds_read_b32 {vtmp}, {vctl} offset:{off}")
        a("s_waitcnt lgkmcnt(0)")
        a(f"v_readfirstlane_b32 s59, {vtmp}")
        a(f"s_cmp_ge_u32 s59, {sval}")
        _spin_tail(L, Ld, sleep)
    def spin_all4(vt, vctl, off, sleep=1):
        L = newlabel("spin4"); Ld = newlabel("spin4d")
        a(f"{L}:")
        a(f"ds_read_b128 v[{vt}:{vt+3}], {vctl} offset:{off}")
        a("s_waitcnt lgkmcnt(0)")
        a(f"v_min_u32 v{vt}, v{vt}, v{vt+1}")
        a(f"v_min3_u32 v{vt}, v{vt}, v{vt+2}, v{vt+3}")
        a(f"v_readfirstlane_b32 s59, v{vt}")
        a("s_cmp_lg_u32 s59, 0")
        _spin_tail(L, Ld, sleep)
    def tagcheck(tags, vacc, vacc2, retry):
        h = (len(tags) + 1) // 2
        t1, t2 = tags[:h], tags[h:]
        a(f"v_xor_b32 {vacc}, s33, {t1[0]}")
        if t2: a(f"v_xor_b32 {vacc2}, s33, {t2[0]}")
        for i in range(1, h):
            a(f"v_bitop3_b32 {vacc}, {t1[i]}, s33, {vacc} bitop3:0xbe")
            if i < len(t2): a(f"v_bitop3_b32 {vacc2}, {t2[i]}, s33, {vacc2} bitop3:0xbe")
        if t2: a(f"v_or_b32 {vacc}, {vacc}, {vacc2}")
        a(f"v_cmp_ne_u32 vcc, 0, {vacc}")
        a(f"s_cbranch_vccnz {retry}")
    def mpoll(loads, name, vt, sm=72, pre=None, alt=None, sleep=0, preset=False):
        n = len(loads)
        for i, (d, va, off) in enumerate(loads):
            if preset: a(f"s_mov_b64 exec, s[{sm+2*i}:{sm+2*i+1}]")
            a(f"global_load_dwordx4 v[{d}:{d+3}], {va}, s[30:31] offset:{off} sc1")
        if preset: a("s_mov_b64 exec, -1")
        if pre: pre()
        a(f"s_branch L_{name}_chk")
        a(f"L_{name}_retry:")
        if sleep: a(f"s_sleep {sleep}")
        if alt:
            a("s_add_u32 s63, s63, 1"); a("s_and_b32 s61, s63, 3"); a("s_cmp_lt_u32 s61, 2"); a(f"s_cbranch_scc0 L_{name}_noalt")
            a(f"v_xor_b32 {alt[0]}, {alt[0]}, {alt[1]}"); a(f"L_{name}_noalt:")
        for i, (d, va, off) in enumerate(loads):
            a(f"s_mov_b64 exec, s[{sm+2*i}:{sm+2*i+1}]"); a(f"s_cbranch_execz L_{name}_sk{i}")
            a(f"global_load_dwordx4 v[{d}:{d+3}], {va}, s[30:31] offset:{off} sc1")
            a(f"L_{name}_sk{i}:")
        a("s_mov_b64 exec, -1")
        budget()
        a(f"L_{name}_chk:")
        a("s_waitcnt vmcnt(0)")
        for i, (d, va, off) in enumerate(loads): a(f"v_xor_b32 v{vt+i}, s33, v{d+1}")
        for i, (d, va, off) in enumerate(loads): a(f"v_bitop3_b32 v{vt+i}, v{d+3}, s33, v{vt+i} bitop3:0xbe")
        for i, (d, va, off) in enumerate(loads): a(f"v_cmp_ne_u32 s[{sm+2*i}:{sm+2*i+1}], 0, v{vt+i}")
        if n == 1: a(f"s_cmp_lg_u64 s[{sm}:{sm+1}], 0")
        else:
            a(f"s_or_b64 vcc, s[{sm}:{sm+1}], s[{sm+2}:{sm+3}]")
            for i in range(2, n): a(f"s_or_b64 vcc, vcc, s[{sm+2*i}:{sm+2*i+1}]")
        rounds = {"h1": rounds1, "h2": rounds2}.get(name)
        if rounds is not None:
            a("s_add_u32 s82, s82, 1"); a(f"s_cmp_lt_u32 s82, {rounds}")
        a(f"s_cbranch_scc1 L_{name}_retry")
    def rbf(dst, src):
        a(f"v_cvt_pk_bf16_f32 {dst}, {src}, {src}")
        a(f"v_and_b32 {dst}, 0xffff0000, {dst}")
    DPPF = "row_mask:0xf bank_mask:0xf"
    def red16(op, v):
        for m in ("quad_perm:[1,0,3,2]", "quad_perm:[2,3,0,1]", "row_half_mirror", "row_mirror"):
            a(f"{op}_dpp {v}, {v}, {v} {m} {DPPF}")
    def swapred(op, v, t, which):
        a(f"v_mov_b32 {t}, {v}")
        a(f"v_permlane{which}_swap_b32 {v}, {t}")
        a(f"{op} {v}, {v}, {t}")

    if diag: a("s_memrealtime s[66:67]")
    a("s_cmp_ge_u32 s2, 256")
    a("s_cbranch_scc1 L_end")
    a("s_load_dwordx16 s[8:23], s[0:1], 0")
    a("s_load_dwordx8 s[24:31], s[0:1], 64")
    a("v_lshrrev_b32 v1, 6, v0")
    a("v_and_b32 v0, 63, v0")
    a("v_readfirstlane_b32 s3, v1")
    a("s_and_b32 s4, s2, 7")
    a("s_lshr_b32 s5, s2, 3")
    a("s_and_b32 s6, s5, 3")
    a("s_lshr_b32 s7, s5, 2")
    if cls == 'b':
        a("s_and_b32 s34, s6, 1"); a("s_lshl_b32 s48, s7, 1"); a("s_add_u32 s34, s34, s48"); a("s_lshl_b32 s34, s34, 3"); a("s_add_u32 s34, s34, s4")
    else:
        a("s_and_b32 s34, s4, 3"); a("s_lshl_b32 s48, s5, 2"); a("s_add_u32 s34, s34, s48")
    a("s_cmp_lt_u32 s34, 120"); a("s_cselect_b32 s35, 3, 0")
    a("s_cmp_lt_u32 s34, 92"); a("s_cselect_b32 s35, 2, s35")
    a("s_cmp_lt_u32 s34, 64"); a("s_cselect_b32 s35, 1, s35")
    a("s_cmp_lt_u32 s34, 98"); a("s_cselect_b32 s48, 4, 0")
    a("s_cmp_ge_u32 s6, 2" if cls == 'b' else "s_cmp_ge_u32 s4, 4"); a("s_cselect_b32 s35, s48, s35")
    a("s_sub_u32 s49, s34, 64"); a("s_sub_u32 s48, s34, 92")
    a("s_cmp_eq_u32 s35, 3"); a("s_cselect_b32 s49, s48, s49")
    a("s_movk_i32 s57, 3584"); a("s_mov_b32 s38, 1605632")
    a("s_cmp_eq_u32 s35, 1"); a("s_cselect_b32 s49, s34, s49"); a("s_cselect_b32 s57, 8192, s57"); a("s_cselect_b32 s38, 3670016, s38")
    a("s_mov_b32 s39, 0x20000")
    a("v_lshlrev_b32 v9, 4, v0")
    a(f"v_mov_b32 v10, {CTRL}")
    a("v_lshrrev_b32 v2, 3, v0"); a("v_and_b32 v3, 7, v0"); a("v_and_b32 v8, 2, v2"); a("v_xor_b32 v3, v3, v8")
    a("v_lshlrev_b32 v3, 4, v3")
    a("s_mov_b32 s62, 0x20000"); a("s_mov_b32 s63, 1"); a("s_mov_b32 s82, 0")
    a("s_waitcnt lgkmcnt(0)")
    a("s_load_dword s32, s[30:31], 0")
    if diag: a("v_writelane_b32 v247, s66, 0"); a("v_writelane_b32 v247, s67, 1")
    a("s_cmp_eq_u32 s3, 4")
    a("s_cbranch_scc1 L_loader")
    a("s_cmp_ge_u32 s3, 4"); a("s_cbranch_scc1 L_nox")
    a("s_sub_u32 s50, s35, 1"); a("s_cmp_ge_u32 s50, 3"); a("s_cbranch_scc1 L_nox")
    a("s_mul_i32 s50, s3, 896")
    a("v_add_u32 v11, s50, v9")
    a("v_mov_b32 v4, 0"); a("v_mov_b32 v5, 0"); a("v_mov_b32 v6, 0"); a("v_mov_b32 v7, 0")
    a("s_mov_b32 exec_hi, 0x00ffffff")
    a("global_load_dwordx4 v[4:7], v11, s[8:9]")
    a("s_mov_b32 exec_hi, -1")
    a("L_nox:")
    a("s_sub_u32 s50, s35, 1"); a("s_cmp_ge_u32 s50, 3"); a("s_cselect_b32 s51, 1, 0"); a("s_cselect_b32 s52, 4, 1")
    a("v_mov_b32 v12, s52"); a("v_mad_u32_u24 v12, v0, s51, v12")
    a("v_cmp_gt_u32 vcc, 4, v0")
    a("s_cmp_eq_u32 s35, 4"); a(f"s_cselect_b32 s50, 3, {BIG}")
    a("v_cndmask_b32 v12, 0, v12, vcc")
    a("v_mov_b32 v13, s50")
    a("v_cmp_eq_u32 vcc, 4, v0")
    a("v_lshl_add_u32 v14, v0, 2, v10")
    a("v_cndmask_b32 v12, v12, v13, vcc")
    a("ds_write_b32 v14, v12")
    a("s_waitcnt lgkmcnt(0)")
    a("s_mul_i32 s33, s32, 0x9E3779B1"); a("s_add_u32 s33, s33, 0x7F4A7C15")
    a("s_barrier")
    a("s_cmp_lt_u32 s3, 4"); a("s_cbranch_scc1 L_C")
    a("s_cmp_eq_u32 s3, 5"); a("s_cbranch_scc1 L_Q")
    a("s_cmp_eq_u32 s3, 6"); a("s_cbranch_scc1 L_F")
    a("s_branch L_R")

    a("L_loader:")
    a("s_setprio 3")
    a("s_mov_b32 s58, 1")
    a("s_sub_u32 s50, s35, 1"); a("s_cmp_ge_u32 s50, 3"); a("s_cbranch_scc1 L_ld_np")
    a("s_cmp_eq_u32 s35, 2"); a("s_cselect_b32 s36, s20, s22"); a("s_cselect_b32 s37, s21, s23")
    a("s_cmp_eq_u32 s35, 1"); a("s_cselect_b32 s36, s14, s36"); a("s_cselect_b32 s37, s15, s37")
    a("s_lshl_b32 s48, s49, 7")
    a(f"s_mov_b32 m0, {BIGW}"); a("s_mov_b32 s50, 28")
    a("L_ld_tile:")
    a("v_mad_u32_u24 v16, v2, s57, v3"); a("v_xor_b32 v17, 64, v3"); a("v_mad_u32_u24 v17, v2, s57, v17")
    a("s_lshl_b32 s56, s57, 3")
    a("L_tile:")
    a(f"s_waitcnt vmcnt({min(winA,winB)-1})")
    a(f"buffer_load_dwordx4 v16, s[36:39], s48 offen{wf} lds")
    a("s_add_u32 m0, m0, 1024"); a("s_add_u32 s48, s48, s56")
    a(f"s_waitcnt vmcnt({min(winA,winB)-1})")
    a(f"buffer_load_dwordx4 v17, s[36:39], s48 offen{wf} lds")
    a("s_add_u32 m0, m0, 1024"); a("s_add_u32 s48, s48, s56")
    a("s_sub_u32 s50, s50, 1")
    a(f"s_cmp_lg_u32 s50, {28 - min(winA, winB, 24)//2}"); a("s_cbranch_scc1 L_tile_nb"); a("s_barrier"); a("s_mov_b32 s58, 0"); a("L_tile_nb:")
    a("s_cmp_lg_u32 s50, 0"); a("s_cbranch_scc1 L_tile")
    a("L_ld_kv:")
    a("v_lshrrev_b32 v12, 5, v0"); a("v_and_b32 v13, 31, v0"); a("v_lshlrev_b32 v14, 9, v12"); a("v_xor_b32 v15, v13, v12")
    for p in range(8):
        if p: a(f"v_xor_b32 v{16+p}, {2*p}, v15")
        else: a("v_mov_b32 v16, v15")
        a(f"v_lshl_add_u32 v{16+p}, v{16+p}, 4, v14")
    a("s_mov_b32 s40, s10"); a("s_mov_b32 s41, s11"); a("s_mov_b32 s42, 0x4000000"); a("s_mov_b32 s43, 0x20000")
    a("s_lshl_b32 s52, s6, 3"); a("s_add_u32 s52, s52, s4"); a("s_lshl_b32 s52, s52, 21")
    a("s_lshl_b32 s53, s7, 18"); a("s_add_u32 s54, s52, s53")
    a("s_mov_b32 s52, s54")
    a("s_mov_b32 s50, 0")
    a(f"s_mov_b32 s51, {RING}")
    def item_loop(c, w):
        NSIG = w - 17
        a(f"L_item{c}:")
        a("s_cmp_lt_u32 s50, 5"); a(f"s_cbranch_scc1 L_item_early{c}")
        a("s_cmp_eq_u32 s50, 16"); a(f"s_cbranch_scc1 L_item_tov{c}")
        a(f"L_item_check{c}:")
        a("s_waitcnt lgkmcnt(0)")
        a("v_min3_u32 v40, v40, v41, v42")
        a("v_min3_u32 v40, v40, v43, v44")
        a("s_sub_u32 s56, s50, 5")
        a("v_readfirstlane_b32 s55, v40")
        a("s_cmp_gt_u32 s55, s56")
        a(f"s_cbranch_scc0 L_item_slow{c}")
        a(f"L_item_go{c}:")
        if diag == 2:
            a("s_memrealtime s[70:71]"); a("s_waitcnt lgkmcnt(0)"); a("s_mov_b32 m0, s50"); a("v_writelane_b32 v60, s70, m0")
        for grp in range(4):
            if grp == 0: a("s_mov_b32 m0, s51")
            else:
                a("s_add_u32 m0, m0, 4096"); a("s_add_u32 s52, s52, 4096")
            if grp == 3:
                a(f"ds_read_b128 v[40:43], v10 offset:{C_CP}"); a(f"ds_read_b32 v44, v10 offset:{C_FP}")
            for q in range(4):
                n = grp * 4 + q
                a(f"s_waitcnt vmcnt({w-1})")
                if n == NSIG:
                    a("v_mov_b32 v46, s50"); a(f"ds_write_b32 v10, v46 offset:{C_FILL}")
                a(f"buffer_load_dwordx4 v{16+(n&7)}, s[40:43], s52 offen offset:{1024*q}{kvf} lds")
        a("s_add_u32 s52, s52, 4096")
        a(f"s_add_u32 s51, s51, {SLOT}"); a(f"s_cmp_eq_u32 s51, {RING_END}"); a(f"s_cselect_b32 s51, {RING}, s51")
        a("s_add_u32 s50, s50, 1"); a("s_cmp_lt_u32 s50, 32"); a(f"s_cbranch_scc1 L_item{c}")
    two = winA != winB
    if two:
        a("s_sub_u32 s55, s35, 1"); a("s_cmp_ge_u32 s55, 3"); a("s_cbranch_scc1 L_itemB")
    item_loop("A", winA)
    a("L_items_done:")
    stamp(1)
    a("L_wo_check:")
    a("s_waitcnt lgkmcnt(0)")
    a("v_min3_u32 v40, v40, v41, v42")
    a("v_min_u32 v40, v40, v43")
    a("s_mov_b32 s36, s16"); a("s_mov_b32 s37, s17"); a("s_mov_b32 s38, 3670016")
    a("v_readfirstlane_b32 s55, v40")
    a("s_cmp_gt_u32 s55, 30")
    a("s_cbranch_scc1 L_wo_go")
    budget()
    a(f"ds_read_b128 v[40:43], v10 offset:{C_CP}")
    a("s_branch L_wo_check")
    a("L_wo_go:")
    a(f"s_mul_i32 s52, s4, {512*896}"); a("s_lshl_b32 s53, s7, 7"); a("s_add_u32 s52, s52, s53")
    a("s_movk_i32 s57, 896")
    a("v_mad_u32_u24 v16, v2, s57, v3"); a("v_xor_b32 v17, 64, v3"); a("v_mad_u32_u24 v17, v2, s57, v17")
    a(f"s_mov_b32 m0, {WOB}")
    a("v_mov_b32 v46, 32"); a("v_mov_b32 v47, 33")
    a("s_cmp_eq_u32 s7, 7"); a("s_cbranch_scc1 L_wo_none")
    def wo1(k):
        a(f"buffer_load_dwordx4 v{16+(k&1)}, s[36:39], s52 offen{wof} lds")
        a("s_add_u32 m0, m0, 1024"); a(f"s_add_u32 s52, s52, {8*896}")
    if nowo: a("s_branch L_wo_none")
    for k in range(wo_lead): wo1(k)
    a(f"s_waitcnt vmcnt({16 + wo_lead})")
    a(f"ds_write_b32 v10, v46 offset:{C_FILL}")
    a(f"s_waitcnt vmcnt({wo_lead})")
    a(f"ds_write_b32 v10, v47 offset:{C_FILL}")
    stamp(3)
    a(f"s_mov_b32 s50, {(64 - wo_lead)//4}")
    a("L_wo:")
    for q in range(4): wo1(q)
    a("s_sub_u32 s50, s50, 1"); a("s_cmp_lg_u32 s50, 0"); a("s_cbranch_scc1 L_wo")
    a("s_branch L_wo_fin")
    a("L_wo_none:")
    a("s_waitcnt vmcnt(16)")
    a(f"ds_write_b32 v10, v46 offset:{C_FILL}")
    a("s_waitcnt vmcnt(0)")
    a(f"ds_write_b32 v10, v47 offset:{C_FILL}")
    stamp(3)
    a("L_wo_fin:")
    a("v_mov_b32 v46, 34")
    a("s_waitcnt vmcnt(0)")
    a(f"ds_write_b32 v10, v46 offset:{C_FILL}")
    stamp(2)
    if diag:
        a("s_lshl_b32 s60, s2, 8"); a(f"s_add_u32 s60, s60, {W_DIAG + 0x80000}"); a("v_lshl_add_u32 v61, v0, 2, s60")
        a("global_store_dword v61, v60, s[30:31]")
    dump_stamps(4)
    a("s_endpgm")
    a("L_ld_np:")
    a("s_cmp_eq_u32 s35, 4"); a("s_cbranch_scc0 L_ld_kv")
    a("s_mul_i32 s55, s34, 9363"); a("s_lshr_b32 s55, s55, 16"); a("s_mul_i32 s56, s55, 7"); a("s_sub_u32 s56, s34, s56")
    a(f"s_mul_i32 s48, s55, {128*896}"); a("s_lshl_b32 s56, s56, 7"); a("s_add_u32 s48, s48, s56")
    a("s_mov_b32 s36, s24"); a("s_mov_b32 s37, s25"); a("s_mov_b32 s38, 1605632"); a("s_movk_i32 s57, 896")
    a(f"s_mov_b32 m0, {F2B}"); a("s_mov_b32 s50, 8")
    a("s_branch L_ld_tile")
    def item_aux(c):
        a(f"L_item_early{c}:")
        a("s_cmp_eq_u32 s50, 1"); a(f"s_cbranch_scc0 L_item_go{c}")
        a("s_cmp_eq_u32 s58, 1"); a(f"s_cbranch_scc0 L_item_go{c}")
        a("s_barrier")
        a(f"s_branch L_item_go{c}")
        a(f"L_item_slow{c}:")
        budget()
        a(f"ds_read_b128 v[40:43], v10 offset:{C_CP}"); a(f"ds_read_b32 v44, v10 offset:{C_FP}")
        a(f"s_branch L_item_check{c}")
        a(f"L_item_tov{c}:")
        a("s_mov_b32 s40, s12"); a("s_mov_b32 s41, s13"); a("s_mov_b32 s52, s54")
        a("v_lshlrev_b32 v15, 1, v12"); a("v_xor_b32 v15, v15, v13")
        for p in range(8):
            f = 4 * (p & 1) + 8 * ((p >> 2) & 1)
            a(f"v_xor_b32 v{16+p}, {f}, v15")
            a(f"v_lshl_add_u32 v{16+p}, v{16+p}, 4, v14")
        a(f"s_branch L_item_check{c}")
    item_aux("A")
    if two:
        item_loop("B", winB)
        a("s_branch L_items_done")
        item_aux("B")

    def tile_tr_addr(dst, tau_sgpr_or_const, base):
        a("v_lshrrev_b32 v16, 2, v14"); a("v_lshl_add_u32 v16, v15, 3, v16"); a("v_lshlrev_b32 v16, 7, v16")
        a("v_and_b32 v17, 1, v14"); a("v_lshl_add_u32 v16, v17, 3, v16")
        a("v_and_b32 v17, 1, v15"); a("v_lshrrev_b32 v18, 3, v14"); a("v_lshl_add_u32 v17, v17, 1, v18"); a("v_lshlrev_b32 v17, 1, v17")
        a("v_bfe_u32 v18, v14, 1, 1"); a("v_xor_b32 v17, v17, v18")
        if tau_sgpr_or_const is not None:
            a(f"s_lshl_b32 s50, {tau_sgpr_or_const}, 1"); a("v_xor_b32 v17, s50, v17")
        a(f"v_lshl_add_u32 {dst}, v17, 4, v16")
        if base: a(f"v_add_u32 {dst}, {base}, {dst}")
    a("L_C:")
    a("v_and_b32 v14, 15, v0")
    a("v_lshrrev_b32 v15, 4, v0")
    a("s_lshl_b32 s50, s3, 2"); a("v_add_u32 v12, s50, v10")
    a("v_mov_b32 v13, 1")
    a("v_mov_b32 v81, s33"); a("v_mov_b32 v83, s33")
    a("s_sub_u32 s50, s35, 1"); a("s_cmp_ge_u32 s50, 3"); a("s_cbranch_scc1 L_C_noproj")
    tile_tr_addr("v38", "s3", BIGW)
    a("v_and_b32 v17, 3, v14"); a("s_movk_i32 s50, 896"); a("v_mul_u32_u24 v16, s50, v17"); a("v_lshl_add_u32 v39, v15, 4, v16"); a(f"v_add_u32 v39, {XN}, v39")
    a("s_lshl_b32 s50, s49, 4")
    a("s_lshr_b32 s51, s49, 1"); a("s_lshl_b32 s51, s51, 1"); a("s_add_u32 s51, s51, s35"); a("s_sub_u32 s51, s51, 2"); a("s_lshl_b32 s51, s51, 7")
    a("s_and_b32 s52, s49, 1"); a("s_lshl_b32 s52, s52, 4"); a("s_add_u32 s51, s51, s52"); a(f"s_add_u32 s51, s51, {W_GU//16}")
    a(f"s_add_u32 s50, s50, {W_QG//16}")
    a("s_cmp_eq_u32 s35, 1"); a("s_cselect_b32 s50, s50, s51"); a("s_cselect_b32 s51, 1024, 32")
    a("s_lshl_b32 s52, s3, 2"); a("s_add_u32 s50, s50, s52")
    a("v_mad_u32_u24 v16, v14, s51, v15"); a("v_add_u32 v16, s50, v16"); a("v_lshlrev_b32 v37, 4, v16")
    a("s_waitcnt vmcnt(0)")
    stamp(1)
    for i in range(4):
        a(f"v_lshlrev_b32 v{16+2*i}, 16, v{4+i}"); a(f"v_and_b32 v{17+2*i}, 0xffff0000, v{4+i}")
    a("v_add_f32 v24, v16, v17"); a("v_add_f32 v25, v18, v19"); a("v_add_f32 v26, v20, v21"); a("v_add_f32 v27, v22, v23")
    a("v_add_f32 v24, v24, v25"); a("v_add_f32 v26, v26, v27"); a("v_add_f32 v24, v24, v26")
    red16("v_add_f32", "v24"); swapred("v_add_f32", "v24", "v25", 16); swapred("v_add_f32", "v24", "v25", 32)
    a(f"v_mul_f32 v24, {hex(f2u(1.0/448))}, v24")
    a("v_mov_b32 v26, 0")
    a("s_mov_b32 exec_hi, 0x00ffffff")
    for i in range(8): a(f"v_sub_f32 v{28+i}, v{16+i}, v24")
    for i in range(8): a(f"v_fmac_f32 v26, v{28+i}, v{28+i}")
    a("s_mov_b32 exec_hi, -1")
    rbf("v25", "v24")
    red16("v_add_f32", "v26"); swapred("v_add_f32", "v26", "v27", 16); swapred("v_add_f32", "v26", "v27", 32)
    a(f"v_mul_f32 v26, {hex(f2u(1.0/448))}, v26")
    rbf("v26", "v26")
    a(f"v_add_f32 v26, {hex(f2u(1e-5))}, v26")
    rbf("v26", "v26")
    a("v_sqrt_f32 v26, v26")
    for i in range(8): a(f"v_sub_f32 v{28+i}, v{16+i}, v25")
    rbf("v26", "v26")
    a("v_rcp_f32 v26, v26")
    for i in range(4): a(f"v_cvt_pk_bf16_f32 v{16+i}, v{28+2*i}, v{29+2*i}")
    for i in range(4):
        a(f"v_lshlrev_b32 v{28+2*i}, 16, v{16+i}"); a(f"v_and_b32 v{29+2*i}, 0xffff0000, v{16+i}")
    for i in range(8): a(f"v_mul_f32 v{28+i}, v{28+i}, v26")
    for i in range(4): a(f"v_cvt_pk_bf16_f32 v{16+i}, v{28+2*i}, v{29+2*i}")
    a(f"v_add_u32 v11, {XN}, v11")
    a("s_mov_b32 exec_hi, 0x00ffffff")
    a("ds_write_b128 v11, v[16:19]")
    a("s_mov_b32 exec_hi, -1")
    a(f"ds_write_b32 v12, v13 offset:{C_XNF}")
    spin_all4(40, "v10", C_XNF, sleep=0)
    for s in range(14): a(f"ds_read_b128 v[{84+4*s}:{87+4*s}], v39 offset:{64*s}")
    stamp(2)
    spin_ge("v16", "v10", C_FILL, 1, sleep=0)
    for s in range(14):
        a(f"ds_read_b64_tr_b16 v[{140+4*s}:{141+4*s}], v38 offset:{4096*s}")
        a(f"ds_read_b64_tr_b16 v[{142+4*s}:{143+4*s}], v38 offset:{4096*s+512}")
    for s in range(14):
        n = 26 - 2 * s
        if n <= 15 and (s % 2 == 0 or s == 13): a(f"s_waitcnt lgkmcnt({max(0, n-2) if s != 13 else 0})")
        elif s == 0: a("s_waitcnt lgkmcnt(14)")
        c = "0" if s == 0 else "v[48:51]"
        a(f"v_mfma_f32_16x16x32_bf16 v[48:51], v[{140+4*s}:{143+4*s}], v[{84+4*s}:{87+4*s}], {c}")
    a("s_add_u32 s50, s3, 4"); a("v_mov_b32 v16, s50"); a(f"ds_write_b32 v12, v16 offset:{C_CP}")
    a("s_mov_b32 s50, 0x000f000f")
    a("v_cvt_pk_bf16_f32 v80, v48, v49"); a("v_cvt_pk_bf16_f32 v82, v50, v51")
    a("s_mov_b32 exec_lo, s50"); a("s_mov_b32 exec_hi, s50")
    a("global_store_dwordx4 v37, v[80:83], s[30:31] sc1")
    a("s_mov_b64 exec, -1")
    a("L_C_noproj:")
    stamp(3)
    a("v_xor_b32 v16, v15, v14")
    a("v_lshlrev_b32 v17, 9, v14")
    for s in range(4):
        if s: a(f"v_xor_b32 v{20+s}, {4*s}, v16")
        else: a("v_mov_b32 v20, v16")
        a(f"v_lshl_add_u32 v{20+s}, v{20+s}, 4, v17")
    a("v_lshrrev_b32 v16, 2, v14")
    a("v_lshl_add_u32 v17, v15, 3, v16")
    a("v_lshlrev_b32 v17, 9, v17")
    a("v_and_b32 v18, 1, v14"); a("v_lshl_add_u32 v17, v18, 3, v17")
    a("v_and_b32 v18, 1, v15"); a("v_lshl_add_u32 v18, v18, 2, v16"); a("v_lshlrev_b32 v18, 1, v18")
    a("v_bfe_u32 v19, v14, 1, 1")
    a("s_lshl_b32 s50, s3, 3"); a("v_add_u32 v19, s50, v19")
    a("v_xor_b32 v18, v18, v19")
    for tt in range(4):
        if tt: a(f"v_xor_b32 v{24+tt}, {2*tt}, v18")
        else: a("v_mov_b32 v24, v18")
        a(f"v_lshl_add_u32 v{24+tt}, v{24+tt}, 4, v17")
    a("v_and_b32 v16, 1, v0")
    a("v_lshlrev_b32 v17, 4, v15")
    a("v_lshl_add_u32 v28, v16, 9, v17"); a(f"v_add_u32 v28, {QI}, v28")
    a("v_lshl_add_u32 v29, v16, 10, v17"); a(f"v_add_u32 v29, {PB}, v29")
    a("v_lshrrev_b32 v16, 5, v0"); a("v_and_b32 v17, 31, v0"); a("s_lshl_b32 s50, s3, 5"); a("v_add_u32 v17, s50, v17")
    a("v_lshlrev_b32 v17, 1, v17"); a("v_lshl_add_u32 v30, v16, 10, v17"); a(f"v_add_u32 v30, {PB}, v30")
    a("v_lshl_add_u32 v31, v16, 4, v10")
    a("v_lshl_add_u32 v33, v16, 2, v10")
    a("s_lshl_b32 s50, s3, 2"); a("v_add_u32 v32, s50, v31")
    tile_tr_addr("v34", "s3", WOB)
    a("s_mov_b32 s44, 0xffff0000"); a("s_mov_b32 s45, 0xffff0000")
    a("s_mov_b32 s46, 0"); a("s_mov_b32 s47, -1")
    a("s_lshl_b32 s50, s6, 3"); a("s_add_u32 s50, s50, s4"); a("s_lshl_b32 s50, s50, 15"); a("s_lshl_b32 s51, s3, 10"); a("s_add_u32 s50, s50, s51"); a(f"s_add_u32 s50, s50, {W_H1}")
    a("v_add_u32 v16, s50, v9")
    a("s_lshl_b32 s51, s7, 12"); a("v_add_u32 v35, s51, v16")
    for i in range(1, 8):
        a(f"s_add_u32 s51, s7, {i}"); a("s_and_b32 s51, s51, 7"); a("s_lshl_b32 s51, s51, 12"); a(f"v_add_u32 v{247+i}, s51, v16")
    a("v_lshrrev_b32 v16, 5, v0"); a("v_lshlrev_b32 v16, 8, v16"); a("v_and_b32 v17, 1, v15"); a("v_lshl_add_u32 v16, v17, 5, v16"); a("v_add_u32 v16, v16, v14")
    a("s_lshl_b32 s50, s3, 6"); a("v_add_u32 v16, s50, v16"); a("v_lshlrev_b32 v16, 1, v16"); a(f"v_add_u32 v38, {OI}, v16")
    a("v_lshlrev_b32 v36, 4, v15"); a(f"v_add_u32 v36, {OI}, v36")
    a("s_mul_i32 s50, s6, 28"); a("s_lshl_b32 s51, s7, 2"); a("s_add_u32 s50, s50, s51"); a("s_add_u32 s50, s50, s3"); a("s_lshl_b32 s50, s50, 3"); a("s_add_u32 s50, s50, s4")
    a("s_lshl_b32 s50, s50, 7"); a(f"s_add_u32 s50, s50, {W_H2}"); a("v_add_u32 v37, s50, v9")
    a("s_mov_b32 s44, 0xffff0000"); a("s_mov_b32 s45, 0xffff0000")
    a("s_mov_b32 s46, 0"); a("s_mov_b32 s47, -1")
    spin_ge("v16", "v10", C_QRDY, 1)
    stamp(4)
    for s in range(8): a(f"ds_read_b128 v[{64+4*s if s < 4 else 84+4*(s-4)}:{(64+4*s if s < 4 else 84+4*(s-4))+3}], v28 offset:{64*s}")
    qreg = lambda s: 64 + 4 * s if s < 4 else 84 + 4 * (s - 4)
    a("s_mov_b32 s50, s3")
    a("L_kitem:")
    a("s_add_u32 s51, s50, 2")
    a("s_sub_u32 s52, s50, 9"); a("s_cmp_ge_u32 s50, 9"); a("s_cselect_b32 s52, s52, s50")
    a("s_lshl_b32 s52, s52, 14")
    for s in range(4): a(f"v_add_u32 v{40+s}, s52, v{20+s}")
    spin_ge("v16", "v10", C_FILL, "s51")
    for s in range(8):
        for tl in range(2):
            a(f"ds_read_b128 v[{100+8*s+4*tl}:{103+8*s+4*tl}], v{40+(s&3)} offset:{(s>>2)*256 + tl*8192}")
    a("s_add_u32 s51, s50, 4"); a("s_min_u32 s51, s51, 16"); a("s_add_u32 s51, s51, 4")
    a("v_mov_b32 v16, s51")
    a(f"ds_write_b32 v12, v16 offset:{C_CP}")
    a("v_mov_b32 v63, v62"); a("v_mov_b32 v62, v61"); a("v_mov_b32 v61, v60")
    for s in range(8):
        if s % 2 == 0: a(f"s_waitcnt lgkmcnt({13 - 2*s})")
        for tl in range(2):
            c = "0" if s == 0 else f"v[{48+4*tl}:{51+4*tl}]"
            a(f"v_mfma_f32_16x16x32_bf16 v[{48+4*tl}:{51+4*tl}], v[{qreg(s)}:{qreg(s)+3}], v[{100+8*s+4*tl}:{103+8*s+4*tl}], {c}")
    a("v_cndmask_b32 v16, v48, v52, s[44:45]"); a("v_cndmask_b32 v17, v49, v53, s[44:45]"); a("v_cndmask_b32 v16, v16, v17, s[46:47]")
    rbf("v60", "v16")
    a("s_add_u32 s50, s50, 4"); a("s_cmp_lt_u32 s50, 16"); a("s_cbranch_scc1 L_kitem")
    stamp(5)
    a("v_max_f32 v16, v60, v61"); a("v_max3_f32 v16, v16, v62, v63")
    red16("v_max_f32", "v16"); swapred("v_max_f32", "v16", "v17", 16)
    a(f"ds_write_b32 v32, v16 offset:{C_MX}")
    a(f"ds_write_b32 v12, v13 offset:{C_MXF}")
    spin_all4(40, "v10", C_MXF, sleep=0)
    a(f"ds_read_b128 v[40:43], v31 offset:{C_MX}")
    a("s_waitcnt lgkmcnt(0)")
    a("v_max_f32 v16, v40, v41"); a("v_max3_f32 v16, v16, v42, v43")
    a(f"s_mov_b32 s50, {hex(f2u(CEXP))}")
    for i in range(4): a(f"v_sub_f32 v{60+i}, v{60+i}, v16")
    for i in range(4): a(f"v_mul_f32 v{60+i}, s50, v{60+i}")
    for i in range(4): a(f"v_exp_f32 v{60+i}, v{60+i}")
    a("v_add_f32 v17, v60, v61"); a("v_add_f32 v18, v62, v63"); a("v_add_f32 v17, v17, v18")
    a("v_cvt_pk_bf16_f32 v40, v63, v62"); a("v_cvt_pk_bf16_f32 v41, v61, v60")
    a("ds_write_b16 v30, v40 offset:0"); a("ds_write_b16_d16_hi v30, v40 offset:256")
    a("ds_write_b16 v30, v41 offset:512"); a("ds_write_b16_d16_hi v30, v41 offset:768")
    red16("v_add_f32", "v17"); swapred("v_add_f32", "v17", "v18", 16)
    a(f"ds_write_b32 v32, v17 offset:{C_LS}")
    a(f"ds_write_b32 v12, v13 offset:{C_PF}")
    for i in range(16): a(f"v_mov_b32 v{64+i}, 0")
    spin_all4(40, "v10", C_PF, sleep=0)
    stamp(6)
    a("s_mov_b32 s50, 0")
    a(f"s_mov_b32 s52, {RING + (16 % NS) * SLOT}")
    a("L_vitem:")
    a("ds_read_b128 v[44:47], v29")
    a("v_add_u32 v29, 64, v29")
    for tt in range(4): a(f"v_add_u32 v{40+tt}, s52, v{24+tt}")
    a("s_add_u32 s51, s50, 18")
    spin_ge("v16", "v10", C_FILL, "s51", sleep=kvsleep)
    for tt in range(4):
        a(f"ds_read_b64_tr_b16 v[{96+4*tt}:{97+4*tt}], v{40+tt}")
        a(f"ds_read_b64_tr_b16 v[{98+4*tt}:{99+4*tt}], v{40+tt} offset:2048")
    a("s_add_u32 s51, s50, 21"); a("v_mov_b32 v16, s51")
    a(f"ds_write_b32 v12, v16 offset:{C_CP}")
    a(f"s_add_u32 s52, s52, {SLOT}"); a(f"s_cmp_eq_u32 s52, {RING_END}"); a(f"s_cselect_b32 s52, {RING}, s52")
    for tt in range(4):
        a(f"s_waitcnt lgkmcnt({7-2*tt})")
        a(f"v_mfma_f32_16x16x32_bf16 v[{64+4*tt}:{67+4*tt}], v[44:47], v[{96+4*tt}:{99+4*tt}], v[{64+4*tt}:{67+4*tt}]")
    a("s_add_u32 s50, s50, 1"); a("s_cmp_lt_u32 s50, 15"); a("s_cbranch_scc1 L_vitem")
    a("s_cmp_eq_u32 s50, 16"); a("s_cbranch_scc1 L_vdone")
    spin_ge("v16", "v10", C_FACF, 1, sleep=0)
    a(f"ds_read_b32 v39, v33 offset:{C_FAC}"); a(f"ds_read_b32 v16, v10 offset:{C_LOC}")
    H1L = [(120 + 4 * i, f"v{248+i}", 0) for i in range(7)]
    a("s_cmp_eq_u32 s7, 7"); a("s_cbranch_scc1 L_nofirst")
    if not notail:
        for (d, va, off) in H1L: a(f"global_load_dwordx4 v[{d}:{d+3}], {va}, s[30:31] sc1")
    a("L_nofirst:")
    a("s_waitcnt lgkmcnt(0)"); a("v_readfirstlane_b32 s57, v16")
    a("s_branch L_vitem")
    a("L_vdone:")
    stamp(7)
    if notail: dump_stamps(11); a("s_endpgm")
    a("v_cndmask_b32 v16, v64, v72, s[44:45]"); a("v_cndmask_b32 v17, v65, v73, s[44:45]")
    a("v_cndmask_b32 v18, v68, v76, s[44:45]"); a("v_cndmask_b32 v19, v69, v77, s[44:45]")
    a("v_cndmask_b32 v16, v16, v17, s[46:47]"); a("v_cndmask_b32 v18, v18, v19, s[46:47]")
    a("s_cmp_eq_u32 s57, 1")
    a("v_mul_f32 v80, v16, v39"); a("v_mul_f32 v82, v18, v39")
    a("s_cbranch_scc0 L_st_far")
    a("global_store_dwordx4 v35, v[80:83], s[30:31]")
    a("L_st_done:")
    stamp(8)
    a("s_cmp_eq_u32 s7, 7"); a("s_cbranch_scc1 L_c_exit")
    a("s_mov_b32 s56, 0")
    a("s_waitcnt vmcnt(1)")
    a("s_branch L_h1_chk")
    a("L_h1_retry:")
    if h1sleep: a(f"s_sleep {h1sleep}")
    for i, (d, va, off) in enumerate(H1L):
        a(f"s_mov_b64 exec, s[{68+2*i}:{69+2*i}]"); a(f"s_cbranch_execz L_h1_sk{i}")
        a(f"global_load_dwordx4 v[{d}:{d+3}], {va}, s[30:31] sc1")
        a(f"L_h1_sk{i}:")
    a("s_mov_b64 exec, -1")
    budget()
    def wo_reads():
        for s in range(16):
            r = 150 + 4 * s
            a(f"ds_read_b64_tr_b16 v[{r}:{r+1}], v34 offset:{4096*s}")
            a(f"ds_read_b64_tr_b16 v[{r+2}:{r+3}], v34 offset:{4096*s+512}")
    a("s_cmp_lg_u32 s56, 0"); a("s_cbranch_scc1 L_h1_wait")
    a(f"ds_read_b32 v16, v10 offset:{C_FILL}"); a("s_waitcnt lgkmcnt(0)"); a("v_readfirstlane_b32 s59, v16")
    a("s_cmp_ge_u32 s59, 34"); a("s_cbranch_scc0 L_h1_wait")
    wo_reads()
    a("s_mov_b32 s56, 1")
    a("L_h1_wait:")
    a("s_waitcnt vmcnt(0)")
    a("L_h1_chk:")
    for i, (d, va, off) in enumerate(H1L): a(f"v_xor_b32 v{96+i}, s33, v{d+1}")
    for i, (d, va, off) in enumerate(H1L): a(f"v_bitop3_b32 v{96+i}, v{d+3}, s33, v{96+i} bitop3:0xbe")
    for i, (d, va, off) in enumerate(H1L): a(f"v_cmp_ne_u32 s[{68+2*i}:{69+2*i}], 0, v{96+i}")
    a("s_or_b64 vcc, s[68:69], s[70:71]"); a("s_or_b64 s[82:83], s[72:73], s[74:75]"); a("s_or_b64 s[84:85], s[76:77], s[78:79]")
    a("s_or_b64 vcc, vcc, s[80:81]"); a("s_or_b64 s[82:83], s[82:83], s[84:85]"); a("s_or_b64 vcc, vcc, s[82:83]")
    a("s_cbranch_scc1 L_h1_retry")
    stamp(9)
    a("v_add_f32 v80, v80, v120"); a("v_add_f32 v82, v82, v122")
    a("v_add_f32 v124, v124, v128"); a("v_add_f32 v126, v126, v130")
    a("v_add_f32 v132, v132, v136"); a("v_add_f32 v134, v134, v138")
    a("v_add_f32 v140, v140, v144"); a("v_add_f32 v142, v142, v146")
    a("v_add_f32 v80, v80, v124"); a("v_add_f32 v82, v82, v126")
    a("v_add_f32 v132, v132, v140"); a("v_add_f32 v134, v134, v142")
    a("v_add_f32 v80, v80, v132"); a("v_add_f32 v82, v82, v134")
    a("v_cvt_pk_bf16_f32 v16, v80, v82")
    a("ds_write_b16 v38, v16"); a("ds_write_b16_d16_hi v38, v16 offset:32")
    a(f"ds_write_b32 v12, v13 offset:{C_OF}")
    a("s_cmp_lg_u32 s56, 0"); a("s_cbranch_scc1 L_wo_have")
    spin_ge("v16", "v10", C_FILL, 34, sleep=0)
    wo_reads()
    a("L_wo_have:")
    spin_all4(40, "v10", C_OF, sleep=0)
    for s in range(16): a(f"ds_read_b128 v[{84+4*s if s < 16 else 0}:{87+4*s}], v36 offset:{64*s}")
    for s in range(16):
        if s % 4 == 0: a(f"s_waitcnt lgkmcnt({12 - s})")
        acc = 48 + 4 * (s & 1)
        c = "0" if s < 2 else f"v[{acc}:{acc+3}]"
        a(f"v_mfma_f32_16x16x32_bf16 v[{acc}:{acc+3}], v[{84+4*s}:{87+4*s}], v[{150+4*s}:{153+4*s}], {c}")
    a("v_add_f32 v80, v48, v52")
    a(f"v_mov_b32_dpp v82, v80 row_ror:8 {DPPF}")
    a("s_mov_b64 exec, 0xff")
    a("global_store_dwordx4 v37, v[80:83], s[30:31] sc1")
    a("L_c_exit:")
    stamp(10)
    dump_stamps(11)
    a("s_endpgm")
    a("L_st_far:")
    a("global_store_dwordx4 v35, v[80:83], s[30:31] sc1")
    a("s_branch L_st_done")

    a("L_Q:")
    a("v_and_b32 v14, 15, v0")
    a("s_lshl_b32 s50, s6, 10"); a("s_lshl_b32 s51, s4, 7"); a("s_add_u32 s50, s50, s51"); a("s_lshl_b32 s50, s50, 4"); a(f"s_add_u32 s50, s50, {W_QG}")
    a("v_add_u32 v25, s50, v9")
    a("v_lshlrev_b32 v26, 3, v0"); a(f"v_add_u32 v26, {QI}, v26")
    a("v_mov_b32 v41, s33"); a("v_mov_b32 v43, s33")
    spin_ge("v16", "v10", C_FILL, qpoll_fill, sleep=1)
    stamp(1)
    if noq: pass
    elif not qpipe:
        mpoll([(48, "v25", 0), (52, "v25", 1024)], "q", 16, sleep=qsleep)
    else:
        def qload(d):
            a(f"global_load_dwordx4 v[{d}:{d+3}], v25, s[30:31] sc1")
            a(f"global_load_dwordx4 v[{d+4}:{d+7}], v25, s[30:31] offset:1024 sc1")
        qload(48)
        a(f"s_sleep {qpipe}")
        a("L_qp_a:")
        qload(56)
        a("s_waitcnt vmcnt(2)")
        tagcheck(["v49", "v51", "v53", "v55"], "v16", "v17", "L_qp_b")
        a("s_branch L_qp_done")
        a("L_qp_b:")
        qload(48)
        budget()
        a("s_waitcnt vmcnt(2)")
        tagcheck(["v57", "v59", "v61", "v63"], "v16", "v17", "L_qp_a")
        a("ds_write2_b32 v26, v56, v58 offset0:0 offset1:1")
        a("ds_write2_b32 v26, v60, v62 offset0:128 offset1:129")
        a("s_branch L_qp_done2")
        a("L_qp_done:")
    a("ds_write2_b32 v26, v48, v50 offset0:0 offset1:1")
    a("ds_write2_b32 v26, v52, v54 offset0:128 offset1:129")
    if qpipe and not noq: a("L_qp_done2:")
    a("v_mov_b32 v16, 1"); a(f"ds_write_b32 v10, v16 offset:{C_QRDY}")
    stamp(2)
    a("s_lshl_b32 s50, s6, 3"); a("s_add_u32 s50, s50, s4"); a("s_lshl_b32 s50, s50, 8"); a(f"s_add_u32 s50, s50, {W_MLG}")
    a("v_lshlrev_b32 v16, 4, v14"); a("v_add_u32 v25, s50, v16")
    a("s_lshl_b32 s51, s7, 5"); a("s_add_u32 s50, s50, s51")
    a("v_and_b32 v17, 1, v0"); a("v_lshlrev_b32 v16, 4, v17"); a("v_add_u32 v24, s50, v16")
    a("v_add_u32 v27, v16, v10")
    a("v_lshl_add_u32 v28, v17, 2, v10")
    a("s_getreg_b32 s52, hwreg(HW_REG_XCC_ID, 0, 4)")
    a("s_xor_b32 s53, s52, s33"); a("v_mov_b32 v41, s53")
    a("s_waitcnt vmcnt(0)")
    spin_all4(44, "v10", C_PF, sleep=4)
    a(f"ds_read_b128 v[44:47], v27 offset:{C_MX}"); a(f"ds_read_b128 v[48:51], v27 offset:{C_LS}")
    a("s_waitcnt lgkmcnt(0)")
    a("v_max_f32 v40, v44, v45"); a("v_max3_f32 v40, v40, v46, v47")
    a("v_add_f32 v48, v48, v49"); a("v_add_f32 v50, v50, v51"); a("v_add_f32 v42, v48, v50")
    a("s_mov_b64 exec, 3")
    a("global_store_dwordx4 v24, v[40:43], s[30:31] sc1")
    a("s_mov_b64 exec, -1")
    stamp(3)
    spin_ge("v16", "v10", C_FILL, ml_fill, sleep=8)
    a("L_ml_retry:")
    a("global_load_dwordx4 v[48:51], v25, s[30:31] sc1")
    budget()
    a("s_waitcnt vmcnt(0)")
    a("v_xor_b32 v16, s33, v49"); a("v_lshrrev_b32 v17, 4, v16"); a("v_bitop3_b32 v17, v51, s33, v17 bitop3:0xbe")
    a("v_cmp_ne_u32 vcc, 0, v17"); a("s_cbranch_vccnz L_ml_retry")
    a("v_cmp_ne_u32 vcc, s52, v16")
    a(f"s_mov_b32 s50, {hex(f2u(CEXP))}")
    a("v_mov_b32 v44, v48")
    a("s_cmp_eq_u64 vcc, 0"); a(f"s_cselect_b32 s54, {0 if forcesc1 else 1}, 0")
    for m in ("quad_perm:[2,3,0,1]", "row_ror:4", "row_ror:8"): a(f"v_max_f32_dpp v44, v44, v44 {m} {DPPF}")
    a("v_sub_f32 v45, v48, v44"); a("v_sub_f32 v46, v40, v44")
    a("v_mul_f32 v45, s50, v45"); a("v_mul_f32 v46, s50, v46")
    a("v_exp_f32 v45, v45"); a("v_exp_f32 v46, v46")
    a("v_mul_f32 v45, v45, v50")
    for m in ("quad_perm:[2,3,0,1]", "row_ror:4", "row_ror:8"): a(f"v_add_f32_dpp v45, v45, v45 {m} {DPPF}")
    a("v_rcp_f32 v45, v45")
    a("v_mov_b32 v17, s54")
    a("v_mul_f32 v46, v46, v45")
    a(f"ds_write_b32 v28, v46 offset:{C_FAC}")
    a(f"ds_write_b32 v10, v17 offset:{C_LOC}")
    a("v_mov_b32 v16, 1"); a(f"ds_write_b32 v10, v16 offset:{C_FACF}")
    stamp(4)
    dump_stamps(7)
    a("s_endpgm")

    a("L_F:")
    a("s_cmp_eq_u32 s35, 4"); a("s_cbranch_scc0 L_end")
    a("v_and_b32 v14, 15, v0"); a("v_lshrrev_b32 v15, 4, v0")
    tile_tr_addr("v20", None, F2B)
    for tau in range(1, 4): a(f"v_xor_b32 v{20+tau}, {32*tau}, v20")
    a("s_mul_i32 s50, s34, 9363"); a("s_lshr_b32 s50, s50, 16"); a("s_mul_i32 s51, s50, 7"); a("s_sub_u32 s51, s34, s51")
    a("s_lshl_b32 s52, s50, 12"); a(f"s_add_u32 s52, s52, {W_GU}"); a("v_add_u32 v25, s52, v9")
    a("s_mul_i32 s52, s50, 28"); a("s_add_u32 s52, s52, s51"); a("s_lshl_b32 s52, s52, 9"); a(f"s_add_u32 s52, s52, {W_OG}")
    a("v_and_b32 v17, 3, v14"); a("v_lshrrev_b32 v18, 2, v14"); a("v_lshlrev_b32 v18, 6, v18"); a("v_lshl_add_u32 v18, v15, 4, v18")
    a(f"s_movk_i32 s51, {7*512}"); a("v_mad_u32_u24 v16, v17, s51, v18"); a("v_add_u32 v24, s52, v16")
    a("v_lshlrev_b32 v26, 3, v0"); a(f"v_add_u32 v26, {HA}, v26")
    a("v_lshlrev_b32 v16, 8, v17"); a("v_lshl_add_u32 v27, v15, 4, v16"); a(f"v_add_u32 v27, {HA}, v27")
    a("s_mov_b32 s44, 0xf0f0f0f0"); a("s_mov_b32 s45, 0xf0f0f0f0"); a("s_mov_b32 s46, 0xff00ff00"); a("s_mov_b32 s47, 0xff00ff00")
    spin_ge("v16", "v10", C_FILL, 1, sleep=2)
    for s in range(4):
        for tau in range(4):
            r = 128 + (s * 4 + tau) * 4
            a(f"ds_read_b64_tr_b16 v[{r}:{r+1}], v{20+tau} offset:{4096*s}")
            a(f"ds_read_b64_tr_b16 v[{r+2}:{r+3}], v{20+tau} offset:{4096*s+512}")
    a(f"v_mov_b32 v16, {BIG}"); a("s_waitcnt lgkmcnt(0)"); a(f"ds_write_b32 v10, v16 offset:{C_FP}")
    stamp(1)
    if noffn: a("s_endpgm")
    if gu_fill is None: spin_ge("v16", "v10", C_QRDY, 1, sleep=4)
    else: spin_ge("v16", "v10", C_FILL, gu_fill, sleep=8)
    a("L_h_retry:")
    for i in range(4): a(f"global_load_dwordx4 v[{64+4*i}:{67+4*i}], v25, s[30:31] offset:{1024*i} sc1")
    budget()
    a("s_waitcnt vmcnt(0)")
    tagcheck([f"v{65+2*i}" for i in range(8)], "v16", "v17", "L_h_retry")
    stamp(2)
    for k in range(4):
        a(f"v_lshlrev_b32 v{84+2*k}, 16, v{64+2*k}"); a(f"v_and_b32 v{85+2*k}, 0xffff0000, v{64+2*k}")
        a(f"v_lshlrev_b32 v{92+2*k}, 16, v{72+2*k}"); a(f"v_and_b32 v{93+2*k}, 0xffff0000, v{72+2*k}")
    a(f"s_mov_b32 s50, {hex(f2u(-LOG2E))}")
    for i in range(8): a(f"v_mul_f32 v{100+i}, s50, v{84+i}")
    for i in range(8): a(f"v_exp_f32 v{100+i}, v{100+i}")
    for i in range(8): a(f"v_add_f32 v{100+i}, 1.0, v{100+i}")
    for i in range(8): a(f"v_rcp_f32 v{100+i}, v{100+i}")
    for i in range(8): a(f"v_mul_f32 v{100+i}, v{100+i}, v{84+i}")
    for i in range(8): rbf(f"v{100+i}", f"v{100+i}")
    for i in range(8): a(f"v_mul_f32 v{100+i}, v{100+i}, v{92+i}")
    for k in range(4): a(f"v_cvt_pk_bf16_f32 v{108+k}, v{100+2*k}, v{101+2*k}")
    a("ds_write_b64 v26, v[108:109]"); a("ds_write_b64 v26, v[110:111] offset:512")
    for s in range(4): a(f"ds_read_b128 v[{64+4*s}:{67+4*s}], v27 offset:{64*s}")
    a("s_waitcnt lgkmcnt(0)")
    for s in range(4):
        for tau in range(4):
            r = 128 + (s * 4 + tau) * 4
            c = "0" if s == 0 else f"v[{84+4*tau}:{87+4*tau}]"
            a(f"v_mfma_f32_16x16x32_bf16 v[{84+4*tau}:{87+4*tau}], v[{r}:{r+3}], v[{64+4*s}:{67+4*s}], {c}")
    for k in (41, 43, 45, 47): a(f"v_mov_b32 v{k}, s33")
    for r in range(4):
        a(f"v_cndmask_b32 v16, v{84+r}, v{88+r}, s[44:45]"); a(f"v_cndmask_b32 v17, v{92+r}, v{96+r}, s[44:45]")
        a(f"v_cndmask_b32 v{40+2*r}, v16, v17, s[46:47]")
    a("global_store_dwordx4 v24, v[40:43], s[30:31] sc1")
    a("global_store_dwordx4 v24, v[44:47], s[30:31] offset:256 sc1")
    stamp(3)
    dump_stamps(4)
    a("s_endpgm")

    a("L_R:")
    if prefetch_code:
        a("s_getpc_b64 s[48:49]")
        a("L_pc:")
        a(f"s_sub_u32 s48, s48, L_pc-{KNAME}_kernel"); a("s_subb_u32 s49, s49, 0")
        a("s_lshl_b32 s50, s5, 10"); a(f"s_cmp_lt_u32 s50, L_fail-{KNAME}_kernel-1024"); a("s_cbranch_scc0 L_nopf")
        a("v_add_u32 v16, s50, v9")
        a("global_load_dwordx4 v[20:23], v16, s[48:49]")
        a("L_nopf:")
    a("s_cmp_lg_u32 s2, 248"); a("s_cbranch_scc1 L_r_noe")
    a(f"v_add_u32 v28, {W_MLG}, v9"); a("v_add_u32 v29, 4096, v28")
    spin_ge("v16", "v10", C_FILL, e_fill, sleep=8)
    a("L_e_retry:")
    for i in range(8): a(f"global_load_dwordx4 v[{64+4*i}:{67+4*i}], {'v28' if i < 4 else 'v29'}, s[30:31] offset:{1024*(i&3)} sc1")
    budget()
    a("s_waitcnt vmcnt(0)")
    tagcheck([f"v{67+4*i}" for i in range(8)], "v16", "v17", "L_e_retry")
    a("s_mov_b64 exec, 1")
    a("v_mov_b32 v16, 0"); a("v_mov_b32 v17, s33")
    a("global_store_dword v16, v17, s[30:31]")
    a("s_mov_b64 exec, -1")
    a("L_r_noe:")
    a("s_sub_u32 s50, s2, 128"); a("s_cmp_ge_u32 s50, 112"); a("s_cbranch_scc1 L_r_exit")
    a("s_mul_i32 s51, s50, 2341"); a("s_lshr_b32 s51, s51, 16"); a("s_mul_i32 s52, s51, 28"); a("s_sub_u32 s52, s50, s52")
    a("s_mul_i32 s53, s51, 448"); a("s_lshl_b32 s54, s52, 4"); a("s_add_u32 s53, s53, s54")
    a("v_lshrrev_b32 v16, 5, v0"); a("v_and_b32 v17, 7, v0"); a("v_lshl_add_u32 v18, v16, 3, v17")
    a("v_add_u32 v19, s53, v18"); a("v_lshlrev_b32 v24, 1, v19")
    a("s_lshr_b32 s53, s52, 2"); a("s_mul_i32 s54, s51, 7"); a("s_add_u32 s53, s53, s54"); a("s_lshl_b32 s53, s53, 9")
    a("s_and_b32 s54, s52, 3"); a("s_lshl_b32 s54, s54, 6"); a("s_add_u32 s53, s53, s54"); a(f"s_add_u32 s53, s53, {W_OG}")
    a("v_bfe_u32 v19, v18, 1, 1"); a("v_lshlrev_b32 v19, 8, v19"); a("v_lshrrev_b32 v20, 2, v18"); a("v_lshl_add_u32 v19, v20, 4, v19")
    a("v_and_b32 v20, 1, v18"); a("v_lshl_add_u32 v19, v20, 3, v19"); a("v_add_u32 v19, s53, v19")
    a("v_bfe_u32 v21, v0, 3, 2"); a(f"s_movk_i32 s54, {28*512}")
    a("v_mad_u32_u24 v25, v21, s54, v19")
    a(f"v_add_u32 v27, {4*28*512}, v25"); a(f"v_add_u32 v28, {8*28*512}, v25")
    a("v_min_u32 v22, 1, v21"); a("v_add_u32 v22, 12, v22"); a("v_mad_u32_u24 v29, v22, s54, v19")
    a("v_cmp_gt_u32 s[44:45], 2, v21")
    a("s_lshl_b32 s56, s50, 10"); a(f"s_add_u32 s56, s56, {W_H2}"); a("v_add_u32 v26, s56, v9")
    spin_ge("v16", "v10", C_FILL, og_fill - 1, sleep=16)
    spin_ge("v16", "v10", C_FILL, og_fill, sleep=1)
    stamp(1)
    if notail: stamp(5); dump_stamps(6); a("s_endpgm")
    a("global_load_ushort v30, v24, s[8:9]")
    a("s_branch L_og_first")
    a("L_og_retry:")
    budget()
    a("s_waitcnt vmcnt(0)")
    a("L_og_first:")
    for k, va in enumerate(("v25", "v27", "v28", "v29")): a(f"global_load_dwordx2 v[{32+2*k}:{33+2*k}], {va}, s[30:31] sc1")
    def gate():
        a("s_waitcnt vmcnt(1)")
        tagcheck(["v33", "v35", "v37", "v39"], "v16", "v17", "L_og_retry")
        a("v_cndmask_b32 v38, 0, v38, s[44:45]"); a("v_add_f32 v32, v32, v34"); a("v_add_f32 v36, v36, v38"); a("v_add_f32 v32, v32, v36")
        a(f"v_add_f32_dpp v32, v32, v32 row_ror:8 {DPPF}")
        swapred("v_add_f32", "v32", "v33", 16)
        rbf("v32", "v32")
        a(f"v_mul_f32 v33, {hex(f2u(-LOG2E))}, v32"); a("v_exp_f32 v33, v33"); a("v_add_f32 v33, 1.0, v33"); a("v_rcp_f32 v33, v33")
        a("v_mul_f32 v32, v32, v33"); rbf("v32", "v32")
        a("v_lshlrev_b32 v30, 16, v30")
        stamp(2)
    mpoll([(48, "v26", 0)], "h2", 16, sleep=h2sleep, pre=gate)
    stamp(4)
    a("v_permlane32_swap_b32 v48, v50"); a("v_add_f32 v48, v48, v50")
    swapred("v_add_f32", "v48", "v50", 16)
    a(f"v_add_f32_dpp v48, v48, v48 row_ror:8 {DPPF}")
    rbf("v48", "v48")
    a("v_mul_f32 v48, v48, v32"); rbf("v48", "v48")
    a("v_add_f32 v48, v48, v30"); a("v_cvt_pk_bf16_f32 v48, v48, v48")
    a("s_mov_b32 exec_lo, 0xff"); a("s_mov_b32 exec_hi, 0xff")
    a("global_store_short v24, v48, s[26:27]")
    a("L_r_exit:")
    stamp(5)
    dump_stamps(6)
    a("L_end:")
    a("s_endpgm")
    a("L_fail:")
    a("s_mov_b64 exec, 1")
    a("s_lshl_b32 s60, s3, 2"); a("s_or_b32 s61, s2, 0xbad00000")
    a("v_mov_b32 v16, s60"); a("v_mov_b32 v17, s61")
    a("global_store_dword v16, v17, s[28:29]")
    a("s_endpgm")
    a.raw('.section .rodata,"a"'); a.raw(".p2align 6"); a.raw(f".amdhsa_kernel {KNAME}_kernel")
    a.raw("  .amdhsa_next_free_vgpr 256"); a.raw("  .amdhsa_next_free_sgpr 96"); a.raw("  .amdhsa_accum_offset 256")
    a.raw("  .amdhsa_group_segment_fixed_size 0"); a.raw("  .amdhsa_kernarg_size 96"); a.raw("  .amdhsa_user_sgpr_count 2")
    a.raw("  .amdhsa_user_sgpr_kernarg_segment_ptr 1"); a.raw("  .amdhsa_system_sgpr_workgroup_id_x 1"); a.raw(".end_amdhsa_kernel")
    return a.text()

STAMPS = {'C': 11, 'L': 4, 'Q': 7, 'F': 4, 'R': 6}
if __name__ == "__main__":
    import ast
    kw = {}
    for x in sys.argv[2:]:
        k, v = x.split("=", 1)
        try: kw[k] = ast.literal_eval(v)
        except Exception: kw[k] = v
    open(sys.argv[1], "w").write(gen(**kw))
```

```python
import sys, struct
from asmlib import Asm
KNAME = "recurrent_scan__gqa_block_cached__glu_gated_swiglu__decode"

SLOT = 16384; NS = 9
RING = 0; RING_END = RING + NS * SLOT; BIGW = 6 * SLOT; WOB = 5 * SLOT; F2B = 8 * SLOT
CTRL = BIGW + 57344; XN = CTRL + 256; QI = XN + 3584; PB = QI + 1024; HA = PB + 2048; OAI = HA + 1024; LDS_END = OAI + 128; OI = XN
assert LDS_END <= 163840
C_CP = 0; C_FP = 16; C_FILL = 32; C_XNF = 48; C_QRDY = 64; C_MXF = 80; C_PF = 96; C_FACF = 112
C_MX = 128; C_LS = 160; C_FAC = 192; C_TAIL = 208; C_OF = 224; C_WOF = 204; C_LOC = 200
OA = None
W_E = 0; W_QG = 0x1000; W_GU = 0x20000; W_OG = 0x40000; W_MLG = 0x80000; W_H1 = 0x100000; W_H2 = 0x200000; W_PG = 0x90000; W_GP = 0x91000; W_DIAG = 0x400000
BIG = 1000
DEFCLS = 'g'
CEXP = 0.09016844005556021
LOG2E = 1.4426950408889634
def f2u(f): return struct.unpack("<I", struct.pack("<f", f))[0]

def gen(diag=False, kvflags="nt", wflags="nt", woflags="", win=21, w0=28, prefetch_code=True, qpoll_fill=4, cls='g', kvsleep=0,
        notail=False, nowo=False, noffn=False, og_fill=32, gu_fill=10, h1sleep=2, h2sleep=2, qsleep=4, ml_fill=24, ml_rounds=4, forcesc1=False,
        wo_start=20, wo_per=6, wwo=26, mlplain=True, womode='L', wo_fill=32, wo_n1=0,
        catch=2, wboost=30, wwoboost=32, gcatch=False, gper=4):
    a = Asm()
    assert 17 <= win <= 32
    noq = False; qpipe = 0; warm = 0; rounds1 = rounds2 = None
    kvf = (" " + kvflags) if kvflags else ""
    wf = (" " + wflags) if wflags else ""
    wof = (" " + woflags) if woflags else ""
    hdr = open("cdna_kernels/" + KNAME + ".s.ref").read().split("; Override launch")[0]
    a.raw(hdr.rstrip())
    a.raw(f"; @launch grid=(256,1,1) block=(512,1,1) lds={LDS_END}")
    a.raw('.amdgcn_target "amdgcn-amd-amdhsa--gfx950"')
    a.raw(".text"); a.raw(f".globl {KNAME}_kernel"); a.raw(".p2align 8"); a.raw(f".type {KNAME}_kernel,@function"); a.raw(f"{KNAME}_kernel:")
    def stamp(i):
        if diag:
            a(f"s_memrealtime s[64:65]"); a("s_waitcnt lgkmcnt(0)"); a(f"v_writelane_b32 v247, s64, {2*i}"); a(f"v_writelane_b32 v247, s65, {2*i+1}")
    def dump_stamps(n):
        if diag:
            a("s_mov_b32 exec_lo, -1"); a("s_mov_b32 exec_hi, 0")
            a("s_lshl_b32 s60, s2, 3"); a("s_add_u32 s60, s60, s3"); a("s_lshl_b32 s60, s60, 7"); a(f"s_add_u32 s60, s60, {W_DIAG}")
            a("v_lshl_add_u32 v246, v0, 2, s60")
            a("global_store_dword v246, v247, s[30:31]")
    lbl = [0]
    def newlabel(p):
        lbl[0] += 1; return f"L_{p}_{lbl[0]}"
    def budget():
        a("s_sub_u32 s62, s62, 1"); a("s_cbranch_scc1 L_fail")
    def _spin_tail(L, Ld, sleep):
        a(f"s_cbranch_scc1 {Ld}")
        if sleep: a(f"s_sleep {sleep}")
        a("s_sub_u32 s62, s62, 1"); a(f"s_cbranch_scc0 {L}"); a("s_branch L_fail"); a(f"{Ld}:")
    def spin_ge(vtmp, vctl, off, sval, sleep=1):
        L = newlabel("spin"); Ld = newlabel("spind")
        a(f"{L}:")
        a(f"ds_read_b32 {vtmp}, {vctl} offset:{off}")
        a("s_waitcnt lgkmcnt(0)")
        a(f"v_readfirstlane_b32 s59, {vtmp}")
        a(f"s_cmp_ge_u32 s59, {sval}")
        _spin_tail(L, Ld, sleep)
    def spin_all4(vt, vctl, off, sleep=1):
        L = newlabel("spin4"); Ld = newlabel("spin4d")
        a(f"{L}:")
        a(f"ds_read_b128 v[{vt}:{vt+3}], {vctl} offset:{off}")
        a("s_waitcnt lgkmcnt(0)")
        a(f"v_min_u32 v{vt}, v{vt}, v{vt+1}")
        a(f"v_min3_u32 v{vt}, v{vt}, v{vt+2}, v{vt+3}")
        a(f"v_readfirstlane_b32 s59, v{vt}")
        a("s_cmp_lg_u32 s59, 0")
        _spin_tail(L, Ld, sleep)
    def tagcheck(tags, vacc, vacc2, retry):
        h = (len(tags) + 1) // 2
        t1, t2 = tags[:h], tags[h:]
        a(f"v_xor_b32 {vacc}, s33, {t1[0]}")
        if t2: a(f"v_xor_b32 {vacc2}, s33, {t2[0]}")
        for i in range(1, h):
            a(f"v_bitop3_b32 {vacc}, {t1[i]}, s33, {vacc} bitop3:0xbe")
            if i < len(t2): a(f"v_bitop3_b32 {vacc2}, {t2[i]}, s33, {vacc2} bitop3:0xbe")
        if t2: a(f"v_or_b32 {vacc}, {vacc}, {vacc2}")
        a(f"v_cmp_ne_u32 vcc, 0, {vacc}")
        a(f"s_cbranch_vccnz {retry}")
    def mpoll(loads, name, vt, sm=72, pre=None, alt=None, sleep=0, preset=False):
        n = len(loads)
        for i, (d, va, off) in enumerate(loads):
            if preset: a(f"s_mov_b64 exec, s[{sm+2*i}:{sm+2*i+1}]")
            a(f"global_load_dwordx4 v[{d}:{d+3}], {va}, s[30:31] offset:{off} sc1")
        if preset: a("s_mov_b64 exec, -1")
        if pre: pre()
        a(f"s_branch L_{name}_chk")
        a(f"L_{name}_retry:")
        if sleep: a(f"s_sleep {sleep}")
        if alt:
            a("s_add_u32 s63, s63, 1"); a("s_and_b32 s61, s63, 3"); a("s_cmp_lt_u32 s61, 2"); a(f"s_cbranch_scc0 L_{name}_noalt")
            a(f"v_xor_b32 {alt[0]}, {alt[0]}, {alt[1]}"); a(f"L_{name}_noalt:")
        for i, (d, va, off) in enumerate(loads):
            a(f"s_mov_b64 exec, s[{sm+2*i}:{sm+2*i+1}]"); a(f"s_cbranch_execz L_{name}_sk{i}")
            a(f"global_load_dwordx4 v[{d}:{d+3}], {va}, s[30:31] offset:{off} sc1")
            a(f"L_{name}_sk{i}:")
        a("s_mov_b64 exec, -1")
        budget()
        a(f"L_{name}_chk:")
        a("s_waitcnt vmcnt(0)")
        for i, (d, va, off) in enumerate(loads): a(f"v_xor_b32 v{vt+i}, s33, v{d+1}")
        for i, (d, va, off) in enumerate(loads): a(f"v_bitop3_b32 v{vt+i}, v{d+3}, s33, v{vt+i} bitop3:0xbe")
        for i, (d, va, off) in enumerate(loads): a(f"v_cmp_ne_u32 s[{sm+2*i}:{sm+2*i+1}], 0, v{vt+i}")
        if n == 1: a(f"s_cmp_lg_u64 s[{sm}:{sm+1}], 0")
        else:
            a(f"s_or_b64 vcc, s[{sm}:{sm+1}], s[{sm+2}:{sm+3}]")
            for i in range(2, n): a(f"s_or_b64 vcc, vcc, s[{sm+2*i}:{sm+2*i+1}]")
        rounds = {"h1": rounds1, "h2": rounds2}.get(name)
        if rounds is not None:
            a("s_add_u32 s82, s82, 1"); a(f"s_cmp_lt_u32 s82, {rounds}")
        a(f"s_cbranch_scc1 L_{name}_retry")
    def rbf(dst, src):
        a(f"v_cvt_pk_bf16_f32 {dst}, {src}, {src}")
        a(f"v_and_b32 {dst}, 0xffff0000, {dst}")
    DPPF = "row_mask:0xf bank_mask:0xf"
    def red16(op, v):
        for m in ("quad_perm:[1,0,3,2]", "quad_perm:[2,3,0,1]", "row_half_mirror", "row_mirror"):
            a(f"{op}_dpp {v}, {v}, {v} {m} {DPPF}")
    def swapred(op, v, t, which):
        a(f"v_mov_b32 {t}, {v}")
        a(f"v_permlane{which}_swap_b32 {v}, {t}")
        a(f"{op} {v}, {v}, {t}")

    if diag: a("s_memrealtime s[66:67]")
    a("s_cmp_ge_u32 s2, 256")
    a("s_cbranch_scc1 L_end")
    a("s_load_dwordx16 s[8:23], s[0:1], 0")
    a("s_load_dwordx8 s[24:31], s[0:1], 64")
    a("v_lshrrev_b32 v1, 6, v0")
    a("v_and_b32 v0, 63, v0")
    a("v_readfirstlane_b32 s3, v1")
    a("s_and_b32 s4, s2, 7"); a("s_lshr_b32 s5, s2, 3"); a("s_and_b32 s6, s5, 3"); a("s_lshr_b32 s7, s5, 2")
    if cls == 'b':
        a("s_and_b32 s34, s6, 1"); a("s_lshl_b32 s48, s7, 1"); a("s_add_u32 s34, s34, s48"); a("s_lshl_b32 s34, s34, 3"); a("s_add_u32 s34, s34, s4")
    else:
        a("s_and_b32 s34, s4, 3"); a("s_lshl_b32 s48, s5, 2"); a("s_add_u32 s34, s34, s48")
    a("s_cmp_lt_u32 s34, 120"); a("s_cselect_b32 s35, 3, 0")
    a("s_cmp_lt_u32 s34, 92"); a("s_cselect_b32 s35, 2, s35")
    a("s_cmp_lt_u32 s34, 64"); a("s_cselect_b32 s35, 1, s35")
    a("s_cmp_lt_u32 s34, 98"); a("s_cselect_b32 s48, 4, 0")
    a("s_cmp_ge_u32 s6, 2" if cls == 'b' else "s_cmp_ge_u32 s4, 4"); a("s_cselect_b32 s35, s48, s35")
    a("s_sub_u32 s49, s34, 64"); a("s_sub_u32 s48, s34, 92")
    a("s_cmp_eq_u32 s35, 3"); a("s_cselect_b32 s49, s48, s49")
    a("s_movk_i32 s57, 3584"); a("s_mov_b32 s38, 1605632")
    a("s_cmp_eq_u32 s35, 1"); a("s_cselect_b32 s49, s34, s49"); a("s_cselect_b32 s57, 8192, s57"); a("s_cselect_b32 s38, 3670016, s38")
    a("s_mov_b32 s39, 0x20000")
    a("s_mul_i32 s55, s34, 9363"); a("s_lshr_b32 s55, s55, 16"); a("s_mul_i32 s56, s55, 7"); a("s_sub_u32 s56, s34, s56")
    a(f"s_mul_i32 s55, s55, {128*896//128}"); a("s_add_u32 s55, s55, s56")
    a("s_cmp_eq_u32 s35, 4"); a("s_cselect_b32 s48, s55, s49"); a("s_cselect_b32 s57, 896, s57"); a("s_cselect_b32 s61, 8, 28")
    a(f"s_cselect_b32 s60, {(F2B-BIGW)//1024}, 0"); a("s_lshl_b32 s48, s48, 7"); a("s_lshl_b32 s60, s60, 10"); a(f"s_add_u32 s60, s60, {BIGW}")
    a("s_cmp_eq_u32 s35, 0"); a("s_cselect_b32 s61, 0, s61")
    a("s_lshl_b32 s56, s57, 3")
    a("s_lshl_b32 s52, s6, 3"); a("s_add_u32 s52, s52, s4"); a("s_lshl_b32 s52, s52, 21"); a("s_lshl_b32 s53, s7, 18"); a("s_add_u32 s54, s52, s53")
    a("s_mov_b32 s42, 0x4000000"); a("s_mov_b32 s43, 0x20000")
    a("v_lshlrev_b32 v9, 4, v0")
    a(f"v_mov_b32 v10, {CTRL}")
    a("v_lshrrev_b32 v2, 3, v0"); a("v_and_b32 v3, 7, v0"); a("v_and_b32 v8, 2, v2"); a("v_xor_b32 v3, v3, v8")
    a("v_lshlrev_b32 v3, 4, v3")
    a("v_mad_u32_u24 v24, v2, s57, v3"); a("v_xor_b32 v25, 64, v3"); a("v_mad_u32_u24 v25, v2, s57, v25")
    a("v_lshrrev_b32 v28, 5, v0"); a("v_and_b32 v29, 31, v0"); a("v_lshlrev_b32 v30, 9, v28"); a("v_xor_b32 v15, v29, v28")
    for p in range(8):
        if p: a(f"v_xor_b32 v{16+p}, {2*p}, v15"); a(f"v_lshl_add_u32 v{16+p}, v{16+p}, 4, v30")
        else: a("v_lshl_add_u32 v16, v15, 4, v30")
    a("s_mov_b32 s62, 0x20000")
    a("s_cmp_eq_u32 s3, 4")
    a("s_waitcnt lgkmcnt(0)")
    if diag: a("v_writelane_b32 v247, s66, 0"); a("v_writelane_b32 v247, s67, 1")
    a("s_cbranch_scc0 L_others")

    a("s_cmp_eq_u32 s35, 2"); a("s_cselect_b32 s36, s20, s22"); a("s_cselect_b32 s37, s21, s23")
    a("s_cmp_eq_u32 s35, 1"); a("s_cselect_b32 s36, s14, s36"); a("s_cselect_b32 s37, s15, s37")
    a("s_cmp_eq_u32 s35, 4"); a("s_cselect_b32 s36, s24, s36"); a("s_cselect_b32 s37, s25, s37")
    a("s_mov_b32 m0, s60"); a("s_mov_b32 s40, s10"); a("s_mov_b32 s41, s11")
    if catch: a("s_load_dword s32, s[30:31], 0")
    a("s_setprio 3")
    a("s_mov_b32 s58, 1")
    a("s_cmp_eq_u32 s61, 0"); a("s_cbranch_scc1 L_ld_kv")
    a("L_tile:")
    a(f"s_waitcnt vmcnt({w0-1})")
    a(f"buffer_load_dwordx4 v24, s[36:39], s48 offen{wf} lds")
    a("s_add_u32 m0, m0, 1024"); a("s_add_u32 s48, s48, s56")
    a(f"s_waitcnt vmcnt({w0-1})")
    a(f"buffer_load_dwordx4 v25, s[36:39], s48 offen{wf} lds")
    a("s_add_u32 m0, m0, 1024"); a("s_add_u32 s48, s48, s56")
    a("s_sub_u32 s61, s61, 1")
    a(f"s_cmp_lg_u32 s61, {28 - min(w0, 24)//2}"); a("s_cbranch_scc1 L_tile_nb"); a("s_waitcnt lgkmcnt(0)"); a("s_barrier"); a("s_movk_i32 s58, 100"); a("L_tile_nb:")
    a("s_cmp_lg_u32 s61, 0"); a("s_cbranch_scc1 L_tile")
    a("L_ld_kv:")
    a("s_mov_b32 s52, s54"); a("s_mov_b32 s50, 0"); a("s_mov_b32 s51, 0"); a(f"s_mov_b32 s63, {NS*SLOT}"); a("s_mov_b32 s53, 5")
    if catch:
        a("s_lshl_b32 s55, s4, 7"); a(f"s_add_u32 s55, s55, {W_PG}"); a("s_lshl_b32 s56, s5, 2"); a("s_add_u32 s56, s56, s55")
        a("v_mov_b32 v48, s56"); a("v_lshl_add_u32 v49, v29, 2, s55")
        if gcatch:
            a("v_and_b32 v50, 7, v0"); a("v_lshlrev_b32 v50, 7, v50"); a(f"v_add_u32 v50, {W_GP}, v50")
            a("s_mov_b32 s44, 0"); a("s_mov_b32 s45, -1"); a("v_cndmask_b32 v49, v49, v50, s[44:45]")
            a("s_lshl_b32 s55, s4, 7"); a(f"s_add_u32 s55, s55, {W_GP}"); a("v_mov_b32 v47, s55")
        a("v_mov_b32 v51, 0"); a("s_mov_b32 s46, 0")
    NWO = -(-64 // wo_per) if womode == 'L' else wo_n1
    NQ = 64 - NWO * wo_per if womode == 'q' else 0
    assert wo_start >= 20 and wo_start + NWO <= 31 and wo_per % 2 == 0
    def item_check(c):
        a(f"L_check{c}:")
        a("s_waitcnt lgkmcnt(0)")
        a("v_min3_u32 v40, v40, v41, v42")
        a("v_min3_u32 v40, v40, v43, v44")
        a("s_sub_u32 s56, s50, s53")
        a("v_readfirstlane_b32 s55, v40")
        a("s_cmp_gt_u32 s55, s56")
        a(f"s_cbranch_scc0 L_slow{c}")
        a(f"L_chk_done{c}:")
        if catch:
            a("s_bitcmp1_b32 s50, 0"); a(f"s_cbranch_scc1 L_nocatch{c}")
            a("s_mul_i32 s33, s32, 0x9E3779B1"); a("s_add_u32 s33, s33, 0x7F4A7C15")
            a("v_xor_b32 v52, s33, v51"); a("v_cmp_gt_u32 vcc, 64, v52"); a("s_xor_b32 s55, s33, s50"); a("v_mov_b32 v53, s55"); a("v_cndmask_b32 v52, 0, v52, vcc")
            red16("v_max_u32", "v52"); swapred("v_max_u32", "v52", "v54", 16)
            if gcatch: swapred("v_max_u32", "v52", "v54", 32)
            a("s_mov_b64 exec, 1")
            a("global_store_dword v48, v53, s[30:31]")
            if gcatch:
                a(f"s_and_b32 s56, s50, {gper-1}"); a("s_or_b32 s56, s56, s5"); a("s_cmp_lg_u32 s56, 0"); a(f"s_cbranch_scc1 L_nog{c}")
                a("global_store_dword v47, v53, s[30:31] sc1")
                a(f"L_nog{c}:")
            a("s_mov_b32 exec_lo, -1"); a(f"s_mov_b32 exec_hi, {'0xff' if gcatch else 0}")
            a("v_readfirstlane_b32 s55, v52")
            a("global_load_dword v51, v49, s[30:31] sc1")
            a("s_mov_b64 exec, -1")
            a(f"s_add_u32 s55, s55, 2"); a(f"s_add_u32 s56, s50, {catch}"); a("s_cmp_ge_u32 s55, s56"); a("s_cselect_b32 s46, 1, 0")
            a(f"L_nocatch{c}:")
            a("s_cmp_eq_u32 s46, 1"); a(f"s_cbranch_scc1 L_go{c}b")
    def item_body(c, w, nwo):
        a(f"L_go{c}:")
        if diag == 2:
            a("s_memrealtime s[70:71]"); a("s_waitcnt lgkmcnt(0)"); a("s_mov_b32 m0, s50"); a("v_writelane_b32 v60, s70, m0")
        if nwo:
            a("s_mov_b32 m0, s60")
            for k in range(nwo):
                a(f"s_waitcnt vmcnt({w-1})")
                a(f"buffer_load_dwordx4 v{24+(k&1)}, s[36:39], s48 offen{wof} lds")
                a("s_add_u32 m0, m0, 1024"); a(f"s_add_u32 s48, s48, {8*896}")
            a("s_mov_b32 s60, m0")
        nsig = max(0, w - 17 - nwo)
        for grp in range(4):
            if grp == 0: a("s_mov_b32 m0, s51")
            else:
                a("s_add_u32 m0, m0, 4096"); a("s_add_u32 s52, s52, 4096")
            if grp == 3:
                a(f"ds_read_b128 v[40:43], v10 offset:{C_CP}"); a(f"ds_read_b32 v44, v10 offset:{C_FP}")
            for q in range(4):
                n = grp * 4 + q
                a(f"s_waitcnt vmcnt({w-1})")
                if n == nsig:
                    a("v_mov_b32 v46, s50"); a(f"ds_write_b32 v10, v46 offset:{C_FILL}")
                a(f"buffer_load_dwordx4 v{16+(n&7)}, s[40:43], s52 offen offset:{1024*q}{kvf} lds")
        a("s_add_u32 s52, s52, 4096")
        a(f"s_add_u32 s51, s51, {SLOT}"); a("s_cmp_eq_u32 s51, s63"); a("s_cselect_b32 s51, 0, s51")
        a("s_add_u32 s50, s50, 1")
    def slow(c):
        a(f"L_slow{c}:")
        budget()
        a(f"ds_read_b128 v[40:43], v10 offset:{C_CP}"); a(f"ds_read_b32 v44, v10 offset:{C_FP}")
        a(f"s_branch L_check{c}")
    a("L_item:")
    a("s_cmp_lg_u32 s50, s58"); a("s_cbranch_scc1 L_nobar"); a("s_waitcnt lgkmcnt(0)"); a("s_barrier"); a("L_nobar:")
    a("s_cmp_lt_u32 s50, 2"); a("s_cbranch_scc1 L_goP")
    a("s_cmp_lt_u32 s50, 5"); a("s_cbranch_scc1 L_chk_doneP")
    item_check("P")
    item_body("P", win, 0)
    a("L_afterP:")
    a("s_cmp_eq_u32 s50, 16"); a("s_cbranch_scc1 L_tov")
    a(f"s_cmp_eq_u32 s50, {wo_start}"); a("s_cbranch_scc1 L_towo")
    a("L_item_next:")
    a("s_cmp_lt_u32 s50, 32"); a("s_cbranch_scc1 L_item")
    stamp(1)
    a("v_mov_b32 v46, 32"); a("v_mov_b32 v47, 33")
    a("s_waitcnt vmcnt(16)")
    a(f"ds_write_b32 v10, v46 offset:{C_FILL}")
    a("s_waitcnt vmcnt(0)")
    a(f"ds_write_b32 v10, v47 offset:{C_FILL}")
    stamp(3)
    stamp(2)
    if diag:
        a("s_lshl_b32 s60, s2, 8"); a(f"s_add_u32 s60, s60, {W_DIAG + 0x80000}"); a("v_lshl_add_u32 v61, v0, 2, s60")
        a("global_store_dword v61, v60, s[30:31]")
    dump_stamps(4)
    a("s_endpgm")

    a("L_others:")
    a("s_load_dword s32, s[30:31], 0")
    a("s_cmp_ge_u32 s3, 4"); a("s_cbranch_scc1 L_nox")
    a("s_sub_u32 s50, s35, 1"); a("s_cmp_ge_u32 s50, 3"); a("s_cbranch_scc1 L_nox")
    a("s_mul_i32 s50, s3, 896")
    a("v_add_u32 v11, s50, v9")
    a("v_mov_b32 v4, 0"); a("v_mov_b32 v5, 0"); a("v_mov_b32 v6, 0"); a("v_mov_b32 v7, 0")
    a("s_mov_b32 exec_hi, 0x00ffffff")
    a("global_load_dwordx4 v[4:7], v11, s[8:9]")
    a("s_mov_b32 exec_hi, -1")
    a("L_nox:")
    a("s_sub_u32 s50, s35, 1"); a("s_cmp_ge_u32 s50, 3"); a("s_cselect_b32 s51, 1, 0"); a("s_cselect_b32 s52, 4, 1")
    a("v_mov_b32 v12, s52"); a("v_mad_u32_u24 v12, v0, s51, v12")
    a("v_cmp_gt_u32 vcc, 4, v0")
    a("s_cmp_eq_u32 s35, 4"); a(f"s_cselect_b32 s50, 3, {BIG}")
    a("v_cndmask_b32 v12, 0, v12, vcc")
    a("v_mov_b32 v13, s50")
    a("v_cmp_eq_u32 vcc, 4, v0")
    a("v_lshl_add_u32 v14, v0, 2, v10")
    a("v_cndmask_b32 v12, v12, v13, vcc")
    a("ds_write_b32 v14, v12")
    a("s_waitcnt lgkmcnt(0)")
    a("s_mul_i32 s33, s32, 0x9E3779B1"); a("s_add_u32 s33, s33, 0x7F4A7C15")
    a("s_barrier")
    a("s_cmp_lt_u32 s3, 4"); a("s_cbranch_scc1 L_C")
    a("s_cmp_eq_u32 s3, 5"); a("s_cbranch_scc1 L_Q")
    a("s_cmp_eq_u32 s3, 6"); a("s_cbranch_scc1 L_F")
    a("s_branch L_R")

    slow("P")
    a("L_tov:")
    a("s_mov_b32 s40, s12"); a("s_mov_b32 s41, s13"); a("s_mov_b32 s52, s54")
    a("s_mov_b32 s51, 0"); a(f"s_mov_b32 s63, {5*SLOT}"); a("s_mov_b32 s53, 1")
    a("v_lshlrev_b32 v15, 1, v28"); a("v_xor_b32 v15, v15, v29")
    for p in range(8):
        f = 4 * (p & 1) + 8 * ((p >> 2) & 1)
        a(f"v_xor_b32 v{16+p}, {f}, v15")
        a(f"v_lshl_add_u32 v{16+p}, v{16+p}, 4, v30")
    a("s_mov_b32 s36, s16"); a("s_mov_b32 s37, s17"); a("s_mov_b32 s38, 3670016")
    a(f"s_mul_i32 s48, s4, {512*896}"); a("s_lshl_b32 s55, s7, 7"); a("s_add_u32 s48, s48, s55")
    a("s_movk_i32 s57, 896"); a(f"s_mov_b32 s60, {WOB}")
    a("v_mad_u32_u24 v24, v2, s57, v3"); a("v_xor_b32 v25, 64, v3"); a("v_mad_u32_u24 v25, v2, s57, v25")
    a("s_branch L_item")
    a("L_towo:")
    a("s_cmp_eq_u32 s7, 7"); a("s_cbranch_scc1 L_item")
    if nowo or NWO == 0: a("s_branch L_item")
    a("L_itemW:")
    item_check("W")
    item_body("W", wwo, wo_per)
    a("L_afterW:")
    a(f"s_cmp_lt_u32 s50, {wo_start + NWO}"); a("s_cbranch_scc1 L_itemW")
    a("s_branch L_item_next")
    slow("W")
    if catch:
        item_body("Pb", wboost, 0); a("s_branch L_afterP")
        item_body("Wb", wwoboost, wo_per); a("s_branch L_afterW")

    def tile_tr_addr(dst, tau_sgpr_or_const, base):
        a("v_lshrrev_b32 v16, 2, v14"); a("v_lshl_add_u32 v16, v15, 3, v16"); a("v_lshlrev_b32 v16, 7, v16")
        a("v_and_b32 v17, 1, v14"); a("v_lshl_add_u32 v16, v17, 3, v16")
        a("v_and_b32 v17, 1, v15"); a("v_lshrrev_b32 v18, 3, v14"); a("v_lshl_add_u32 v17, v17, 1, v18"); a("v_lshlrev_b32 v17, 1, v17")
        a("v_bfe_u32 v18, v14, 1, 1"); a("v_xor_b32 v17, v17, v18")
        if tau_sgpr_or_const is not None:
            a(f"s_lshl_b32 s50, {tau_sgpr_or_const}, 1"); a("v_xor_b32 v17, s50, v17")
        a(f"v_lshl_add_u32 {dst}, v17, 4, v16")
        if base: a(f"v_add_u32 {dst}, {base}, {dst}")
    a("L_C:")
    a("v_and_b32 v14, 15, v0")
    a("v_lshrrev_b32 v15, 4, v0")
    a("s_lshl_b32 s50, s3, 2"); a("v_add_u32 v12, s50, v10")
    a("v_mov_b32 v13, 1")
    a("v_mov_b32 v81, s33"); a("v_mov_b32 v83, s33")
    a("s_sub_u32 s50, s35, 1"); a("s_cmp_ge_u32 s50, 3"); a("s_cbranch_scc1 L_C_noproj")
    tile_tr_addr("v38", "s3", BIGW)
    a("v_and_b32 v17, 3, v14"); a("s_movk_i32 s50, 896"); a("v_mul_u32_u24 v16, s50, v17"); a("v_lshl_add_u32 v39, v15, 4, v16"); a(f"v_add_u32 v39, {XN}, v39")
    a("s_lshl_b32 s50, s49, 4")
    a("s_lshr_b32 s51, s49, 1"); a("s_lshl_b32 s51, s51, 1"); a("s_add_u32 s51, s51, s35"); a("s_sub_u32 s51, s51, 2"); a("s_lshl_b32 s51, s51, 7")
    a("s_and_b32 s52, s49, 1"); a("s_lshl_b32 s52, s52, 4"); a("s_add_u32 s51, s51, s52"); a(f"s_add_u32 s51, s51, {W_GU//16}")
    a(f"s_add_u32 s50, s50, {W_QG//16}")
    a("s_cmp_eq_u32 s35, 1"); a("s_cselect_b32 s50, s50, s51"); a("s_cselect_b32 s51, 1024, 32")
    a("s_lshl_b32 s52, s3, 2"); a("s_add_u32 s50, s50, s52")
    a("v_mad_u32_u24 v16, v14, s51, v15"); a("v_add_u32 v16, s50, v16"); a("v_lshlrev_b32 v37, 4, v16")
    if warm & 1:
        a("s_mov_b32 exec_lo, 0x0000000f"); a("s_mov_b32 exec_hi, 0")
        a(f"global_load_dword v245, v37, s[30:31] {warmfl}"); a("s_mov_b64 exec, -1")
        a("s_waitcnt vmcnt(1)")
    else:
        a("s_waitcnt vmcnt(0)")
    stamp(1)
    for i in range(4):
        a(f"v_lshlrev_b32 v{16+2*i}, 16, v{4+i}"); a(f"v_and_b32 v{17+2*i}, 0xffff0000, v{4+i}")
    a("v_add_f32 v24, v16, v17"); a("v_add_f32 v25, v18, v19"); a("v_add_f32 v26, v20, v21"); a("v_add_f32 v27, v22, v23")
    a("v_add_f32 v24, v24, v25"); a("v_add_f32 v26, v26, v27"); a("v_add_f32 v24, v24, v26")
    red16("v_add_f32", "v24"); swapred("v_add_f32", "v24", "v25", 16); swapred("v_add_f32", "v24", "v25", 32)
    a(f"v_mul_f32 v24, {hex(f2u(1.0/448))}, v24")
    a("v_mov_b32 v26, 0")
    a("s_mov_b32 exec_hi, 0x00ffffff")
    for i in range(8): a(f"v_sub_f32 v{28+i}, v{16+i}, v24")
    for i in range(8): a(f"v_fmac_f32 v26, v{28+i}, v{28+i}")
    a("s_mov_b32 exec_hi, -1")
    rbf("v25", "v24")
    red16("v_add_f32", "v26"); swapred("v_add_f32", "v26", "v27", 16); swapred("v_add_f32", "v26", "v27", 32)
    a(f"v_mul_f32 v26, {hex(f2u(1.0/448))}, v26")
    rbf("v26", "v26")
    a(f"v_add_f32 v26, {hex(f2u(1e-5))}, v26")
    rbf("v26", "v26")
    a("v_sqrt_f32 v26, v26")
    for i in range(8): a(f"v_sub_f32 v{28+i}, v{16+i}, v25")
    rbf("v26", "v26")
    a("v_rcp_f32 v26, v26")
    for i in range(4): a(f"v_cvt_pk_bf16_f32 v{16+i}, v{28+2*i}, v{29+2*i}")
    for i in range(4):
        a(f"v_lshlrev_b32 v{28+2*i}, 16, v{16+i}"); a(f"v_and_b32 v{29+2*i}, 0xffff0000, v{16+i}")
    for i in range(8): a(f"v_mul_f32 v{28+i}, v{28+i}, v26")
    for i in range(4): a(f"v_cvt_pk_bf16_f32 v{16+i}, v{28+2*i}, v{29+2*i}")
    a(f"v_add_u32 v11, {XN}, v11")
    a("s_mov_b32 exec_hi, 0x00ffffff")
    a("ds_write_b128 v11, v[16:19]")
    a("s_mov_b32 exec_hi, -1")
    a(f"ds_write_b32 v12, v13 offset:{C_XNF}")
    spin_all4(40, "v10", C_XNF, sleep=0)
    for s in range(14): a(f"ds_read_b128 v[{84+4*s}:{87+4*s}], v39 offset:{64*s}")
    stamp(2)
    spin_ge("v16", "v10", C_FILL, 1, sleep=0)
    for s in range(14):
        a(f"ds_read_b64_tr_b16 v[{140+4*s}:{141+4*s}], v38 offset:{4096*s}")
        a(f"ds_read_b64_tr_b16 v[{142+4*s}:{143+4*s}], v38 offset:{4096*s+512}")
    for s in range(14):
        n = 26 - 2 * s
        if n <= 15 and (s % 2 == 0 or s == 13): a(f"s_waitcnt lgkmcnt({max(0, n-2) if s != 13 else 0})")
        elif s == 0: a("s_waitcnt lgkmcnt(14)")
        c = "0" if s == 0 else "v[48:51]"
        a(f"v_mfma_f32_16x16x32_bf16 v[48:51], v[{140+4*s}:{143+4*s}], v[{84+4*s}:{87+4*s}], {c}")
    a("s_add_u32 s50, s3, 4"); a("v_mov_b32 v16, s50"); a(f"ds_write_b32 v12, v16 offset:{C_CP}")
    a("s_mov_b32 s50, 0x000f000f")
    a("v_cvt_pk_bf16_f32 v80, v48, v49"); a("v_cvt_pk_bf16_f32 v82, v50, v51")
    a("s_mov_b32 exec_lo, s50"); a("s_mov_b32 exec_hi, s50")
    a("global_store_dwordx4 v37, v[80:83], s[30:31] sc1")
    a("s_mov_b64 exec, -1")
    a("L_C_noproj:")
    stamp(3)
    a("v_xor_b32 v16, v15, v14")
    a("v_lshlrev_b32 v17, 9, v14")
    for s in range(4):
        if s: a(f"v_xor_b32 v{20+s}, {4*s}, v16")
        else: a("v_mov_b32 v20, v16")
        a(f"v_lshl_add_u32 v{20+s}, v{20+s}, 4, v17")
    a("v_lshrrev_b32 v16, 2, v14")
    a("v_lshl_add_u32 v17, v15, 3, v16")
    a("v_lshlrev_b32 v17, 9, v17")
    a("v_and_b32 v18, 1, v14"); a("v_lshl_add_u32 v17, v18, 3, v17")
    a("v_and_b32 v18, 1, v15"); a("v_lshl_add_u32 v18, v18, 2, v16"); a("v_lshlrev_b32 v18, 1, v18")
    a("v_bfe_u32 v19, v14, 1, 1")
    a("s_lshl_b32 s50, s3, 3"); a("v_add_u32 v19, s50, v19")
    a("v_xor_b32 v18, v18, v19")
    for tt in range(4):
        if tt: a(f"v_xor_b32 v{24+tt}, {2*tt}, v18")
        else: a("v_mov_b32 v24, v18")
        a(f"v_lshl_add_u32 v{24+tt}, v{24+tt}, 4, v17")
    a("v_and_b32 v16, 1, v0")
    a("v_lshlrev_b32 v17, 4, v15")
    a("v_lshl_add_u32 v28, v16, 9, v17"); a(f"v_add_u32 v28, {QI}, v28")
    a("v_lshl_add_u32 v29, v16, 10, v17"); a(f"v_add_u32 v29, {PB}, v29")
    a("v_lshrrev_b32 v16, 5, v0"); a("v_and_b32 v17, 31, v0"); a("s_lshl_b32 s50, s3, 5"); a("v_add_u32 v17, s50, v17")
    a("v_lshlrev_b32 v17, 1, v17"); a("v_lshl_add_u32 v30, v16, 10, v17"); a(f"v_add_u32 v30, {PB}, v30")
    a("v_lshl_add_u32 v31, v16, 4, v10")
    a("v_lshl_add_u32 v33, v16, 2, v10")
    a("s_lshl_b32 s50, s3, 2"); a("v_add_u32 v32, s50, v31")
    tile_tr_addr("v34", "s3", WOB)
    a("s_mov_b32 s44, 0xffff0000"); a("s_mov_b32 s45, 0xffff0000")
    a("s_mov_b32 s46, 0"); a("s_mov_b32 s47, -1")
    a("s_lshl_b32 s50, s6, 3"); a("s_add_u32 s50, s50, s4"); a("s_lshl_b32 s50, s50, 15"); a("s_lshl_b32 s51, s3, 10"); a("s_add_u32 s50, s50, s51"); a(f"s_add_u32 s50, s50, {W_H1}")
    a("v_add_u32 v16, s50, v9")
    a("s_lshl_b32 s51, s7, 12"); a("v_add_u32 v35, s51, v16")
    for i in range(1, 8):
        a(f"s_add_u32 s51, s7, {i}"); a("s_and_b32 s51, s51, 7"); a("s_lshl_b32 s51, s51, 12"); a(f"v_add_u32 v{247+i}, s51, v16")
    a("v_lshrrev_b32 v16, 5, v0"); a("v_lshlrev_b32 v16, 8, v16"); a("v_and_b32 v17, 1, v15"); a("v_lshl_add_u32 v16, v17, 5, v16"); a("v_add_u32 v16, v16, v14")
    a("s_lshl_b32 s50, s3, 6"); a("v_add_u32 v16, s50, v16"); a("v_lshlrev_b32 v16, 1, v16"); a(f"v_add_u32 v38, {OI}, v16")
    a("v_lshlrev_b32 v36, 4, v15"); a(f"v_add_u32 v36, {OI}, v36")
    a("s_mul_i32 s50, s6, 28"); a("s_lshl_b32 s51, s7, 2"); a("s_add_u32 s50, s50, s51"); a("s_add_u32 s50, s50, s3"); a("s_lshl_b32 s50, s50, 3"); a("s_add_u32 s50, s50, s4")
    a("s_lshl_b32 s50, s50, 7"); a(f"s_add_u32 s50, s50, {W_H2}"); a("v_add_u32 v37, s50, v9")
    if warm & 8:
        a("s_mov_b64 exec, 1"); a(f"global_load_dword v245, v37, s[30:31] {warmfl}"); a("s_mov_b64 exec, -1")
    a("s_mov_b32 s44, 0xffff0000"); a("s_mov_b32 s45, 0xffff0000")
    a("s_mov_b32 s46, 0"); a("s_mov_b32 s47, -1")
    spin_ge("v16", "v10", C_QRDY, 1)
    stamp(4)
    for s in range(8): a(f"ds_read_b128 v[{64+4*s if s < 4 else 84+4*(s-4)}:{(64+4*s if s < 4 else 84+4*(s-4))+3}], v28 offset:{64*s}")
    qreg = lambda s: 64 + 4 * s if s < 4 else 84 + 4 * (s - 4)
    a("s_mov_b32 s50, s3")
    a("L_kitem:")
    a("s_add_u32 s51, s50, 2")
    a("s_sub_u32 s52, s50, 9"); a("s_cmp_ge_u32 s50, 9"); a("s_cselect_b32 s52, s52, s50")
    a("s_lshl_b32 s52, s52, 14")
    for s in range(4): a(f"v_add_u32 v{40+s}, s52, v{20+s}")
    spin_ge("v16", "v10", C_FILL, "s51")
    for s in range(8):
        for tl in range(2):
            a(f"ds_read_b128 v[{100+8*s+4*tl}:{103+8*s+4*tl}], v{40+(s&3)} offset:{(s>>2)*256 + tl*8192}")
    a("s_add_u32 s51, s50, 4"); a("s_min_u32 s51, s51, 16"); a("s_add_u32 s51, s51, 4")
    a("v_mov_b32 v16, s51")
    a(f"ds_write_b32 v12, v16 offset:{C_CP}")
    a("v_mov_b32 v63, v62"); a("v_mov_b32 v62, v61"); a("v_mov_b32 v61, v60")
    for s in range(8):
        if s % 2 == 0: a(f"s_waitcnt lgkmcnt({13 - 2*s})")
        for tl in range(2):
            c = "0" if s == 0 else f"v[{48+4*tl}:{51+4*tl}]"
            a(f"v_mfma_f32_16x16x32_bf16 v[{48+4*tl}:{51+4*tl}], v[{qreg(s)}:{qreg(s)+3}], v[{100+8*s+4*tl}:{103+8*s+4*tl}], {c}")
    a("v_cndmask_b32 v16, v48, v52, s[44:45]"); a("v_cndmask_b32 v17, v49, v53, s[44:45]"); a("v_cndmask_b32 v16, v16, v17, s[46:47]")
    rbf("v60", "v16")
    a("s_add_u32 s50, s50, 4"); a("s_cmp_lt_u32 s50, 16"); a("s_cbranch_scc1 L_kitem")
    stamp(5)
    a("v_max_f32 v16, v60, v61"); a("v_max3_f32 v16, v16, v62, v63")
    red16("v_max_f32", "v16"); swapred("v_max_f32", "v16", "v17", 16)
    a(f"ds_write_b32 v32, v16 offset:{C_MX}")
    a(f"ds_write_b32 v12, v13 offset:{C_MXF}")
    spin_all4(40, "v10", C_MXF, sleep=0)
    a(f"ds_read_b128 v[40:43], v31 offset:{C_MX}")
    a("s_waitcnt lgkmcnt(0)")
    a("v_max_f32 v16, v40, v41"); a("v_max3_f32 v16, v16, v42, v43")
    a(f"s_mov_b32 s50, {hex(f2u(CEXP))}")
    for i in range(4): a(f"v_sub_f32 v{60+i}, v{60+i}, v16")
    for i in range(4): a(f"v_mul_f32 v{60+i}, s50, v{60+i}")
    for i in range(4): a(f"v_exp_f32 v{60+i}, v{60+i}")
    a("v_add_f32 v17, v60, v61"); a("v_add_f32 v18, v62, v63"); a("v_add_f32 v17, v17, v18")
    a("v_cvt_pk_bf16_f32 v40, v63, v62"); a("v_cvt_pk_bf16_f32 v41, v61, v60")
    a("ds_write_b16 v30, v40 offset:0"); a("ds_write_b16_d16_hi v30, v40 offset:256")
    a("ds_write_b16 v30, v41 offset:512"); a("ds_write_b16_d16_hi v30, v41 offset:768")
    red16("v_add_f32", "v17"); swapred("v_add_f32", "v17", "v18", 16)
    a(f"ds_write_b32 v32, v17 offset:{C_LS}")
    a(f"ds_write_b32 v12, v13 offset:{C_PF}")
    for i in range(16): a(f"v_mov_b32 v{64+i}, 0")
    spin_all4(40, "v10", C_PF, sleep=0)
    stamp(6)
    a("s_mov_b32 s50, 0")
    a("s_mov_b32 s52, 0")
    a("L_vitem:")
    a("ds_read_b128 v[44:47], v29")
    a("v_add_u32 v29, 64, v29")
    for tt in range(4): a(f"v_add_u32 v{40+tt}, s52, v{24+tt}")
    a("s_add_u32 s51, s50, 18")
    spin_ge("v16", "v10", C_FILL, "s51", sleep=kvsleep)
    for tt in range(4):
        a(f"ds_read_b64_tr_b16 v[{96+4*tt}:{97+4*tt}], v{40+tt}")
        a(f"ds_read_b64_tr_b16 v[{98+4*tt}:{99+4*tt}], v{40+tt} offset:2048")
    a("s_add_u32 s51, s50, 21"); a("v_mov_b32 v16, s51")
    a(f"ds_write_b32 v12, v16 offset:{C_CP}")
    a(f"s_add_u32 s52, s52, {SLOT}"); a(f"s_cmp_eq_u32 s52, {5*SLOT}"); a("s_cselect_b32 s52, 0, s52")
    for tt in range(4):
        a(f"s_waitcnt lgkmcnt({7-2*tt})")
        a(f"v_mfma_f32_16x16x32_bf16 v[{64+4*tt}:{67+4*tt}], v[44:47], v[{96+4*tt}:{99+4*tt}], v[{64+4*tt}:{67+4*tt}]")
    a("s_add_u32 s50, s50, 1"); a("s_cmp_lt_u32 s50, 15"); a("s_cbranch_scc1 L_vitem")
    a("s_cmp_eq_u32 s50, 16"); a("s_cbranch_scc1 L_vdone")
    spin_ge("v16", "v10", C_FACF, 1, sleep=0)
    a(f"ds_read_b32 v39, v33 offset:{C_FAC}"); a(f"ds_read_b32 v16, v10 offset:{C_LOC}")
    H1L = [(120 + 4 * i, f"v{248+i}", 0) for i in range(7)]
    a("s_cmp_eq_u32 s7, 7"); a("s_cbranch_scc1 L_nofirst")
    if not notail:
        for (d, va, off) in H1L: a(f"global_load_dwordx4 v[{d}:{d+3}], {va}, s[30:31] sc1")
    def wo_reads():
        for s in range(16):
            r = 150 + 4 * s
            a(f"ds_read_b64_tr_b16 v[{r}:{r+1}], v34 offset:{4096*s}")
            a(f"ds_read_b64_tr_b16 v[{r+2}:{r+3}], v34 offset:{4096*s+512}")
    if womode == 'L' and not notail: wo_reads()
    a("L_nofirst:")
    a("s_waitcnt lgkmcnt(0)"); a("v_readfirstlane_b32 s57, v16")
    a("s_branch L_vitem")
    a("L_vdone:")
    stamp(7)
    if notail: dump_stamps(11); a("s_endpgm")
    a("v_cndmask_b32 v16, v64, v72, s[44:45]"); a("v_cndmask_b32 v17, v65, v73, s[44:45]")
    a("v_cndmask_b32 v18, v68, v76, s[44:45]"); a("v_cndmask_b32 v19, v69, v77, s[44:45]")
    a("v_cndmask_b32 v16, v16, v17, s[46:47]"); a("v_cndmask_b32 v18, v18, v19, s[46:47]")
    a("s_cmp_eq_u32 s57, 1")
    a("v_mul_f32 v80, v16, v39"); a("v_mul_f32 v82, v18, v39")
    a("s_cbranch_scc0 L_st_far")
    a("global_store_dwordx4 v35, v[80:83], s[30:31]")
    a("L_st_done:")
    stamp(8)
    a("s_cmp_eq_u32 s7, 7"); a("s_cbranch_scc1 L_c_exit")
    a("s_mov_b32 s56, 0")
    a("s_waitcnt vmcnt(1)")
    a("s_branch L_h1_chk")
    a("L_h1_retry:")
    if h1sleep: a(f"s_sleep {h1sleep}")
    for i, (d, va, off) in enumerate(H1L):
        a(f"s_mov_b64 exec, s[{68+2*i}:{69+2*i}]"); a(f"s_cbranch_execz L_h1_sk{i}")
        a(f"global_load_dwordx4 v[{d}:{d+3}], {va}, s[30:31] sc1")
        a(f"L_h1_sk{i}:")
    a("s_mov_b64 exec, -1")
    budget()
    if womode == 'q':
        a("s_cmp_lg_u32 s56, 0"); a("s_cbranch_scc1 L_h1_wait")
        a(f"ds_read_b32 v16, v10 offset:{C_WOF}"); a("s_waitcnt lgkmcnt(0)"); a("v_readfirstlane_b32 s56, v16")
        a("s_cmp_lg_u32 s56, 0"); a("s_cbranch_scc0 L_h1_wait")
        wo_reads()
        a("L_h1_wait:")
    a("s_waitcnt vmcnt(0)")
    a("L_h1_chk:")
    for i, (d, va, off) in enumerate(H1L): a(f"v_xor_b32 v{96+i}, s33, v{d+1}")
    for i, (d, va, off) in enumerate(H1L): a(f"v_bitop3_b32 v{96+i}, v{d+3}, s33, v{96+i} bitop3:0xbe")
    for i, (d, va, off) in enumerate(H1L): a(f"v_cmp_ne_u32 s[{68+2*i}:{69+2*i}], 0, v{96+i}")
    a("s_or_b64 vcc, s[68:69], s[70:71]"); a("s_or_b64 s[82:83], s[72:73], s[74:75]"); a("s_or_b64 s[84:85], s[76:77], s[78:79]")
    a("s_or_b64 vcc, vcc, s[80:81]"); a("s_or_b64 s[82:83], s[82:83], s[84:85]"); a("s_or_b64 vcc, vcc, s[82:83]")
    a("s_cbranch_scc1 L_h1_retry")
    stamp(9)
    a("v_add_f32 v80, v80, v120"); a("v_add_f32 v82, v82, v122")
    a("v_add_f32 v124, v124, v128"); a("v_add_f32 v126, v126, v130")
    a("v_add_f32 v132, v132, v136"); a("v_add_f32 v134, v134, v138")
    a("v_add_f32 v140, v140, v144"); a("v_add_f32 v142, v142, v146")
    a("v_add_f32 v80, v80, v124"); a("v_add_f32 v82, v82, v126")
    a("v_add_f32 v132, v132, v140"); a("v_add_f32 v134, v134, v142")
    a("v_add_f32 v80, v80, v132"); a("v_add_f32 v82, v82, v134")
    a("v_cvt_pk_bf16_f32 v16, v80, v82")
    a("ds_write_b16 v38, v16"); a("ds_write_b16_d16_hi v38, v16 offset:32")
    a(f"ds_write_b32 v12, v13 offset:{C_OF}")
    if womode == 'q':
        a("s_cmp_lg_u32 s56, 0"); a("s_cbranch_scc1 L_wo_have")
        spin_ge("v16", "v10", C_WOF, 1, sleep=0)
        wo_reads()
        a("L_wo_have:")
    spin_all4(40, "v10", C_OF, sleep=0)
    for s in range(16): a(f"ds_read_b128 v[{84+4*s if s < 16 else 0}:{87+4*s}], v36 offset:{64*s}")
    for s in range(16):
        if s % 4 == 0: a(f"s_waitcnt lgkmcnt({12 - s})")
        acc = 48 + 4 * (s & 1)
        c = "0" if s < 2 else f"v[{acc}:{acc+3}]"
        a(f"v_mfma_f32_16x16x32_bf16 v[{acc}:{acc+3}], v[{84+4*s}:{87+4*s}], v[{150+4*s}:{153+4*s}], {c}")
    a("v_add_f32 v80, v48, v52")
    a(f"v_mov_b32_dpp v82, v80 row_ror:8 {DPPF}")
    a("s_mov_b64 exec, 0xff")
    a("global_store_dwordx4 v37, v[80:83], s[30:31] sc1")
    a("L_c_exit:")
    stamp(10)
    dump_stamps(11)
    a("s_endpgm")
    a("L_st_far:")
    a("global_store_dwordx4 v35, v[80:83], s[30:31] sc1")
    a("s_branch L_st_done")

    a("L_Q:")
    a("v_and_b32 v14, 15, v0")
    a("s_lshl_b32 s50, s6, 10"); a("s_lshl_b32 s51, s4, 7"); a("s_add_u32 s50, s50, s51"); a("s_lshl_b32 s50, s50, 4"); a(f"s_add_u32 s50, s50, {W_QG}")
    a("v_add_u32 v25, s50, v9")
    a("v_lshlrev_b32 v26, 3, v0"); a(f"v_add_u32 v26, {QI}, v26")
    a("v_mov_b32 v41, s33"); a("v_mov_b32 v43, s33")
    if warm & 2:
        a("s_lshl_b32 s50, s6, 3"); a("s_add_u32 s50, s50, s4"); a("s_lshl_b32 s50, s50, 8"); a(f"s_add_u32 s50, s50, {W_MLG}"); a("s_lshl_b32 s51, s7, 5"); a("s_add_u32 s50, s50, s51")
        a("v_mov_b32 v30, s50"); a("s_mov_b64 exec, 1"); a(f"global_load_dword v31, v30, s[30:31] {warmfl}"); a("s_mov_b64 exec, -1")
    spin_ge("v16", "v10", C_FILL, qpoll_fill, sleep=1)
    stamp(1)
    if noq: pass
    elif not qpipe:
        mpoll([(48, "v25", 0), (52, "v25", 1024)], "q", 16, sleep=qsleep)
    else:
        def qload(d):
            a(f"global_load_dwordx4 v[{d}:{d+3}], v25, s[30:31] sc1")
            a(f"global_load_dwordx4 v[{d+4}:{d+7}], v25, s[30:31] offset:1024 sc1")
        qload(48)
        a(f"s_sleep {qpipe}")
        a("L_qp_a:")
        qload(56)
        a("s_waitcnt vmcnt(2)")
        tagcheck(["v49", "v51", "v53", "v55"], "v16", "v17", "L_qp_b")
        a("s_branch L_qp_done")
        a("L_qp_b:")
        qload(48)
        budget()
        a("s_waitcnt vmcnt(2)")
        tagcheck(["v57", "v59", "v61", "v63"], "v16", "v17", "L_qp_a")
        a("ds_write2_b32 v26, v56, v58 offset0:0 offset1:1")
        a("ds_write2_b32 v26, v60, v62 offset0:128 offset1:129")
        a("s_branch L_qp_done2")
        a("L_qp_done:")
    a("ds_write2_b32 v26, v48, v50 offset0:0 offset1:1")
    a("ds_write2_b32 v26, v52, v54 offset0:128 offset1:129")
    if qpipe and not noq: a("L_qp_done2:")
    a("v_mov_b32 v16, 1"); a(f"ds_write_b32 v10, v16 offset:{C_QRDY}")
    stamp(2)
    a("s_lshl_b32 s50, s6, 3"); a("s_add_u32 s50, s50, s4"); a("s_lshl_b32 s50, s50, 10"); a(f"s_add_u32 s50, s50, {W_MLG}")
    a("v_and_b32 v17, 1, v0"); a("v_lshlrev_b32 v16, 4, v17")
    a("v_lshrrev_b32 v18, 1, v14"); a("v_lshl_add_u32 v18, v18, 7, v16"); a("v_add_u32 v25, s50, v18")
    a("s_lshl_b32 s51, s7, 7"); a("s_add_u32 s50, s50, s51"); a("v_add_u32 v24, s50, v16")
    a("v_add_u32 v27, v16, v10")
    a("v_lshl_add_u32 v28, v17, 2, v10")
    a("s_getreg_b32 s52, hwreg(HW_REG_XCC_ID, 0, 4)")
    a("s_xor_b32 s53, s52, s33"); a("v_mov_b32 v41, s53")
    a("s_waitcnt vmcnt(0)")
    spin_all4(44, "v10", C_PF, sleep=4)
    a(f"ds_read_b128 v[44:47], v27 offset:{C_MX}"); a(f"ds_read_b128 v[48:51], v27 offset:{C_LS}")
    a("s_waitcnt lgkmcnt(0)")
    a("v_max_f32 v40, v44, v45"); a("v_max3_f32 v40, v40, v46, v47")
    a("v_add_f32 v48, v48, v49"); a("v_add_f32 v50, v50, v51"); a("v_add_f32 v42, v48, v50")
    a("s_mov_b64 exec, 3")
    a(f"global_store_dwordx4 v24, v[40:43], s[30:31]{'' if mlplain else ' sc1'}")
    a("s_mov_b64 exec, -1")
    a(f"s_mov_b32 s55, {ml_rounds}")
    stamp(3)
    spin_ge("v16", "v10", C_FILL, ml_fill, sleep=8)
    a("s_branch L_ml_first")
    a("L_ml_retry:")
    budget()
    a("s_cmp_eq_u32 s55, 1000"); a("s_cbranch_scc1 L_ml_first")
    a("s_andn2_b64 s[56:57], s[56:57], vcc"); a("s_cbranch_scc1 L_ml_pub")
    a("s_sub_u32 s55, s55, 1"); a("s_cbranch_scc0 L_ml_first")
    a("L_ml_pub:")
    a("s_mov_b64 exec, 3")
    a("global_store_dwordx4 v24, v[40:43], s[30:31] sc1")
    a("s_mov_b64 exec, -1")
    a("s_movk_i32 s55, 1000")
    a("L_ml_first:")
    a("s_sleep 4")
    a("global_load_dwordx4 v[48:51], v25, s[30:31] sc1")
    a("s_waitcnt vmcnt(0)")
    a("v_xor_b32 v16, s33, v49"); a("v_lshrrev_b32 v17, 4, v16"); a("v_bitop3_b32 v17, v51, s33, v17 bitop3:0xbe")
    a("v_cmp_ne_u32 s[56:57], s52, v16")
    a("v_cmp_ne_u32 vcc, 0, v17"); a("s_cbranch_vccnz L_ml_retry")
    a("s_cmp_eq_u64 s[56:57], 0"); a("s_cbranch_scc1 L_ml_ok")
    a("s_mov_b64 exec, 3")
    a("global_store_dwordx4 v24, v[40:43], s[30:31] sc1")
    a("s_mov_b64 exec, -1")
    a("L_ml_ok:")
    a(f"s_mov_b32 s50, {hex(f2u(CEXP))}")
    a("v_mov_b32 v44, v48")
    a("s_cmp_eq_u64 s[56:57], 0"); a(f"s_cselect_b32 s54, {0 if forcesc1 else 1}, 0")
    for m in ("quad_perm:[2,3,0,1]", "row_ror:4", "row_ror:8"): a(f"v_max_f32_dpp v44, v44, v44 {m} {DPPF}")
    a("v_sub_f32 v45, v48, v44"); a("v_sub_f32 v46, v40, v44")
    a("v_mul_f32 v45, s50, v45"); a("v_mul_f32 v46, s50, v46")
    a("v_exp_f32 v45, v45"); a("v_exp_f32 v46, v46")
    a("v_mul_f32 v45, v45, v50")
    for m in ("quad_perm:[2,3,0,1]", "row_ror:4", "row_ror:8"): a(f"v_add_f32_dpp v45, v45, v45 {m} {DPPF}")
    a("v_rcp_f32 v45, v45")
    a("v_mov_b32 v17, s54")
    a("v_mul_f32 v46, v46, v45")
    a(f"ds_write_b32 v28, v46 offset:{C_FAC}")
    a(f"ds_write_b32 v10, v17 offset:{C_LOC}")
    a("v_mov_b32 v16, 1"); a(f"ds_write_b32 v10, v16 offset:{C_FACF}")
    stamp(4)
    if womode == 'q':
        a("s_cmp_eq_u32 s7, 7"); a("s_cbranch_scc1 L_q_exit")
        a("s_mov_b32 s36, s16"); a("s_mov_b32 s37, s17"); a("s_mov_b32 s38, 3670016")
        a(f"s_mul_i32 s48, s4, {512*896}"); a("s_lshl_b32 s55, s7, 7"); a("s_add_u32 s48, s48, s55"); a(f"s_add_u32 s48, s48, {(64-NQ)*8*896}")
        a("s_movk_i32 s57, 896")
        a("v_mad_u32_u24 v24, v2, s57, v3"); a("v_xor_b32 v25, 64, v3"); a("v_mad_u32_u24 v25, v2, s57, v25")
        a(f"s_mov_b32 m0, {WOB + (64-NQ)*1024}"); a(f"s_mov_b32 s50, {NQ//2}")
        spin_ge("v17", "v10", C_FILL, wo_fill - 1, sleep=4)
        spin_ge("v17", "v10", C_FILL, wo_fill, sleep=0)
        if not nowo:
            a("L_qwo:")
            for k in range(2):
                a(f"buffer_load_dwordx4 v{24+k}, s[36:39], s48 offen{wof} lds")
                a("s_add_u32 m0, m0, 1024"); a(f"s_add_u32 s48, s48, {8*896}")
            a("s_sub_u32 s50, s50, 1"); a("s_cmp_lg_u32 s50, 0"); a("s_cbranch_scc1 L_qwo")
        a("s_waitcnt vmcnt(0)")
        a(f"ds_write_b32 v10, v16 offset:{C_WOF}")
        stamp(5)
        a("L_q_exit:")
    dump_stamps(7)
    a("s_endpgm")

    a("L_F:")
    a("s_cmp_eq_u32 s35, 4"); a("s_cbranch_scc0 L_end")
    a("v_and_b32 v14, 15, v0"); a("v_lshrrev_b32 v15, 4, v0")
    tile_tr_addr("v20", None, F2B)
    for tau in range(1, 4): a(f"v_xor_b32 v{20+tau}, {32*tau}, v20")
    a("s_mul_i32 s50, s34, 9363"); a("s_lshr_b32 s50, s50, 16"); a("s_mul_i32 s51, s50, 7"); a("s_sub_u32 s51, s34, s51")
    a("s_lshl_b32 s52, s50, 12"); a(f"s_add_u32 s52, s52, {W_GU}"); a("v_add_u32 v25, s52, v9")
    a("s_mul_i32 s52, s50, 28"); a("s_add_u32 s52, s52, s51"); a("s_lshl_b32 s52, s52, 9"); a(f"s_add_u32 s52, s52, {W_OG}")
    a("v_and_b32 v17, 3, v14"); a("v_lshrrev_b32 v18, 2, v14"); a("v_lshlrev_b32 v18, 6, v18"); a("v_lshl_add_u32 v18, v15, 4, v18")
    a(f"s_movk_i32 s51, {7*512}"); a("v_mad_u32_u24 v16, v17, s51, v18"); a("v_add_u32 v24, s52, v16")
    if warm & 4:
        a(f"global_load_dword v30, v24, s[30:31] {warmfl}"); a(f"global_load_dword v31, v24, s[30:31] offset:256 {warmfl}")
    a("v_lshlrev_b32 v26, 3, v0"); a(f"v_add_u32 v26, {HA}, v26")
    a("v_lshlrev_b32 v16, 8, v17"); a("v_lshl_add_u32 v27, v15, 4, v16"); a(f"v_add_u32 v27, {HA}, v27")
    a("s_mov_b32 s44, 0xf0f0f0f0"); a("s_mov_b32 s45, 0xf0f0f0f0"); a("s_mov_b32 s46, 0xff00ff00"); a("s_mov_b32 s47, 0xff00ff00")
    spin_ge("v16", "v10", C_FILL, 1, sleep=2)
    for s in range(4):
        for tau in range(4):
            r = 128 + (s * 4 + tau) * 4
            a(f"ds_read_b64_tr_b16 v[{r}:{r+1}], v{20+tau} offset:{4096*s}")
            a(f"ds_read_b64_tr_b16 v[{r+2}:{r+3}], v{20+tau} offset:{4096*s+512}")
    a(f"v_mov_b32 v16, {BIG}"); a("s_waitcnt lgkmcnt(0)"); a(f"ds_write_b32 v10, v16 offset:{C_FP}")
    stamp(1)
    if noffn: a("s_endpgm")
    if gu_fill is None: spin_ge("v16", "v10", C_QRDY, 1, sleep=4)
    else: spin_ge("v16", "v10", C_FILL, gu_fill, sleep=8)
    a("L_h_retry:")
    for i in range(4): a(f"global_load_dwordx4 v[{64+4*i}:{67+4*i}], v25, s[30:31] offset:{1024*i} sc1")
    budget()
    a("s_waitcnt vmcnt(0)")
    tagcheck([f"v{65+2*i}" for i in range(8)], "v16", "v17", "L_h_retry")
    stamp(2)
    for k in range(4):
        a(f"v_lshlrev_b32 v{84+2*k}, 16, v{64+2*k}"); a(f"v_and_b32 v{85+2*k}, 0xffff0000, v{64+2*k}")
        a(f"v_lshlrev_b32 v{92+2*k}, 16, v{72+2*k}"); a(f"v_and_b32 v{93+2*k}, 0xffff0000, v{72+2*k}")
    a(f"s_mov_b32 s50, {hex(f2u(-LOG2E))}")
    for i in range(8): a(f"v_mul_f32 v{100+i}, s50, v{84+i}")
    for i in range(8): a(f"v_exp_f32 v{100+i}, v{100+i}")
    for i in range(8): a(f"v_add_f32 v{100+i}, 1.0, v{100+i}")
    for i in range(8): a(f"v_rcp_f32 v{100+i}, v{100+i}")
    for i in range(8): a(f"v_mul_f32 v{100+i}, v{100+i}, v{84+i}")
    for i in range(8): rbf(f"v{100+i}", f"v{100+i}")
    for i in range(8): a(f"v_mul_f32 v{100+i}, v{100+i}, v{92+i}")
    for k in range(4): a(f"v_cvt_pk_bf16_f32 v{108+k}, v{100+2*k}, v{101+2*k}")
    a("ds_write_b64 v26, v[108:109]"); a("ds_write_b64 v26, v[110:111] offset:512")
    for s in range(4): a(f"ds_read_b128 v[{64+4*s}:{67+4*s}], v27 offset:{64*s}")
    a("s_waitcnt lgkmcnt(0)")
    for s in range(4):
        for tau in range(4):
            r = 128 + (s * 4 + tau) * 4
            c = "0" if s == 0 else f"v[{84+4*tau}:{87+4*tau}]"
            a(f"v_mfma_f32_16x16x32_bf16 v[{84+4*tau}:{87+4*tau}], v[{r}:{r+3}], v[{64+4*s}:{67+4*s}], {c}")
    for k in (41, 43, 45, 47): a(f"v_mov_b32 v{k}, s33")
    for r in range(4):
        a(f"v_cndmask_b32 v16, v{84+r}, v{88+r}, s[44:45]"); a(f"v_cndmask_b32 v17, v{92+r}, v{96+r}, s[44:45]")
        a(f"v_cndmask_b32 v{40+2*r}, v16, v17, s[46:47]")
    a("global_store_dwordx4 v24, v[40:43], s[30:31] sc1")
    a("global_store_dwordx4 v24, v[44:47], s[30:31] offset:256 sc1")
    stamp(3)
    dump_stamps(4)
    a("s_endpgm")

    a("L_R:")
    if prefetch_code:
        a("s_getpc_b64 s[48:49]")
        a("L_pc:")
        a(f"s_sub_u32 s48, s48, L_pc-{KNAME}_kernel"); a("s_subb_u32 s49, s49, 0")
        a("s_lshl_b32 s50, s5, 10"); a(f"s_cmp_lt_u32 s50, L_fail-{KNAME}_kernel-1024"); a("s_cbranch_scc0 L_nopf")
        a("v_add_u32 v16, s50, v9")
        a("global_load_dwordx4 v[20:23], v16, s[48:49]")
        a("L_nopf:")
    a("s_cmp_lg_u32 s2, 248"); a("s_cbranch_scc1 L_r_noe")
    for k in range(4): a(f"v_add_u32 v{28+k}, {W_H2 + k*28*1024}, v9")
    spin_ge("v16", "v10", C_FILL, 33, sleep=16)
    if not notail: mpoll([(48 + 4 * k, f"v{28+k}", 0) for k in range(4)], "ew", 16, sleep=h2sleep)
    a("s_mov_b64 exec, 1")
    a("v_mov_b32 v16, 0"); a("v_mov_b32 v17, s33")
    a("global_store_dword v16, v17, s[30:31]")
    a("s_branch L_r_exit")
    a("L_r_noe:")
    a("s_sub_u32 s50, s2, 128"); a("s_cmp_ge_u32 s50, 112"); a("s_cbranch_scc1 L_r_exit")
    a("s_mul_i32 s51, s50, 2341"); a("s_lshr_b32 s51, s51, 16"); a("s_mul_i32 s52, s51, 28"); a("s_sub_u32 s52, s50, s52")
    a("s_mul_i32 s53, s51, 448"); a("s_lshl_b32 s54, s52, 4"); a("s_add_u32 s53, s53, s54")
    a("v_lshrrev_b32 v16, 5, v0"); a("v_and_b32 v17, 7, v0"); a("v_lshl_add_u32 v18, v16, 3, v17")
    a("v_add_u32 v19, s53, v18"); a("v_lshlrev_b32 v24, 1, v19")
    a("s_lshr_b32 s53, s52, 2"); a("s_mul_i32 s54, s51, 7"); a("s_add_u32 s53, s53, s54"); a("s_lshl_b32 s53, s53, 9")
    a("s_and_b32 s54, s52, 3"); a("s_lshl_b32 s54, s54, 6"); a("s_add_u32 s53, s53, s54"); a(f"s_add_u32 s53, s53, {W_OG}")
    a("v_bfe_u32 v19, v18, 1, 1"); a("v_lshlrev_b32 v19, 8, v19"); a("v_lshrrev_b32 v20, 2, v18"); a("v_lshl_add_u32 v19, v20, 4, v19")
    a("v_and_b32 v20, 1, v18"); a("v_lshl_add_u32 v19, v20, 3, v19"); a("v_add_u32 v19, s53, v19")
    a("v_bfe_u32 v21, v0, 3, 2"); a(f"s_movk_i32 s54, {28*512}")
    a("v_mad_u32_u24 v25, v21, s54, v19")
    a(f"v_add_u32 v27, {4*28*512}, v25"); a(f"v_add_u32 v28, {8*28*512}, v25")
    a("v_min_u32 v22, 1, v21"); a("v_add_u32 v22, 12, v22"); a("v_mad_u32_u24 v29, v22, s54, v19")
    a("v_cmp_gt_u32 s[44:45], 2, v21")
    a("s_lshl_b32 s56, s50, 10"); a(f"s_add_u32 s56, s56, {W_H2}"); a("v_add_u32 v26, s56, v9")
    spin_ge("v16", "v10", C_FILL, og_fill - 1, sleep=16)
    spin_ge("v16", "v10", C_FILL, og_fill, sleep=1)
    stamp(1)
    if notail: stamp(5); dump_stamps(6); a("s_endpgm")
    a("global_load_ushort v30, v24, s[8:9]")
    a("s_branch L_og_first")
    a("L_og_retry:")
    budget()
    a("s_waitcnt vmcnt(0)")
    a("L_og_first:")
    for k, va in enumerate(("v25", "v27", "v28", "v29")): a(f"global_load_dwordx2 v[{32+2*k}:{33+2*k}], {va}, s[30:31] sc1")
    def gate():
        a("s_waitcnt vmcnt(1)")
        tagcheck(["v33", "v35", "v37", "v39"], "v16", "v17", "L_og_retry")
        a("v_cndmask_b32 v38, 0, v38, s[44:45]"); a("v_add_f32 v32, v32, v34"); a("v_add_f32 v36, v36, v38"); a("v_add_f32 v32, v32, v36")
        a(f"v_add_f32_dpp v32, v32, v32 row_ror:8 {DPPF}")
        swapred("v_add_f32", "v32", "v33", 16)
        rbf("v32", "v32")
        a(f"v_mul_f32 v33, {hex(f2u(-LOG2E))}, v32"); a("v_exp_f32 v33, v33"); a("v_add_f32 v33, 1.0, v33"); a("v_rcp_f32 v33, v33")
        a("v_mul_f32 v32, v32, v33"); rbf("v32", "v32")
        a("v_lshlrev_b32 v30, 16, v30")
        stamp(2)
    mpoll([(48, "v26", 0)], "h2", 16, sleep=h2sleep, pre=gate)
    stamp(4)
    a("v_permlane32_swap_b32 v48, v50"); a("v_add_f32 v48, v48, v50")
    swapred("v_add_f32", "v48", "v50", 16)
    a(f"v_add_f32_dpp v48, v48, v48 row_ror:8 {DPPF}")
    rbf("v48", "v48")
    a("v_mul_f32 v48, v48, v32"); rbf("v48", "v48")
    a("v_add_f32 v48, v48, v30"); a("v_cvt_pk_bf16_f32 v48, v48, v48")
    a("s_mov_b32 exec_lo, 0xff"); a("s_mov_b32 exec_hi, 0xff")
    a("global_store_short v24, v48, s[26:27]")
    a("L_r_exit:")
    stamp(5)
    dump_stamps(6)
    a("L_end:")
    a("s_endpgm")
    a("L_fail:")
    a("s_mov_b64 exec, 1")
    a("s_lshl_b32 s60, s3, 2"); a("s_or_b32 s61, s2, 0xbad00000")
    a("v_mov_b32 v16, s60"); a("v_mov_b32 v17, s61")
    a("global_store_dword v16, v17, s[28:29]")
    a("s_endpgm")
    a.raw('.section .rodata,"a"'); a.raw(".p2align 6"); a.raw(f".amdhsa_kernel {KNAME}_kernel")
    a.raw("  .amdhsa_next_free_vgpr 256"); a.raw("  .amdhsa_next_free_sgpr 96"); a.raw("  .amdhsa_accum_offset 256")
    a.raw("  .amdhsa_group_segment_fixed_size 0"); a.raw("  .amdhsa_kernarg_size 96"); a.raw("  .amdhsa_user_sgpr_count 2")
    a.raw("  .amdhsa_user_sgpr_kernarg_segment_ptr 1"); a.raw("  .amdhsa_system_sgpr_workgroup_id_x 1"); a.raw(".end_amdhsa_kernel")
    return a.text()

STAMPS = {'C': 11, 'L': 4, 'Q': 7, 'F': 4, 'R': 6}
if __name__ == "__main__":
    import ast
    kw = {}
    for x in sys.argv[2:]:
        k, v = x.split("=", 1)
        try: kw[k] = ast.literal_eval(v)
        except Exception: kw[k] = v
    open(sys.argv[1], "w").write(gen(**kw))
```

```python
import sys, struct
from asmlib import Asm
KNAME = "recurrent_scan__gqa_block_cached__glu_gated_swiglu__decode"

SLOT = 16384; NS = 9
RING = 0; RING_END = RING + NS * SLOT; BIGW = 6 * SLOT; WOB = 5 * SLOT; F2B = 8 * SLOT
CTRL = BIGW + 57344; XN = CTRL + 256; QI = XN + 3584; PB = QI + 1024; HA = PB + 2048; OAI = HA + 1024; LDS_END = OAI + 128; OI = XN
assert LDS_END <= 163840
C_CP = 0; C_FP = 16; C_FILL = 32; C_XNF = 48; C_QRDY = 64; C_MXF = 80; C_PF = 96; C_FACF = 112
C_MX = 128; C_LS = 160; C_FAC = 192; C_TAIL = 208; C_OF = 224; C_ALL = 204; C_LOC = 200
OA = None
W_E = 0; W_QG = 0x1000; W_GU = 0x20000; W_OG = 0x40000; W_MLG = 0x80000; W_H1 = 0x100000; W_H2 = 0x200000; W_PG = 0x90000; W_GP = 0x91000; W_DIAG = 0x400000
BIG = 1000
DEFCLS = 'g'
CEXP = 0.09016844005556021
LOG2E = 1.4426950408889634
def f2u(f): return struct.unpack("<I", struct.pack("<f", f))[0]

def gen(diag=False, kvflags="nt", wflags="nt", woflags="", win=20, w0=28, prefetch_code=True, qpoll_fill=3, cls='g', kvsleep=0,
        notail=False, nowo=False, noffn=False, og_fill=32, gu_fill=28, h1sleep=2, h2sleep=0, qsleep=4, ml_fill=24, ml_rounds=4, forcesc1=False,
        wo_start=19, wo_per=6, wwo=25, mlplain=True, womode='L', wo_fill=32, wo_n1=0,
        catch=0, wboost=30, wwoboost=32, tau=57, tauw=61, theta=40, t0item=2, h1seq=True, vspin=True, palign=12, pad=0, h2off=0x200000, touch_out=False, tlbwarm=False, endboost=2, h1mode='tight', noew=False, nA=10, nB=2, qlocal=True, oglocal=True, q_rounds=6, wh=22, wwoh=27, hlate=0, all_rounds=4, outfl='', efl='', startboost=0, noq=False, pubfl='sc1', ogfl='sc1', noogpoll=False, nogupoll=False):
    a = Asm()
    W_H2 = h2off
    assert 17 <= win <= 32
    qpipe = 0; warm = 0; rounds1 = rounds2 = None
    kvf = (" " + kvflags) if kvflags else ""
    wf = (" " + wflags) if wflags else ""
    wof = (" " + woflags) if woflags else ""
    hdr = open("cdna_kernels/" + KNAME + ".s.ref").read().split("; Override launch")[0]
    a.raw(hdr.rstrip())
    a.raw(f"; @launch grid=(256,1,1) block=(512,1,1) lds={LDS_END}")
    a.raw('.amdgcn_target "amdgcn-amd-amdhsa--gfx950"')
    a.raw(".text"); a.raw(f".globl {KNAME}_kernel")
    if palign: a.raw(f".p2align {palign}")
    if pad: a.raw(f".fill {pad//4}, 4, 0xbf800000")
    a.raw(".p2align 8"); a.raw(f".type {KNAME}_kernel,@function"); a.raw(f"{KNAME}_kernel:")
    def stamp(i):
        if diag:
            a(f"s_memrealtime s[64:65]"); a("s_waitcnt lgkmcnt(0)"); a(f"v_writelane_b32 v247, s64, {2*i}"); a(f"v_writelane_b32 v247, s65, {2*i+1}")
    def dump_stamps(n):
        if diag:
            a("s_mov_b32 exec_lo, -1"); a("s_mov_b32 exec_hi, 0")
            a("s_lshl_b32 s60, s2, 3"); a("s_add_u32 s60, s60, s3"); a("s_lshl_b32 s60, s60, 7"); a(f"s_add_u32 s60, s60, {W_DIAG}")
            a("v_lshl_add_u32 v246, v0, 2, s60")
            a("global_store_dword v246, v247, s[30:31]")
    lbl = [0]
    def newlabel(p):
        lbl[0] += 1; return f"L_{p}_{lbl[0]}"
    def budget():
        a("s_sub_u32 s62, s62, 1"); a("s_cbranch_scc1 L_fail")
    def _spin_tail(L, Ld, sleep):
        a(f"s_cbranch_scc1 {Ld}")
        if sleep: a(f"s_sleep {sleep}")
        a("s_sub_u32 s62, s62, 1"); a(f"s_cbranch_scc0 {L}"); a("s_branch L_fail"); a(f"{Ld}:")
    def spin_ge(vtmp, vctl, off, sval, sleep=1):
        L = newlabel("spin"); Ld = newlabel("spind")
        a(f"{L}:")
        a(f"ds_read_b32 {vtmp}, {vctl} offset:{off}")
        a("s_waitcnt lgkmcnt(0)")
        if vspin:
            a(f"v_cmp_le_u32 vcc, {sval}, {vtmp}")
            a(f"s_cbranch_vccnz {Ld}")
            if sleep: a(f"s_sleep {sleep}")
            a("s_sub_u32 s62, s62, 1"); a(f"s_cbranch_scc0 {L}"); a("s_branch L_fail"); a(f"{Ld}:")
        else:
            a(f"v_readfirstlane_b32 s59, {vtmp}")
            a(f"s_cmp_ge_u32 s59, {sval}")
            _spin_tail(L, Ld, sleep)
    def spin_all4(vt, vctl, off, sleep=1):
        L = newlabel("spin4"); Ld = newlabel("spin4d")
        a(f"{L}:")
        a(f"ds_read_b128 v[{vt}:{vt+3}], {vctl} offset:{off}")
        a("s_waitcnt lgkmcnt(0)")
        a(f"v_min_u32 v{vt}, v{vt}, v{vt+1}")
        a(f"v_min3_u32 v{vt}, v{vt}, v{vt+2}, v{vt+3}")
        if vspin:
            a(f"v_cmp_ne_u32 vcc, 0, v{vt}")
            a(f"s_cbranch_vccnz {Ld}")
            if sleep: a(f"s_sleep {sleep}")
            a("s_sub_u32 s62, s62, 1"); a(f"s_cbranch_scc0 {L}"); a("s_branch L_fail"); a(f"{Ld}:")
        else:
            a(f"v_readfirstlane_b32 s59, v{vt}")
            a("s_cmp_lg_u32 s59, 0")
            _spin_tail(L, Ld, sleep)
    def tagcheck(tags, vacc, vacc2, retry):
        h = (len(tags) + 1) // 2
        t1, t2 = tags[:h], tags[h:]
        a(f"v_xor_b32 {vacc}, s33, {t1[0]}")
        if t2: a(f"v_xor_b32 {vacc2}, s33, {t2[0]}")
        for i in range(1, h):
            a(f"v_bitop3_b32 {vacc}, {t1[i]}, s33, {vacc} bitop3:0xbe")
            if i < len(t2): a(f"v_bitop3_b32 {vacc2}, {t2[i]}, s33, {vacc2} bitop3:0xbe")
        if t2: a(f"v_or_b32 {vacc}, {vacc}, {vacc2}")
        a(f"v_cmp_ne_u32 vcc, 0, {vacc}")
        a(f"s_cbranch_vccnz {retry}")
    def mpoll(loads, name, vt, sm=72, pre=None, alt=None, sleep=0, preset=False, hook=None):
        n = len(loads)
        for i, (d, va, off) in enumerate(loads):
            if preset: a(f"s_mov_b64 exec, s[{sm+2*i}:{sm+2*i+1}]")
            a(f"global_load_dwordx4 v[{d}:{d+3}], {va}, s[30:31] offset:{off} sc1")
        if preset: a("s_mov_b64 exec, -1")
        if pre: pre()
        a(f"s_branch L_{name}_chk")
        a(f"L_{name}_retry:")
        if hook: hook()
        if sleep: a(f"s_sleep {sleep}")
        if alt:
            a("s_add_u32 s63, s63, 1"); a("s_and_b32 s61, s63, 3"); a("s_cmp_lt_u32 s61, 2"); a(f"s_cbranch_scc0 L_{name}_noalt")
            a(f"v_xor_b32 {alt[0]}, {alt[0]}, {alt[1]}"); a(f"L_{name}_noalt:")
        for i, (d, va, off) in enumerate(loads):
            a(f"s_mov_b64 exec, s[{sm+2*i}:{sm+2*i+1}]"); a(f"s_cbranch_execz L_{name}_sk{i}")
            a(f"global_load_dwordx4 v[{d}:{d+3}], {va}, s[30:31] offset:{off} sc1")
            a(f"L_{name}_sk{i}:")
        a("s_mov_b64 exec, -1")
        budget()
        a(f"L_{name}_chk:")
        a("s_waitcnt vmcnt(0)")
        for i, (d, va, off) in enumerate(loads): a(f"v_xor_b32 v{vt+i}, s33, v{d+1}")
        for i, (d, va, off) in enumerate(loads): a(f"v_bitop3_b32 v{vt+i}, v{d+3}, s33, v{vt+i} bitop3:0xbe")
        for i, (d, va, off) in enumerate(loads): a(f"v_cmp_ne_u32 s[{sm+2*i}:{sm+2*i+1}], 0, v{vt+i}")
        if n == 1: a(f"s_cmp_lg_u64 s[{sm}:{sm+1}], 0")
        else:
            a(f"s_or_b64 vcc, s[{sm}:{sm+1}], s[{sm+2}:{sm+3}]")
            for i in range(2, n): a(f"s_or_b64 vcc, vcc, s[{sm+2*i}:{sm+2*i+1}]")
        rounds = {"h1": rounds1, "h2": rounds2}.get(name)
        if rounds is not None:
            a("s_add_u32 s82, s82, 1"); a(f"s_cmp_lt_u32 s82, {rounds}")
        a(f"s_cbranch_scc1 L_{name}_retry")
    def rbf(dst, src):
        a(f"v_cvt_pk_bf16_f32 {dst}, {src}, {src}")
        a(f"v_and_b32 {dst}, 0xffff0000, {dst}")
    DPPF = "row_mask:0xf bank_mask:0xf"
    def red16(op, v):
        for m in ("quad_perm:[1,0,3,2]", "quad_perm:[2,3,0,1]", "row_half_mirror", "row_mirror"):
            a(f"{op}_dpp {v}, {v}, {v} {m} {DPPF}")
    def swapred(op, v, t, which):
        a(f"v_mov_b32 {t}, {v}")
        a(f"v_permlane{which}_swap_b32 {v}, {t}")
        a(f"{op} {v}, {v}, {t}")

    if diag: a("s_memrealtime s[66:67]")
    a("s_cmp_ge_u32 s2, 256")
    a("s_cbranch_scc1 L_end")
    a("s_load_dwordx16 s[8:23], s[0:1], 0")
    a("s_load_dwordx8 s[24:31], s[0:1], 64")
    a("v_lshrrev_b32 v1, 6, v0")
    a("v_and_b32 v0, 63, v0")
    a("v_readfirstlane_b32 s3, v1")
    a("s_and_b32 s4, s2, 7"); a("s_lshr_b32 s5, s2, 3"); a("s_and_b32 s6, s5, 3"); a("s_lshr_b32 s7, s5, 2")
    assert 5 * nA + 3 * nB == 56
    a(f"s_mul_i32 s48, s4, {nA}"); a(f"s_mul_i32 s49, s4, {nB}"); a(f"s_add_u32 s49, s49, {4*nA - 4*nB}")
    a("s_cmp_lt_u32 s4, 4"); a("s_cselect_b32 s48, s48, s49"); a(f"s_cselect_b32 s34, {24-nA}, {24-nB}")
    a("s_cmp_eq_u32 s4, 7"); a(f"s_cselect_b32 s34, {24-nA}, s34"); a("s_cselect_b32 s55, 0, 14")
    a("s_cmp_lt_u32 s5, s55"); a("s_cselect_b32 s35, 4, 0")
    a("s_add_u32 s48, s48, s5"); a("s_sub_u32 s48, s48, s34"); a("s_sub_u32 s49, s48, 28")
    a("s_cmp_lt_u32 s48, 28"); a("s_cselect_b32 s49, s48, s49"); a("s_cselect_b32 s48, 2, 3")
    a("s_cmp_ge_u32 s5, s34"); a("s_cselect_b32 s35, s48, s35")
    a("s_lshl_b32 s48, s4, 3"); a("s_add_u32 s48, s48, s5"); a("s_sub_u32 s48, s48, 24")
    a("s_movk_i32 s57, 3584"); a("s_mov_b32 s38, 1605632")
    a("s_cmp_ge_u32 s5, 24"); a("s_cselect_b32 s35, 1, s35"); a("s_cselect_b32 s49, s48, s49"); a("s_cselect_b32 s57, 8192, s57"); a("s_cselect_b32 s38, 3670016, s38")
    a("s_mov_b32 s39, 0x20000")
    a("s_mul_i32 s55, s5, 896"); a("s_add_u32 s55, s55, s4")
    a("s_cmp_eq_u32 s35, 4"); a("s_cselect_b32 s48, s55, s49"); a("s_cselect_b32 s57, 896, s57"); a("s_cselect_b32 s61, 8, 28")
    a(f"s_cselect_b32 s60, {(F2B-BIGW)//1024}, 0"); a("s_lshl_b32 s48, s48, 7"); a("s_lshl_b32 s60, s60, 10"); a(f"s_add_u32 s60, s60, {BIGW}")
    a("s_cmp_eq_u32 s35, 0"); a("s_cselect_b32 s61, 0, s61")
    a("s_lshl_b32 s56, s57, 3")
    a("s_lshl_b32 s52, s6, 3"); a("s_add_u32 s52, s52, s4"); a("s_lshl_b32 s52, s52, 21"); a("s_lshl_b32 s53, s7, 18"); a("s_add_u32 s54, s52, s53")
    a("s_mov_b32 s42, 0x4000000"); a("s_mov_b32 s43, 0x20000")
    a("v_lshlrev_b32 v9, 4, v0")
    a(f"v_mov_b32 v10, {CTRL}")
    a("v_lshrrev_b32 v2, 3, v0"); a("v_and_b32 v3, 7, v0"); a("v_and_b32 v8, 2, v2"); a("v_xor_b32 v3, v3, v8")
    a("v_lshlrev_b32 v3, 4, v3")
    a("v_mad_u32_u24 v24, v2, s57, v3"); a("v_xor_b32 v25, 64, v3"); a("v_mad_u32_u24 v25, v2, s57, v25")
    a("v_lshrrev_b32 v28, 5, v0"); a("v_and_b32 v29, 31, v0"); a("v_lshlrev_b32 v30, 9, v28"); a("v_xor_b32 v15, v29, v28")
    for p in range(8):
        if p: a(f"v_xor_b32 v{16+p}, {2*p}, v15"); a(f"v_lshl_add_u32 v{16+p}, v{16+p}, 4, v30")
        else: a("v_lshl_add_u32 v16, v15, 4, v30")
    a("s_mov_b32 s62, 0x20000")
    a("s_cmp_eq_u32 s3, 4")
    a("s_waitcnt lgkmcnt(0)")
    if diag: a("v_writelane_b32 v247, s66, 0"); a("v_writelane_b32 v247, s67, 1")
    a("s_cbranch_scc0 L_others")

    if diag == 3: a("s_memrealtime s[84:85]")
    a("s_cmp_eq_u32 s35, 2"); a("s_cselect_b32 s36, s20, s22"); a("s_cselect_b32 s37, s21, s23")
    a("s_cmp_eq_u32 s35, 1"); a("s_cselect_b32 s36, s14, s36"); a("s_cselect_b32 s37, s15, s37")
    a("s_cmp_eq_u32 s35, 4"); a("s_cselect_b32 s36, s24, s36"); a("s_cselect_b32 s37, s25, s37")
    a("s_mov_b32 m0, s60"); a("s_mov_b32 s40, s10"); a("s_mov_b32 s41, s11")
    a("s_setprio 3")
    a("s_mov_b32 s58, 1")
    a("s_cmp_eq_u32 s61, 0"); a("s_cbranch_scc1 L_ld_kv")
    if diag == 3: a("s_memrealtime s[86:87]")
    a("L_tile:")
    a(f"s_waitcnt vmcnt({w0-1})")
    a(f"buffer_load_dwordx4 v24, s[36:39], s48 offen{wf} lds")
    a("s_add_u32 m0, m0, 1024"); a("s_add_u32 s48, s48, s56")
    a(f"s_waitcnt vmcnt({w0-1})")
    a(f"buffer_load_dwordx4 v25, s[36:39], s48 offen{wf} lds")
    a("s_add_u32 m0, m0, 1024"); a("s_add_u32 s48, s48, s56")
    a("s_sub_u32 s61, s61, 1")
    a(f"s_cmp_lg_u32 s61, {28 - min(w0, 24)//2}"); a("s_cbranch_scc1 L_tile_nb"); a("s_waitcnt lgkmcnt(0)"); a("s_barrier"); a("s_movk_i32 s58, 100"); a("L_tile_nb:")
    a("s_cmp_lg_u32 s61, 0"); a("s_cbranch_scc1 L_tile")
    a("L_ld_kv:")
    if diag == 3: a("s_memrealtime s[88:89]")
    a("s_mov_b32 s52, s54"); a("s_mov_b32 s50, 0"); a("s_mov_b32 s51, 0"); a(f"s_mov_b32 s63, {NS*SLOT}"); a("s_mov_b32 s53, 5")
    a("s_sub_u32 s55, s35, 1"); a("s_cmp_lt_u32 s55, 3"); a("s_cselect_b32 s46, 1, 0"); a("s_cmp_eq_u32 s7, 7"); a("s_cselect_b32 s46, 0, s46")
    NWO = -(-64 // wo_per) if womode == 'L' else wo_n1
    NQ = 64 - NWO * wo_per if womode == 'q' else 0
    assert wo_start >= 19 and wo_start + NWO <= 30 and wo_per % 2 == 0
    def item_check(c):
        a(f"L_check{c}:")
        a("s_waitcnt lgkmcnt(0)")
        a("v_min3_u32 v40, v40, v41, v42")
        a("v_min3_u32 v40, v40, v43, v44")
        a("s_sub_u32 s56, s50, s53")
        a("v_readfirstlane_b32 s55, v40")
        a("s_cmp_gt_u32 s55, s56")
        a(f"s_cbranch_scc0 L_slow{c}")
        a(f"L_chk_done{c}:")
        if endboost and c == "P": a(f"s_cmp_ge_u32 s50, {32-endboost}"); a(f"s_cbranch_scc1 L_go{c}b")
        if wh: a("s_cmp_eq_u32 s46, 1"); a(f"s_cbranch_scc1 L_go{c}h")
    def item_body(c, w, nwo):
        a(f"L_go{c}:")
        if diag == 2:
            a("s_memrealtime s[70:71]"); a("s_waitcnt lgkmcnt(0)"); a("s_mov_b32 m0, s50"); a("v_writelane_b32 v60, s70, m0")
        if nwo:
            a("s_mov_b32 m0, s60")
            for k in range(nwo):
                a(f"s_waitcnt vmcnt({w-1})")
                a(f"buffer_load_dwordx4 v{24+(k&1)}, s[36:39], s48 offen{wof} lds")
                a("s_add_u32 m0, m0, 1024"); a(f"s_add_u32 s48, s48, {8*896}")
            a("s_mov_b32 s60, m0")
        nsig = max(0, w - 17 - nwo)
        for grp in range(4):
            if grp == 0: a("s_mov_b32 m0, s51")
            else:
                a("s_add_u32 m0, m0, 4096"); a("s_add_u32 s52, s52, 4096")
            if grp == 3:
                a(f"ds_read_b128 v[40:43], v10 offset:{C_CP}"); a(f"ds_read_b32 v44, v10 offset:{C_FP}")
            for q in range(4):
                n = grp * 4 + q
                a(f"s_waitcnt vmcnt({w-1})")
                if n == nsig:
                    a("v_mov_b32 v46, s50"); a(f"ds_write_b32 v10, v46 offset:{C_FILL}")
                a(f"buffer_load_dwordx4 v{16+(n&7)}, s[40:43], s52 offen offset:{1024*q}{kvf} lds")
        a("s_add_u32 s52, s52, 4096")
        a(f"s_add_u32 s51, s51, {SLOT}"); a("s_cmp_eq_u32 s51, s63"); a("s_cselect_b32 s51, 0, s51")
        a("s_add_u32 s50, s50, 1")
    def slow(c):
        a(f"L_slow{c}:")
        budget()
        a(f"ds_read_b128 v[40:43], v10 offset:{C_CP}"); a(f"ds_read_b32 v44, v10 offset:{C_FP}")
        a(f"s_branch L_check{c}")
    a("L_item:")
    a("s_cmp_lg_u32 s50, s58"); a("s_cbranch_scc1 L_nobar"); a("s_waitcnt lgkmcnt(0)"); a("s_barrier"); a("L_nobar:")
    a("s_cmp_lt_u32 s50, 5"); a("s_cbranch_scc1 L_chk_doneP")
    item_check("P")
    item_body("P", win, 0)
    a("L_afterP:")
    a("s_cmp_eq_u32 s50, 16"); a("s_cbranch_scc1 L_tov")
    a(f"s_cmp_eq_u32 s50, {wo_start}"); a("s_cbranch_scc1 L_towo")
    a("L_item_next:")
    a("s_cmp_lt_u32 s50, 32"); a("s_cbranch_scc1 L_item")
    stamp(1)
    a("v_mov_b32 v46, 32"); a("v_mov_b32 v47, 33")
    a("s_waitcnt vmcnt(16)")
    a(f"ds_write_b32 v10, v46 offset:{C_FILL}")
    a("s_waitcnt vmcnt(0)")
    a(f"ds_write_b32 v10, v47 offset:{C_FILL}")
    stamp(3)
    stamp(2)
    if diag == 3:
        for k in range(6): a(f"v_writelane_b32 v247, s{84+k}, {8+k}")
    if diag:
        a("s_lshl_b32 s60, s2, 8"); a(f"s_add_u32 s60, s60, {W_DIAG + 0x80000}"); a("v_lshl_add_u32 v61, v0, 2, s60")
        a("global_store_dword v61, v60, s[30:31]")
    dump_stamps(4)
    a("s_endpgm")

    a("L_others:")
    a("s_load_dword s32, s[30:31], 0")
    a("s_cmp_ge_u32 s3, 4"); a("s_cbranch_scc1 L_nox")
    a("s_sub_u32 s50, s35, 1"); a("s_cmp_ge_u32 s50, 3"); a("s_cbranch_scc1 L_nox")
    a("s_mul_i32 s50, s3, 896")
    a("v_add_u32 v11, s50, v9")
    a("v_mov_b32 v4, 0"); a("v_mov_b32 v5, 0"); a("v_mov_b32 v6, 0"); a("v_mov_b32 v7, 0")
    a("s_mov_b32 exec_hi, 0x00ffffff")
    a("global_load_dwordx4 v[4:7], v11, s[8:9]")
    a("s_mov_b32 exec_hi, -1")
    a("L_nox:")
    a("s_sub_u32 s50, s35, 1"); a("s_cmp_ge_u32 s50, 3"); a("s_cselect_b32 s51, 1, 0"); a("s_cselect_b32 s52, 4, 1")
    a("v_mov_b32 v12, s52"); a("v_mad_u32_u24 v12, v0, s51, v12")
    a("v_cmp_gt_u32 vcc, 4, v0")
    a("s_cmp_eq_u32 s35, 4"); a(f"s_cselect_b32 s50, 3, {BIG}")
    a("v_cndmask_b32 v12, 0, v12, vcc")
    a("v_mov_b32 v13, s50")
    a("v_cmp_eq_u32 vcc, 4, v0")
    a("v_lshl_add_u32 v14, v0, 2, v10")
    a("v_cndmask_b32 v12, v12, v13, vcc")
    a("ds_write_b32 v14, v12")
    a("s_waitcnt lgkmcnt(0)")
    a("s_mul_i32 s33, s32, 0x9E3779B1"); a("s_add_u32 s33, s33, 0x7F4A7C15")
    a("s_barrier")
    a("s_cmp_lt_u32 s3, 4"); a("s_cbranch_scc1 L_C")
    a("s_cmp_eq_u32 s3, 5"); a("s_cbranch_scc1 L_Q")
    a("s_cmp_eq_u32 s3, 6"); a("s_cbranch_scc1 L_F")
    a("s_branch L_R")

    slow("P")
    a("L_tov:")
    a("s_mov_b32 s40, s12"); a("s_mov_b32 s41, s13"); a("s_mov_b32 s52, s54")
    a("s_mov_b32 s51, 0"); a(f"s_mov_b32 s63, {5*SLOT}"); a("s_mov_b32 s53, 1")
    a("v_lshlrev_b32 v15, 1, v28"); a("v_xor_b32 v15, v15, v29")
    for p in range(8):
        f = 4 * (p & 1) + 8 * ((p >> 2) & 1)
        a(f"v_xor_b32 v{16+p}, {f}, v15")
        a(f"v_lshl_add_u32 v{16+p}, v{16+p}, 4, v30")
    a("s_mov_b32 s36, s16"); a("s_mov_b32 s37, s17"); a("s_mov_b32 s38, 3670016")
    a(f"s_mul_i32 s48, s4, {512*896}"); a("s_lshl_b32 s55, s7, 7"); a("s_add_u32 s48, s48, s55")
    a("s_movk_i32 s57, 896"); a(f"s_mov_b32 s60, {WOB}")
    a("v_mad_u32_u24 v24, v2, s57, v3"); a("v_xor_b32 v25, 64, v3"); a("v_mad_u32_u24 v25, v2, s57, v25")
    a("s_branch L_item")
    a("L_towo:")
    a("s_cmp_eq_u32 s7, 7"); a("s_cbranch_scc1 L_item")
    if nowo or NWO == 0: a("s_branch L_item")
    a("L_itemW:")
    item_check("W")
    item_body("W", wwo, wo_per)
    a("L_afterW:")
    a(f"s_cmp_lt_u32 s50, {wo_start + NWO}"); a("s_cbranch_scc1 L_itemW")
    a("s_branch L_item_next")
    slow("W")
    if endboost: item_body("Pb", wboost, 0); a("s_branch L_afterP")
    if wh:
        item_body("Ph", wh, 0); a("s_branch L_afterP")
        item_body("Wh", wwoh, wo_per); a("s_branch L_afterW")

    def tile_tr_addr(dst, tau_sgpr_or_const, base):
        a("v_lshrrev_b32 v16, 2, v14"); a("v_lshl_add_u32 v16, v15, 3, v16"); a("v_lshlrev_b32 v16, 7, v16")
        a("v_and_b32 v17, 1, v14"); a("v_lshl_add_u32 v16, v17, 3, v16")
        a("v_and_b32 v17, 1, v15"); a("v_lshrrev_b32 v18, 3, v14"); a("v_lshl_add_u32 v17, v17, 1, v18"); a("v_lshlrev_b32 v17, 1, v17")
        a("v_bfe_u32 v18, v14, 1, 1"); a("v_xor_b32 v17, v17, v18")
        if tau_sgpr_or_const is not None:
            a(f"s_lshl_b32 s50, {tau_sgpr_or_const}, 1"); a("v_xor_b32 v17, s50, v17")
        a(f"v_lshl_add_u32 {dst}, v17, 4, v16")
        if base: a(f"v_add_u32 {dst}, {base}, {dst}")
    a("L_C:")
    a("v_and_b32 v14, 15, v0")
    a("v_lshrrev_b32 v15, 4, v0")
    a("s_lshl_b32 s50, s3, 2"); a("v_add_u32 v12, s50, v10")
    a("v_mov_b32 v13, 1")
    a("v_mov_b32 v81, s33"); a("v_mov_b32 v83, s33")
    a("s_sub_u32 s50, s35, 1"); a("s_cmp_ge_u32 s50, 3"); a("s_cbranch_scc1 L_C_noproj")
    tile_tr_addr("v38", "s3", BIGW)
    a("v_and_b32 v17, 3, v14"); a("s_movk_i32 s50, 896"); a("v_mul_u32_u24 v16, s50, v17"); a("v_lshl_add_u32 v39, v15, 4, v16"); a(f"v_add_u32 v39, {XN}, v39")
    a("s_lshl_b32 s50, s49, 4")
    a("s_lshr_b32 s51, s49, 1"); a("s_lshl_b32 s51, s51, 1"); a("s_add_u32 s51, s51, s35"); a("s_sub_u32 s51, s51, 2"); a("s_lshl_b32 s51, s51, 7")
    a("s_and_b32 s52, s49, 1"); a("s_lshl_b32 s52, s52, 4"); a("s_add_u32 s51, s51, s52"); a(f"s_add_u32 s51, s51, {W_GU//16}")
    a(f"s_add_u32 s50, s50, {W_QG//16}")
    a("s_cmp_eq_u32 s35, 1"); a("s_cselect_b32 s50, s50, s51"); a("s_cselect_b32 s51, 1024, 32")
    a("s_lshl_b32 s52, s3, 2"); a("s_add_u32 s50, s50, s52")
    a("v_mad_u32_u24 v16, v14, s51, v15"); a("v_add_u32 v16, s50, v16"); a("v_lshlrev_b32 v37, 4, v16")
    if warm & 1:
        a("s_mov_b32 exec_lo, 0x0000000f"); a("s_mov_b32 exec_hi, 0")
        a(f"global_load_dword v245, v37, s[30:31] {warmfl}"); a("s_mov_b64 exec, -1")
        a("s_waitcnt vmcnt(1)")
    else:
        a("s_waitcnt vmcnt(0)")
    stamp(1)
    for i in range(4):
        a(f"v_lshlrev_b32 v{16+2*i}, 16, v{4+i}"); a(f"v_and_b32 v{17+2*i}, 0xffff0000, v{4+i}")
    a("v_add_f32 v24, v16, v17"); a("v_add_f32 v25, v18, v19"); a("v_add_f32 v26, v20, v21"); a("v_add_f32 v27, v22, v23")
    a("v_add_f32 v24, v24, v25"); a("v_add_f32 v26, v26, v27"); a("v_add_f32 v24, v24, v26")
    red16("v_add_f32", "v24"); swapred("v_add_f32", "v24", "v25", 16); swapred("v_add_f32", "v24", "v25", 32)
    a(f"v_mul_f32 v24, {hex(f2u(1.0/448))}, v24")
    a("v_mov_b32 v26, 0")
    a("s_mov_b32 exec_hi, 0x00ffffff")
    for i in range(8): a(f"v_sub_f32 v{28+i}, v{16+i}, v24")
    for i in range(8): a(f"v_fmac_f32 v26, v{28+i}, v{28+i}")
    a("s_mov_b32 exec_hi, -1")
    rbf("v25", "v24")
    red16("v_add_f32", "v26"); swapred("v_add_f32", "v26", "v27", 16); swapred("v_add_f32", "v26", "v27", 32)
    a(f"v_mul_f32 v26, {hex(f2u(1.0/448))}, v26")
    rbf("v26", "v26")
    a(f"v_add_f32 v26, {hex(f2u(1e-5))}, v26")
    rbf("v26", "v26")
    a("v_sqrt_f32 v26, v26")
    for i in range(8): a(f"v_sub_f32 v{28+i}, v{16+i}, v25")
    rbf("v26", "v26")
    a("v_rcp_f32 v26, v26")
    for i in range(4): a(f"v_cvt_pk_bf16_f32 v{16+i}, v{28+2*i}, v{29+2*i}")
    for i in range(4):
        a(f"v_lshlrev_b32 v{28+2*i}, 16, v{16+i}"); a(f"v_and_b32 v{29+2*i}, 0xffff0000, v{16+i}")
    for i in range(8): a(f"v_mul_f32 v{28+i}, v{28+i}, v26")
    for i in range(4): a(f"v_cvt_pk_bf16_f32 v{16+i}, v{28+2*i}, v{29+2*i}")
    a(f"v_add_u32 v11, {XN}, v11")
    a("s_mov_b32 exec_hi, 0x00ffffff")
    a("ds_write_b128 v11, v[16:19]")
    a("s_mov_b32 exec_hi, -1")
    a(f"ds_write_b32 v12, v13 offset:{C_XNF}")
    spin_all4(40, "v10", C_XNF, sleep=0)
    for s in range(14): a(f"ds_read_b128 v[{84+4*s}:{87+4*s}], v39 offset:{64*s}")
    stamp(2)
    spin_ge("v16", "v10", C_FILL, 1, sleep=0)
    for s in range(14):
        a(f"ds_read_b64_tr_b16 v[{140+4*s}:{141+4*s}], v38 offset:{4096*s}")
        a(f"ds_read_b64_tr_b16 v[{142+4*s}:{143+4*s}], v38 offset:{4096*s+512}")
    for s in range(14):
        n = 26 - 2 * s
        if n <= 15 and (s % 2 == 0 or s == 13): a(f"s_waitcnt lgkmcnt({max(0, n-2) if s != 13 else 0})")
        elif s == 0: a("s_waitcnt lgkmcnt(14)")
        c = "0" if s == 0 else "v[48:51]"
        a(f"v_mfma_f32_16x16x32_bf16 v[48:51], v[{140+4*s}:{143+4*s}], v[{84+4*s}:{87+4*s}], {c}")
    a("s_add_u32 s50, s3, 4"); a("v_mov_b32 v16, s50"); a(f"ds_write_b32 v12, v16 offset:{C_CP}")
    a("s_mov_b32 s50, 0x000f000f")
    a("v_cvt_pk_bf16_f32 v80, v48, v49"); a("v_cvt_pk_bf16_f32 v82, v50, v51")
    a("s_mov_b32 exec_lo, s50"); a("s_mov_b32 exec_hi, s50")
    if qlocal:
        a("s_cmp_eq_u32 s35, 1"); a("s_cbranch_scc1 L_pub_q")
    a("global_store_dwordx4 v37, v[80:83], s[30:31] sc1")
    if qlocal:
        a("s_branch L_pub_done"); a("L_pub_q:"); a("global_store_dwordx4 v37, v[80:83], s[30:31]"); a("L_pub_done:")
    a("s_mov_b64 exec, -1")
    a("L_C_noproj:")
    stamp(3)
    a("v_xor_b32 v16, v15, v14")
    a("v_lshlrev_b32 v17, 9, v14")
    for s in range(4):
        if s: a(f"v_xor_b32 v{20+s}, {4*s}, v16")
        else: a("v_mov_b32 v20, v16")
        a(f"v_lshl_add_u32 v{20+s}, v{20+s}, 4, v17")
    a("v_lshrrev_b32 v16, 2, v14")
    a("v_lshl_add_u32 v17, v15, 3, v16")
    a("v_lshlrev_b32 v17, 9, v17")
    a("v_and_b32 v18, 1, v14"); a("v_lshl_add_u32 v17, v18, 3, v17")
    a("v_and_b32 v18, 1, v15"); a("v_lshl_add_u32 v18, v18, 2, v16"); a("v_lshlrev_b32 v18, 1, v18")
    a("v_bfe_u32 v19, v14, 1, 1")
    a("s_lshl_b32 s50, s3, 3"); a("v_add_u32 v19, s50, v19")
    a("v_xor_b32 v18, v18, v19")
    for tt in range(4):
        if tt: a(f"v_xor_b32 v{24+tt}, {2*tt}, v18")
        else: a("v_mov_b32 v24, v18")
        a(f"v_lshl_add_u32 v{24+tt}, v{24+tt}, 4, v17")
    a("v_and_b32 v16, 1, v0")
    a("v_lshlrev_b32 v17, 4, v15")
    a("v_lshl_add_u32 v28, v16, 9, v17"); a(f"v_add_u32 v28, {QI}, v28")
    a("v_lshl_add_u32 v29, v16, 10, v17"); a(f"v_add_u32 v29, {PB}, v29")
    a("v_lshrrev_b32 v16, 5, v0"); a("v_and_b32 v17, 31, v0"); a("s_lshl_b32 s50, s3, 5"); a("v_add_u32 v17, s50, v17")
    a("v_lshlrev_b32 v17, 1, v17"); a("v_lshl_add_u32 v30, v16, 10, v17"); a(f"v_add_u32 v30, {PB}, v30")
    a("v_lshl_add_u32 v31, v16, 4, v10")
    a("v_lshl_add_u32 v33, v16, 2, v10")
    a("s_lshl_b32 s50, s3, 2"); a("v_add_u32 v32, s50, v31")
    tile_tr_addr("v34", "s3", WOB)
    a("s_mov_b32 s44, 0xffff0000"); a("s_mov_b32 s45, 0xffff0000")
    a("s_mov_b32 s46, 0"); a("s_mov_b32 s47, -1")
    a("s_lshl_b32 s50, s6, 3"); a("s_add_u32 s50, s50, s4"); a("s_lshl_b32 s50, s50, 15"); a("s_lshl_b32 s51, s3, 10"); a("s_add_u32 s50, s50, s51"); a(f"s_add_u32 s50, s50, {W_H1}")
    a("v_add_u32 v16, s50, v9")
    a("s_lshl_b32 s51, s7, 12"); a("v_add_u32 v35, s51, v16")
    for i in range(1, 8):
        a(f"s_add_u32 s51, s7, {i}"); a("s_and_b32 s51, s51, 7"); a("s_lshl_b32 s51, s51, 12"); a(f"v_add_u32 v{247+i}, s51, v16")
    a("v_lshrrev_b32 v16, 5, v0"); a("v_lshlrev_b32 v16, 8, v16"); a("v_and_b32 v17, 1, v15"); a("v_lshl_add_u32 v16, v17, 5, v16"); a("v_add_u32 v16, v16, v14")
    a("s_lshl_b32 s50, s3, 6"); a("v_add_u32 v16, s50, v16"); a("v_lshlrev_b32 v16, 1, v16"); a(f"v_add_u32 v38, {OI}, v16")
    a("v_lshlrev_b32 v36, 4, v15"); a(f"v_add_u32 v36, {OI}, v36")
    a("s_mul_i32 s50, s6, 28"); a("s_lshl_b32 s51, s7, 2"); a("s_add_u32 s50, s50, s51"); a("s_add_u32 s50, s50, s3"); a("s_lshl_b32 s50, s50, 3"); a("s_add_u32 s50, s50, s4")
    a("s_lshl_b32 s50, s50, 7"); a(f"s_add_u32 s50, s50, {W_H2}"); a("v_add_u32 v37, s50, v9")
    if warm & 8:
        a("s_mov_b64 exec, 1"); a(f"global_load_dword v245, v37, s[30:31] {warmfl}"); a("s_mov_b64 exec, -1")
    a("s_mov_b32 s44, 0xffff0000"); a("s_mov_b32 s45, 0xffff0000")
    a("s_mov_b32 s46, 0"); a("s_mov_b32 s47, -1")
    spin_ge("v16", "v10", C_QRDY, 1)
    stamp(4)
    for s in range(8): a(f"ds_read_b128 v[{64+4*s if s < 4 else 84+4*(s-4)}:{(64+4*s if s < 4 else 84+4*(s-4))+3}], v28 offset:{64*s}")
    qreg = lambda s: 64 + 4 * s if s < 4 else 84 + 4 * (s - 4)
    a("s_mov_b32 s50, s3")
    a("L_kitem:")
    a("s_add_u32 s51, s50, 2")
    a("s_sub_u32 s52, s50, 9"); a("s_cmp_ge_u32 s50, 9"); a("s_cselect_b32 s52, s52, s50")
    a("s_lshl_b32 s52, s52, 14")
    for s in range(4): a(f"v_add_u32 v{40+s}, s52, v{20+s}")
    spin_ge("v16", "v10", C_FILL, "s51")
    for s in range(8):
        for tl in range(2):
            a(f"ds_read_b128 v[{100+8*s+4*tl}:{103+8*s+4*tl}], v{40+(s&3)} offset:{(s>>2)*256 + tl*8192}")
    a("s_add_u32 s51, s50, 4"); a("s_min_u32 s51, s51, 16"); a("s_add_u32 s51, s51, 4")
    a("v_mov_b32 v16, s51")
    a(f"ds_write_b32 v12, v16 offset:{C_CP}")
    a("v_mov_b32 v63, v62"); a("v_mov_b32 v62, v61"); a("v_mov_b32 v61, v60")
    for s in range(8):
        if s % 2 == 0: a(f"s_waitcnt lgkmcnt({13 - 2*s})")
        for tl in range(2):
            c = "0" if s == 0 else f"v[{48+4*tl}:{51+4*tl}]"
            a(f"v_mfma_f32_16x16x32_bf16 v[{48+4*tl}:{51+4*tl}], v[{qreg(s)}:{qreg(s)+3}], v[{100+8*s+4*tl}:{103+8*s+4*tl}], {c}")
    a("v_cndmask_b32 v16, v48, v52, s[44:45]"); a("v_cndmask_b32 v17, v49, v53, s[44:45]"); a("v_cndmask_b32 v16, v16, v17, s[46:47]")
    rbf("v60", "v16")
    a("s_add_u32 s50, s50, 4"); a("s_cmp_lt_u32 s50, 16"); a("s_cbranch_scc1 L_kitem")
    stamp(5)
    a("v_max_f32 v16, v60, v61"); a("v_max3_f32 v16, v16, v62, v63")
    red16("v_max_f32", "v16"); swapred("v_max_f32", "v16", "v17", 16)
    a(f"ds_write_b32 v32, v16 offset:{C_MX}")
    a(f"ds_write_b32 v12, v13 offset:{C_MXF}")
    spin_all4(40, "v10", C_MXF, sleep=0)
    a(f"ds_read_b128 v[40:43], v31 offset:{C_MX}")
    a("s_waitcnt lgkmcnt(0)")
    a("v_max_f32 v16, v40, v41"); a("v_max3_f32 v16, v16, v42, v43")
    a(f"s_mov_b32 s50, {hex(f2u(CEXP))}")
    for i in range(4): a(f"v_sub_f32 v{60+i}, v{60+i}, v16")
    for i in range(4): a(f"v_mul_f32 v{60+i}, s50, v{60+i}")
    for i in range(4): a(f"v_exp_f32 v{60+i}, v{60+i}")
    a("v_add_f32 v17, v60, v61"); a("v_add_f32 v18, v62, v63"); a("v_add_f32 v17, v17, v18")
    a("v_cvt_pk_bf16_f32 v40, v63, v62"); a("v_cvt_pk_bf16_f32 v41, v61, v60")
    a("ds_write_b16 v30, v40 offset:0"); a("ds_write_b16_d16_hi v30, v40 offset:256")
    a("ds_write_b16 v30, v41 offset:512"); a("ds_write_b16_d16_hi v30, v41 offset:768")
    red16("v_add_f32", "v17"); swapred("v_add_f32", "v17", "v18", 16)
    a(f"ds_write_b32 v32, v17 offset:{C_LS}")
    a(f"ds_write_b32 v12, v13 offset:{C_PF}")
    for i in range(16): a(f"v_mov_b32 v{64+i}, 0")
    spin_all4(40, "v10", C_PF, sleep=0)
    stamp(6)
    a("s_mov_b32 s50, 0")
    a("s_mov_b32 s52, 0")
    a("L_vitem:")
    a("ds_read_b128 v[44:47], v29")
    a("v_add_u32 v29, 64, v29")
    for tt in range(4): a(f"v_add_u32 v{40+tt}, s52, v{24+tt}")
    a("s_add_u32 s51, s50, 18")
    spin_ge("v16", "v10", C_FILL, "s51", sleep=kvsleep)
    for tt in range(4):
        a(f"ds_read_b64_tr_b16 v[{96+4*tt}:{97+4*tt}], v{40+tt}")
        a(f"ds_read_b64_tr_b16 v[{98+4*tt}:{99+4*tt}], v{40+tt} offset:2048")
    a("s_add_u32 s51, s50, 21"); a("v_mov_b32 v16, s51")
    a(f"ds_write_b32 v12, v16 offset:{C_CP}")
    a(f"s_add_u32 s52, s52, {SLOT}"); a(f"s_cmp_eq_u32 s52, {5*SLOT}"); a("s_cselect_b32 s52, 0, s52")
    for tt in range(4):
        a(f"s_waitcnt lgkmcnt({7-2*tt})")
        a(f"v_mfma_f32_16x16x32_bf16 v[{64+4*tt}:{67+4*tt}], v[44:47], v[{96+4*tt}:{99+4*tt}], v[{64+4*tt}:{67+4*tt}]")
    a("s_add_u32 s50, s50, 1"); a("s_cmp_lt_u32 s50, 14"); a("s_cbranch_scc1 L_vitem")
    a("s_cmp_eq_u32 s50, 16"); a("s_cbranch_scc1 L_vdone")
    H1L = [(120 + 4 * i, f"v{248+i}", 0) for i in range(7)]
    a("s_cmp_eq_u32 s50, 15"); a("s_cbranch_scc1 L_first")
    spin_ge("v16", "v10", C_FACF, 1, sleep=0)
    a(f"ds_read_b32 v39, v33 offset:{C_FAC}"); a(f"ds_read_b32 v16, v10 offset:{C_LOC}")
    for s in range(16):
        r = 150 + 4 * s
        a(f"ds_read_b64_tr_b16 v[{r}:{r+1}], v34 offset:{4096*s}")
        a(f"ds_read_b64_tr_b16 v[{r+2}:{r+3}], v34 offset:{4096*s+512}")
    a("s_waitcnt lgkmcnt(0)"); a("v_readfirstlane_b32 s57, v16")
    a("s_branch L_vitem")
    a("L_first:")
    a("s_cmp_eq_u32 s7, 7"); a("s_cbranch_scc1 L_vitem")
    if not notail:
        for (d, va, off) in H1L: a(f"global_load_dwordx4 v[{d}:{d+3}], {va}, s[30:31] sc1")
    a("s_branch L_vitem")
    a("L_vdone:")
    a("s_nop 2")
    stamp(7)
    if notail: dump_stamps(11); a("s_endpgm")
    a("v_cndmask_b32 v16, v64, v72, s[44:45]"); a("v_cndmask_b32 v17, v65, v73, s[44:45]")
    a("v_cndmask_b32 v18, v68, v76, s[44:45]"); a("v_cndmask_b32 v19, v69, v77, s[44:45]")
    a("v_cndmask_b32 v16, v16, v17, s[46:47]"); a("v_cndmask_b32 v18, v18, v19, s[46:47]")
    a("s_cmp_eq_u32 s57, 1")
    a("v_mul_f32 v80, v16, v39"); a("v_mul_f32 v82, v18, v39")
    a("s_cbranch_scc0 L_st_far")
    a("global_store_dwordx4 v35, v[80:83], s[30:31]")
    a("L_st_done:")
    stamp(8)
    a("s_cmp_eq_u32 s7, 7"); a("s_cbranch_scc1 L_red")
    a("s_movk_i32 s56, 0x7f")
    a("s_waitcnt vmcnt(1)")
    a("L_h1_scan:")
    for i, (d, va, off) in enumerate(H1L):
        a(f"s_bitcmp1_b32 s56, {i}"); a(f"s_cbranch_scc0 L_h1_n{i}")
        a(f"v_xor_b32 v96, s33, v{d+1}"); a(f"v_bitop3_b32 v96, v{d+3}, s33, v96 bitop3:0xbe"); a("v_cmp_ne_u32 vcc, 0, v96")
        a(f"s_cbranch_vccnz L_h1_n{i}")
        a(f"s_bitset0_b32 s56, {i}")
        a(f"L_h1_n{i}:")
    a("s_cmp_lg_u32 s56, 0"); a("s_cbranch_scc1 L_h1_more")
    a("L_h1_done:")
    stamp(9)
    a("v_add_f32 v56, v80, v120"); a("v_add_f32 v57, v82, v122")
    a("v_add_f32 v124, v124, v128"); a("v_add_f32 v126, v126, v130")
    a("v_add_f32 v132, v132, v136"); a("v_add_f32 v134, v134, v138")
    a("v_add_f32 v140, v140, v144"); a("v_add_f32 v142, v142, v146")
    a("v_add_f32 v56, v56, v124"); a("v_add_f32 v57, v57, v126")
    a("v_add_f32 v132, v132, v140"); a("v_add_f32 v134, v134, v142")
    a("v_add_f32 v56, v56, v132"); a("v_add_f32 v57, v57, v134")
    a("v_cvt_pk_bf16_f32 v16, v56, v57")
    a("ds_write_b16 v38, v16"); a("ds_write_b16_d16_hi v38, v16 offset:32")
    a(f"ds_write_b32 v12, v13 offset:{C_OF}")
    spin_all4(40, "v10", C_OF, sleep=0)
    for s in range(16): a(f"ds_read_b128 v[{84+4*s if s < 16 else 0}:{87+4*s}], v36 offset:{64*s}")
    for s in range(16):
        if s % 4 == 0: a(f"s_waitcnt lgkmcnt({12 - s})")
        acc = 48 + 4 * (s & 1)
        c = "0" if s < 2 else f"v[{acc}:{acc+3}]"
        a(f"v_mfma_f32_16x16x32_bf16 v[{acc}:{acc+3}], v[{84+4*s}:{87+4*s}], v[{150+4*s}:{153+4*s}], {c}")
    a("v_add_f32 v80, v48, v52")
    a(f"v_mov_b32_dpp v82, v80 row_ror:8 {DPPF}")
    a("s_mov_b64 exec, 0xff")
    a("global_store_dwordx4 v37, v[80:83], s[30:31] sc1")
    a("L_c_exit:")
    stamp(10)
    dump_stamps(11)
    a("s_endpgm")
    a("L_h1_more:")
    a("s_sub_u32 s55, s56, 1"); a("s_and_b32 s55, s55, s56"); a("s_cbranch_scc0 L_h1_one")
    for i, (d, va, off) in enumerate(H1L):
        a(f"s_bitcmp1_b32 s56, {i}"); a(f"s_cbranch_scc0 L_h1_s{i}")
        a(f"global_load_dwordx4 v[{d}:{d+3}], {va}, s[30:31] sc1")
        a(f"L_h1_s{i}:")
    budget()
    a("s_waitcnt vmcnt(0)")
    a("s_branch L_h1_scan")
    a("L_h1_one:")
    for i in range(6):
        a(f"s_bitcmp1_b32 s56, {i}"); a(f"s_cbranch_scc1 L_h1_t{i}")
    for i in (6, 0, 1, 2, 3, 4, 5):
        d, va, off = H1L[i]
        a(f"L_h1_t{i}:")
        a(f"global_load_dwordx4 v[{d}:{d+3}], {va}, s[30:31] sc1")
        budget()
        a("s_waitcnt vmcnt(0)")
        a(f"v_xor_b32 v96, s33, v{d+1}"); a(f"v_bitop3_b32 v96, v{d+3}, s33, v96 bitop3:0xbe"); a("v_cmp_ne_u32 vcc, 0, v96")
        a(f"s_cbranch_vccnz L_h1_t{i}")
        a("s_branch L_h1_done")
    a("L_st_far:")
    a("global_store_dwordx4 v35, v[80:83], s[30:31] sc1")
    a("s_branch L_st_done")

    nq = [0]
    def needq():
        nq[0] += 1; k = nq[0]
        a("s_cmp_eq_u32 s58, 1"); a(f"s_cbranch_scc0 L_nq_skip{k}")
        a(f"L_nq{k}:")
        a("global_load_dwordx4 v[56:59], v30, s[30:31] sc1")
        budget()
        a("s_waitcnt vmcnt(0)")
        tagcheck(["v57", "v59"], "v18", "v19", f"L_nq{k}")
        a("global_store_dwordx4 v30, v[56:59], s[30:31] sc1")
        a("s_mov_b32 s58, 0")
        a(f"L_nq_skip{k}:")
    a("L_Q:")
    a("v_and_b32 v14, 15, v0"); a("v_lshrrev_b32 v15, 4, v0")
    a("s_lshl_b32 s50, s6, 10"); a("s_lshl_b32 s51, s4, 7"); a("s_add_u32 s50, s50, s51"); a("s_lshl_b32 s50, s50, 4"); a(f"s_add_u32 s50, s50, {W_QG}")
    a("v_add_u32 v25, s50, v9")
    a("v_lshlrev_b32 v26, 3, v0"); a(f"v_add_u32 v26, {QI}, v26")
    a("v_mov_b32 v43, s33")
    a("s_lshl_b32 s50, s49, 8"); a(f"s_add_u32 s50, s50, {W_QG}"); a("v_lshlrev_b32 v16, 14, v15"); a("v_lshl_add_u32 v16, v14, 4, v16"); a("v_add_u32 v30, s50, v16")
    a("s_cmp_eq_u32 s35, 1"); a(f"s_cselect_b32 s58, {1 if qlocal else 0}, 0")
    a(f"s_mov_b32 s55, {q_rounds}")
    spin_ge("v16", "v10", C_FILL, qpoll_fill, sleep=1)
    stamp(1)
    def qhook():
        a("s_sub_u32 s55, s55, 1"); a("s_cbranch_scc0 L_q_nohook"); needq(); a("L_q_nohook:")
    mpoll([(48, "v25", 0), (52, "v25", 1024)], "q", 16, sleep=qsleep, hook=qhook)
    a("ds_write2_b32 v26, v48, v50 offset0:0 offset1:1")
    a("ds_write2_b32 v26, v52, v54 offset0:128 offset1:129")
    a("v_mov_b32 v16, 1"); a(f"ds_write_b32 v10, v16 offset:{C_QRDY}")
    stamp(2)
    a("v_and_b32 v17, 1, v0"); a("v_lshlrev_b32 v16, 4, v17")
    a("v_add_u32 v18, s6, v15"); a("v_and_b32 v18, 3, v18"); a("v_lshlrev_b32 v18, 13, v18")
    a("v_lshrrev_b32 v19, 1, v14"); a("v_lshl_add_u32 v18, v19, 7, v18"); a("v_add_u32 v18, v18, v16")
    a("s_lshl_b32 s50, s4, 10"); a(f"s_add_u32 s50, s50, {W_MLG}"); a("v_add_u32 v25, s50, v18")
    a("s_lshl_b32 s51, s6, 13"); a("s_add_u32 s50, s50, s51"); a("s_lshl_b32 s51, s7, 7"); a("s_add_u32 s50, s50, s51"); a("v_add_u32 v24, s50, v16")
    a("v_add_u32 v27, v16, v10")
    a("v_lshl_add_u32 v28, v17, 2, v10")
    a("s_getreg_b32 s52, hwreg(HW_REG_XCC_ID, 0, 4)")
    a("s_xor_b32 s53, s52, s33"); a("v_mov_b32 v41, s53")
    spin_all4(44, "v10", C_PF, sleep=4)
    a(f"ds_read_b128 v[44:47], v27 offset:{C_MX}"); a(f"ds_read_b128 v[48:51], v27 offset:{C_LS}")
    a("s_waitcnt lgkmcnt(0)")
    a("v_max_f32 v40, v44, v45"); a("v_max3_f32 v40, v40, v46, v47")
    a("v_add_f32 v48, v48, v49"); a("v_add_f32 v50, v50, v51"); a("v_add_f32 v42, v48, v50")
    a("s_mov_b64 exec, 3")
    a("global_store_dwordx4 v24, v[40:43], s[30:31]")
    a("s_mov_b64 exec, -1")
    a(f"s_mov_b32 s55, {ml_rounds}")
    stamp(3)
    spin_ge("v16", "v10", C_FILL, ml_fill, sleep=8)
    def mlload():
        a("global_load_dwordx4 v[48:51], v25, s[30:31] sc1")
        a("s_waitcnt vmcnt(0)")
        a("v_xor_b32 v16, s33, v49"); a("v_lshrrev_b32 v17, 4, v16"); a("v_bitop3_b32 v17, v51, s33, v17 bitop3:0xbe")
        a("v_cmp_ne_u32 s[56:57], s52, v16"); a("v_cmp_ne_u32 s[60:61], 0, v17")
        a("s_andn2_b64 s[56:57], s[56:57], s[60:61]")
    def mlpub():
        a("s_mov_b64 exec, 3")
        a("global_store_dwordx4 v24, v[40:43], s[30:31] sc1")
        a("s_mov_b64 exec, -1")
    a("s_branch L_ml_first")
    a("L_ml_retry:")
    budget()
    a("s_cmp_eq_u32 s55, 1000"); a("s_cbranch_scc1 L_ml_again")
    a("s_and_b32 s59, s56, 0xffff"); a("s_cbranch_scc1 L_ml_pub")
    a("s_sub_u32 s55, s55, 1"); a("s_cbranch_scc0 L_ml_again")
    a("L_ml_pub:")
    mlpub(); needq()
    a("s_movk_i32 s55, 1000")
    a("L_ml_again:")
    a("s_sleep 4")
    a("L_ml_first:")
    mlload()
    a("s_and_b32 s59, s60, 0xffff"); a("s_cbranch_scc1 L_ml_retry")
    a("s_and_b32 s59, s56, 0xffff"); a(f"s_cselect_b32 s54, 0, {0 if forcesc1 else 1}"); a("s_cbranch_scc0 L_ml_ok")
    mlpub()
    a("L_ml_ok:")
    a(f"s_mov_b32 s50, {hex(f2u(CEXP))}")
    a("v_mov_b32 v44, v48")
    for m in ("quad_perm:[2,3,0,1]", "row_ror:4", "row_ror:8"): a(f"v_max_f32_dpp v44, v44, v44 {m} {DPPF}")
    a("v_sub_f32 v45, v48, v44"); a("v_sub_f32 v46, v40, v44")
    a("v_mul_f32 v45, s50, v45"); a("v_mul_f32 v46, s50, v46")
    a("v_exp_f32 v45, v45"); a("v_exp_f32 v46, v46")
    a("v_mul_f32 v45, v45, v50")
    for m in ("quad_perm:[2,3,0,1]", "row_ror:4", "row_ror:8"): a(f"v_add_f32_dpp v45, v45, v45 {m} {DPPF}")
    a("v_rcp_f32 v45, v45")
    a("v_mov_b32 v17, s54")
    a("v_mul_f32 v46, v46, v45")
    a("v_mov_b32 v16, 1")
    a("s_mov_b64 exec, 3")
    a(f"ds_write_b32 v28, v46 offset:{C_FAC}")
    a(f"ds_write_b32 v10, v17 offset:{C_LOC}")
    a(f"ds_write_b32 v10, v16 offset:{C_FACF}")
    a("s_mov_b64 exec, -1")
    stamp(4)
    a("s_cmp_eq_u32 s35, 4"); a("s_cselect_b32 s59, 1, s58"); a("s_cmp_eq_u32 s59, 0"); a("s_cbranch_scc1 L_q_exit")
    a(f"s_mov_b32 s55, {all_rounds}"); a("v_mov_b32 v20, 1")
    a("L_all:")
    a("s_cmp_lg_u64 s[56:57], 0"); a("s_cbranch_scc1 L_all_no")
    a("s_cmp_eq_u64 s[60:61], 0"); a("s_cbranch_scc1 L_all_yes")
    a("s_sub_u32 s55, s55, 1"); a("s_cbranch_scc1 L_all_no")
    a("s_sleep 8")
    mlload()
    a("s_branch L_all")
    a("L_all_no:")
    needq()
    a("v_mov_b32 v20, 2")
    a("L_all_yes:")
    a(f"ds_write_b32 v10, v20 offset:{C_ALL}")
    a("L_q_exit:")
    stamp(5)
    dump_stamps(7)
    a("s_endpgm")

    a("L_F:")
    a("s_cmp_eq_u32 s35, 4"); a("s_cbranch_scc0 L_end")
    a("v_and_b32 v14, 15, v0"); a("v_lshrrev_b32 v15, 4, v0")
    tile_tr_addr("v20", None, F2B)
    for tau in range(1, 4): a(f"v_xor_b32 v{20+tau}, {32*tau}, v20")
    a("s_mov_b32 s50, s5"); a("s_mov_b32 s51, s4")
    a("s_lshl_b32 s52, s50, 12"); a(f"s_add_u32 s52, s52, {W_GU}"); a("v_add_u32 v25, s52, v9")
    a("s_mul_i32 s52, s50, 28"); a("s_add_u32 s52, s52, s51"); a("s_lshl_b32 s52, s52, 9"); a(f"s_add_u32 s52, s52, {W_OG}")
    a("v_and_b32 v17, 3, v14"); a("v_lshrrev_b32 v18, 2, v14"); a("v_lshlrev_b32 v18, 6, v18"); a("v_lshl_add_u32 v18, v15, 4, v18")
    a(f"s_movk_i32 s51, {7*512}"); a("v_mad_u32_u24 v16, v17, s51, v18"); a("v_add_u32 v24, s52, v16")
    if warm & 4:
        a(f"global_load_dword v30, v24, s[30:31] {warmfl}"); a(f"global_load_dword v31, v24, s[30:31] offset:256 {warmfl}")
    a("v_lshlrev_b32 v26, 3, v0"); a(f"v_add_u32 v26, {HA}, v26")
    a("v_lshlrev_b32 v16, 8, v17"); a("v_lshl_add_u32 v27, v15, 4, v16"); a(f"v_add_u32 v27, {HA}, v27")
    a("s_mov_b32 s44, 0xf0f0f0f0"); a("s_mov_b32 s45, 0xf0f0f0f0"); a("s_mov_b32 s46, 0xff00ff00"); a("s_mov_b32 s47, 0xff00ff00")
    spin_ge("v16", "v10", C_FILL, 1, sleep=2)
    for s in range(4):
        for tau in range(4):
            r = 128 + (s * 4 + tau) * 4
            a(f"ds_read_b64_tr_b16 v[{r}:{r+1}], v{20+tau} offset:{4096*s}")
            a(f"ds_read_b64_tr_b16 v[{r+2}:{r+3}], v{20+tau} offset:{4096*s+512}")
    a(f"v_mov_b32 v16, {BIG}"); a("s_waitcnt lgkmcnt(0)"); a(f"ds_write_b32 v10, v16 offset:{C_FP}")
    stamp(1)
    if noffn: a("s_endpgm")
    if gu_fill is None: spin_ge("v16", "v10", C_QRDY, 1, sleep=4)
    else: spin_ge("v16", "v10", C_FILL, gu_fill, sleep=8)
    a("L_h_retry:")
    for i in range(4): a(f"global_load_dwordx4 v[{64+4*i}:{67+4*i}], v25, s[30:31] offset:{1024*i} sc1")
    budget()
    a("s_waitcnt vmcnt(0)")
    if not nogupoll: tagcheck([f"v{65+2*i}" for i in range(8)], "v16", "v17", "L_h_retry")
    stamp(2)
    for k in range(4):
        a(f"v_lshlrev_b32 v{84+2*k}, 16, v{64+2*k}"); a(f"v_and_b32 v{85+2*k}, 0xffff0000, v{64+2*k}")
        a(f"v_lshlrev_b32 v{92+2*k}, 16, v{72+2*k}"); a(f"v_and_b32 v{93+2*k}, 0xffff0000, v{72+2*k}")
    a(f"s_mov_b32 s50, {hex(f2u(-LOG2E))}")
    for i in range(8): a(f"v_mul_f32 v{100+i}, s50, v{84+i}")
    for i in range(8): a(f"v_exp_f32 v{100+i}, v{100+i}")
    for i in range(8): a(f"v_add_f32 v{100+i}, 1.0, v{100+i}")
    for i in range(8): a(f"v_rcp_f32 v{100+i}, v{100+i}")
    for i in range(8): a(f"v_mul_f32 v{100+i}, v{100+i}, v{84+i}")
    for i in range(8): rbf(f"v{100+i}", f"v{100+i}")
    for i in range(8): a(f"v_mul_f32 v{100+i}, v{100+i}, v{92+i}")
    for k in range(4): a(f"v_cvt_pk_bf16_f32 v{108+k}, v{100+2*k}, v{101+2*k}")
    a("ds_write_b64 v26, v[108:109]"); a("ds_write_b64 v26, v[110:111] offset:512")
    for s in range(4): a(f"ds_read_b128 v[{64+4*s}:{67+4*s}], v27 offset:{64*s}")
    a("s_waitcnt lgkmcnt(0)")
    for s in range(4):
        for tau in range(4):
            r = 128 + (s * 4 + tau) * 4
            c = "0" if s == 0 else f"v[{84+4*tau}:{87+4*tau}]"
            a(f"v_mfma_f32_16x16x32_bf16 v[{84+4*tau}:{87+4*tau}], v[{r}:{r+3}], v[{64+4*s}:{67+4*s}], {c}")
    for k in (41, 43, 45, 47): a(f"v_mov_b32 v{k}, s33")
    for r in range(4):
        a(f"v_cndmask_b32 v16, v{84+r}, v{88+r}, s[44:45]"); a(f"v_cndmask_b32 v17, v{92+r}, v{96+r}, s[44:45]")
        a(f"v_cndmask_b32 v{40+2*r}, v16, v17, s[46:47]")
    if oglocal:
        spin_ge("v16", "v10", C_ALL, 1, sleep=2)
        a("v_cmp_eq_u32 vcc, 1, v16"); a("s_cbranch_vccz L_og_far")
        a("global_store_dwordx4 v24, v[40:43], s[30:31]")
        a("global_store_dwordx4 v24, v[44:47], s[30:31] offset:256")
        a("s_branch L_og_done")
        a("L_og_far:")
    a("global_store_dwordx4 v24, v[40:43], s[30:31] sc1")
    a("global_store_dwordx4 v24, v[44:47], s[30:31] offset:256 sc1")
    a("L_og_done:")
    stamp(3)
    dump_stamps(4)
    a("s_endpgm")

    a("L_R:")
    if prefetch_code:
        a("s_getpc_b64 s[48:49]")
        a("L_pc:")
        a(f"s_sub_u32 s48, s48, L_pc-{KNAME}_kernel"); a("s_subb_u32 s49, s49, 0")
        a("s_lshl_b32 s50, s5, 10"); a(f"s_cmp_lt_u32 s50, L_fail-{KNAME}_kernel-1024"); a("s_cbranch_scc0 L_nopf")
        a("v_add_u32 v16, s50, v9")
        a("global_load_dwordx4 v[20:23], v16, s[48:49]")
        a("L_nopf:")
    a("s_cmp_lg_u32 s2, 255"); a("s_cbranch_scc1 L_r_exit")
    for k in range(4): a(f"v_add_u32 v{28+k}, {W_H2 + k*28*1024}, v9")
    spin_ge("v16", "v10", C_FILL, 33, sleep=16)
    if not notail and not noew: mpoll([(48 + 4 * k, f"v{28+k}", 0) for k in range(4)], "ew", 16, sleep=h2sleep)
    a("s_mov_b64 exec, 1")
    a("v_mov_b32 v16, 0"); a("v_mov_b32 v17, s33")
    a(f"global_store_dword v16, v17, s[30:31] {efl}")
    a("s_branch L_r_exit")
    a("L_red:")
    a("s_cmp_eq_u32 s4, 7"); a("s_cbranch_scc1 L_r_exit")
    a("s_mov_b32 s51, s6"); a("s_lshl_b32 s52, s4, 2"); a("s_add_u32 s52, s52, s3"); a("s_mul_i32 s50, s51, 28"); a("s_add_u32 s50, s50, s52")
    a("s_mul_i32 s53, s51, 448"); a("s_lshl_b32 s54, s52, 4"); a("s_add_u32 s53, s53, s54")
    a("v_lshrrev_b32 v16, 5, v0"); a("v_and_b32 v17, 7, v0"); a("v_lshl_add_u32 v18, v16, 3, v17")
    a("v_add_u32 v19, s53, v18"); a("v_lshlrev_b32 v24, 1, v19")
    a("s_lshr_b32 s53, s52, 2"); a("s_mul_i32 s54, s51, 7"); a("s_add_u32 s53, s53, s54"); a("s_lshl_b32 s53, s53, 9")
    a("s_and_b32 s54, s52, 3"); a("s_lshl_b32 s54, s54, 6"); a("s_add_u32 s53, s53, s54"); a(f"s_add_u32 s53, s53, {W_OG}")
    a("v_bfe_u32 v19, v18, 1, 1"); a("v_lshlrev_b32 v19, 8, v19"); a("v_lshrrev_b32 v20, 2, v18"); a("v_lshl_add_u32 v19, v20, 4, v19")
    a("v_and_b32 v20, 1, v18"); a("v_lshl_add_u32 v19, v20, 3, v19"); a("v_add_u32 v19, s53, v19")
    a("v_bfe_u32 v21, v0, 3, 2"); a(f"s_movk_i32 s54, {28*512}")
    a("v_mad_u32_u24 v25, v21, s54, v19")
    a(f"v_add_u32 v27, {4*28*512}, v25"); a(f"v_add_u32 v28, {8*28*512}, v25")
    a("v_min_u32 v22, 1, v21"); a("v_add_u32 v22, 12, v22"); a("v_mad_u32_u24 v29, v22, s54, v19")
    a("v_cmp_gt_u32 s[44:45], 2, v21")
    a("s_lshl_b32 s56, s50, 10"); a(f"s_add_u32 s56, s56, {W_H2}"); a("v_add_u32 v26, s56, v9")
    a("global_load_ushort v30, v24, s[8:9]")
    if touch_out: a("global_load_ushort v31, v24, s[26:27]")
    a("s_branch L_og_first")
    a("L_og_retry:")
    budget()
    a("s_waitcnt vmcnt(0)")
    a("L_og_first:")
    for k, va in enumerate(("v25", "v27", "v28", "v29")): a(f"global_load_dwordx2 v[{32+2*k}:{33+2*k}], {va}, s[30:31] sc1")
    def gate():
        a("s_waitcnt vmcnt(1)")
        if not noogpoll: tagcheck(["v33", "v35", "v37", "v39"], "v16", "v17", "L_og_retry")
        a("v_cndmask_b32 v38, 0, v38, s[44:45]"); a("v_add_f32 v32, v32, v34"); a("v_add_f32 v36, v36, v38"); a("v_add_f32 v32, v32, v36")
        a(f"v_add_f32_dpp v32, v32, v32 row_ror:8 {DPPF}")
        swapred("v_add_f32", "v32", "v33", 16)
        rbf("v32", "v32")
        a(f"v_mul_f32 v33, {hex(f2u(-LOG2E))}, v32"); a("v_exp_f32 v33, v33"); a("v_add_f32 v33, 1.0, v33"); a("v_rcp_f32 v33, v33")
        a("v_mul_f32 v32, v32, v33"); rbf("v32", "v32")
        a("v_lshlrev_b32 v30, 16, v30")
        stamp(11)
    mpoll([(48, "v26", 0)], "h2", 16, sleep=h2sleep, pre=gate)
    stamp(12)
    a("v_permlane32_swap_b32 v48, v50"); a("v_add_f32 v48, v48, v50")
    swapred("v_add_f32", "v48", "v50", 16)
    a(f"v_add_f32_dpp v48, v48, v48 row_ror:8 {DPPF}")
    rbf("v48", "v48")
    a("v_mul_f32 v48, v48, v32"); rbf("v48", "v48")
    a("v_add_f32 v48, v48, v30"); a("v_cvt_pk_bf16_f32 v48, v48, v48")
    a("s_mov_b32 exec_lo, 0xff"); a("s_mov_b32 exec_hi, 0xff")
    a(f"global_store_short v24, v48, s[26:27] {outfl}")
    a("L_r_exit:")
    stamp(13)
    dump_stamps(14)
    a("L_end:")
    a("s_endpgm")
    a("L_fail:")
    a("s_mov_b64 exec, 1")
    a("s_lshl_b32 s60, s3, 2"); a("s_or_b32 s61, s2, 0xbad00000")
    a("v_mov_b32 v16, s60"); a("v_mov_b32 v17, s61")
    a("global_store_dword v16, v17, s[28:29]")
    a("s_endpgm")
    a.raw('.section .rodata,"a"'); a.raw(".p2align 6"); a.raw(f".amdhsa_kernel {KNAME}_kernel")
    a.raw("  .amdhsa_next_free_vgpr 256"); a.raw("  .amdhsa_next_free_sgpr 96"); a.raw("  .amdhsa_accum_offset 256")
    a.raw("  .amdhsa_group_segment_fixed_size 0"); a.raw("  .amdhsa_kernarg_size 96"); a.raw("  .amdhsa_user_sgpr_count 2")
    a.raw("  .amdhsa_user_sgpr_kernarg_segment_ptr 1"); a.raw("  .amdhsa_system_sgpr_workgroup_id_x 1"); a.raw(".end_amdhsa_kernel")
    return a.text()

STAMPS = {'C': 11, 'L': 4, 'Q': 7, 'F': 4, 'R': 6}
if __name__ == "__main__":
    import ast
    kw = {}
    for x in sys.argv[2:]:
        k, v = x.split("=", 1)
        try: kw[k] = ast.literal_eval(v)
        except Exception: kw[k] = v
    open(sys.argv[1], "w").write(gen(**kw))
```

```python
import sys, struct
from asmlib import Asm
KNAME = "recurrent_scan__gqa_block_cached__glu_gated_swiglu__decode"

SLOT = 16384; NS = 9
RING = 0; RING_END = RING + NS * SLOT; BIGW = 6 * SLOT; WOB = 5 * SLOT; F2B = 8 * SLOT
CTRL = BIGW + 57344; XN = CTRL + 256; QI = XN + 3584; PB = QI + 1024; HA = PB + 2048; OAI = HA + 1024; LDS_END = OAI + 128; OI = XN
assert LDS_END <= 163840
C_CP = 0; C_FP = 16; C_FILL = 32; C_XNF = 48; C_QRDY = 64; C_MXF = 80; C_PF = 96; C_FACF = 112
C_MX = 128; C_LS = 160; C_FAC = 192; C_TAIL = 208; C_OF = 224; C_ALL = 204; C_LOC = 200
OA = None
W_E = 0; W_QG = 0x1000; W_GU = 0x20000; W_OG = 0x40000; W_MLG = 0x80000; W_H1 = 0x100000; W_H2 = 0x200000; W_PG = 0x90000; W_GP = 0x91000; W_DIAG = 0x400000
BIG = 1000
DEFCLS = 'g'
CEXP = 0.09016844005556021
LOG2E = 1.4426950408889634
def f2u(f): return struct.unpack("<I", struct.pack("<f", f))[0]

def gen(diag=False, kvflags="nt", wflags="nt", woflags="", win=19, w0=28, prefetch_code=True, qpoll_fill=3, cls='g', kvsleep=0,
        notail=False, nowo=False, noffn=False, og_fill=32, gu_fill=28, h1sleep=2, h2sleep=0, qsleep=4, ml_fill=24, ml_rounds=4, forcesc1=False,
        wo_start=19, wo_per=6, wwo=25, mlplain=True, womode='L', wo_fill=32, wo_n1=0,
        catch=0, wboost=30, wwoboost=32, tau=57, tauw=61, theta=40, t0item=2, h1seq=True, vspin=True, palign=12, pad=0, h2off=0x200000, touch_out=False, tlbwarm=False, endboost=2, h1mode='bf', noew=False, nA=10, nB=2, qlocal=True, oglocal=True, q_rounds=6, wh=21, wwoh=27, w7=20, prestore=False, lateplus=1, first_at=15, j7heavy=False, lag=None, lagcnt=32, wlag=28, wwolag=31, early_inline=2, all_rounds=4, outfl='', efl='', startboost=0, noq=False, pubfl='sc1', ogfl='sc1', noogpoll=False, nogupoll=False):
    a = Asm()
    W_H2 = h2off
    assert 17 <= win <= 32
    qpipe = 0; warm = 0; rounds1 = rounds2 = None
    kvf = (" " + kvflags) if kvflags else ""
    wf = (" " + wflags) if wflags else ""
    wof = (" " + woflags) if woflags else ""
    hdr = open("cdna_kernels/" + KNAME + ".s.ref").read().split("; Override launch")[0]
    a.raw(hdr.rstrip())
    a.raw(f"; @launch grid=(256,1,1) block=(512,1,1) lds={LDS_END}")
    a.raw('.amdgcn_target "amdgcn-amd-amdhsa--gfx950"')
    a.raw(".text"); a.raw(f".globl {KNAME}_kernel")
    if palign: a.raw(f".p2align {palign}")
    if pad: a.raw(f".fill {pad//4}, 4, 0xbf800000")
    a.raw(".p2align 8"); a.raw(f".type {KNAME}_kernel,@function"); a.raw(f"{KNAME}_kernel:")
    def stamp(i):
        if diag:
            a(f"s_memrealtime s[64:65]"); a("s_waitcnt lgkmcnt(0)"); a(f"v_writelane_b32 v247, s64, {2*i}"); a(f"v_writelane_b32 v247, s65, {2*i+1}")
    def dump_stamps(n):
        if diag:
            a("s_mov_b32 exec_lo, -1"); a("s_mov_b32 exec_hi, 0")
            a("s_lshl_b32 s60, s2, 3"); a("s_add_u32 s60, s60, s3"); a("s_lshl_b32 s60, s60, 7"); a(f"s_add_u32 s60, s60, {W_DIAG}")
            a("v_lshl_add_u32 v246, v0, 2, s60")
            a("global_store_dword v246, v247, s[30:31]")
    lbl = [0]
    def newlabel(p):
        lbl[0] += 1; return f"L_{p}_{lbl[0]}"
    def budget():
        a("s_sub_u32 s62, s62, 1"); a("s_cbranch_scc1 L_fail")
    def _spin_tail(L, Ld, sleep):
        a(f"s_cbranch_scc1 {Ld}")
        if sleep: a(f"s_sleep {sleep}")
        a("s_sub_u32 s62, s62, 1"); a(f"s_cbranch_scc0 {L}"); a("s_branch L_fail"); a(f"{Ld}:")
    def spin_ge(vtmp, vctl, off, sval, sleep=1):
        L = newlabel("spin"); Ld = newlabel("spind")
        a(f"{L}:")
        a(f"ds_read_b32 {vtmp}, {vctl} offset:{off}")
        a("s_waitcnt lgkmcnt(0)")
        if vspin:
            a(f"v_cmp_le_u32 vcc, {sval}, {vtmp}")
            a(f"s_cbranch_vccnz {Ld}")
            if sleep: a(f"s_sleep {sleep}")
            a("s_sub_u32 s62, s62, 1"); a(f"s_cbranch_scc0 {L}"); a("s_branch L_fail"); a(f"{Ld}:")
        else:
            a(f"v_readfirstlane_b32 s59, {vtmp}")
            a(f"s_cmp_ge_u32 s59, {sval}")
            _spin_tail(L, Ld, sleep)
    def spin_all4(vt, vctl, off, sleep=1):
        L = newlabel("spin4"); Ld = newlabel("spin4d")
        a(f"{L}:")
        a(f"ds_read_b128 v[{vt}:{vt+3}], {vctl} offset:{off}")
        a("s_waitcnt lgkmcnt(0)")
        a(f"v_min_u32 v{vt}, v{vt}, v{vt+1}")
        a(f"v_min3_u32 v{vt}, v{vt}, v{vt+2}, v{vt+3}")
        if vspin:
            a(f"v_cmp_ne_u32 vcc, 0, v{vt}")
            a(f"s_cbranch_vccnz {Ld}")
            if sleep: a(f"s_sleep {sleep}")
            a("s_sub_u32 s62, s62, 1"); a(f"s_cbranch_scc0 {L}"); a("s_branch L_fail"); a(f"{Ld}:")
        else:
            a(f"v_readfirstlane_b32 s59, v{vt}")
            a("s_cmp_lg_u32 s59, 0")
            _spin_tail(L, Ld, sleep)
    def tagcheck(tags, vacc, vacc2, retry):
        h = (len(tags) + 1) // 2
        t1, t2 = tags[:h], tags[h:]
        a(f"v_xor_b32 {vacc}, s33, {t1[0]}")
        if t2: a(f"v_xor_b32 {vacc2}, s33, {t2[0]}")
        for i in range(1, h):
            a(f"v_bitop3_b32 {vacc}, {t1[i]}, s33, {vacc} bitop3:0xbe")
            if i < len(t2): a(f"v_bitop3_b32 {vacc2}, {t2[i]}, s33, {vacc2} bitop3:0xbe")
        if t2: a(f"v_or_b32 {vacc}, {vacc}, {vacc2}")
        a(f"v_cmp_ne_u32 vcc, 0, {vacc}")
        a(f"s_cbranch_vccnz {retry}")
    def mpoll(loads, name, vt, sm=72, pre=None, alt=None, sleep=0, preset=False, hook=None):
        n = len(loads)
        for i, (d, va, off) in enumerate(loads):
            if preset: a(f"s_mov_b64 exec, s[{sm+2*i}:{sm+2*i+1}]")
            a(f"global_load_dwordx4 v[{d}:{d+3}], {va}, s[30:31] offset:{off} sc1")
        if preset: a("s_mov_b64 exec, -1")
        if pre: pre()
        a(f"s_branch L_{name}_chk")
        a(f"L_{name}_retry:")
        if hook: hook()
        if sleep: a(f"s_sleep {sleep}")
        if alt:
            a("s_add_u32 s63, s63, 1"); a("s_and_b32 s61, s63, 3"); a("s_cmp_lt_u32 s61, 2"); a(f"s_cbranch_scc0 L_{name}_noalt")
            a(f"v_xor_b32 {alt[0]}, {alt[0]}, {alt[1]}"); a(f"L_{name}_noalt:")
        for i, (d, va, off) in enumerate(loads):
            a(f"s_mov_b64 exec, s[{sm+2*i}:{sm+2*i+1}]"); a(f"s_cbranch_execz L_{name}_sk{i}")
            a(f"global_load_dwordx4 v[{d}:{d+3}], {va}, s[30:31] offset:{off} sc1")
            a(f"L_{name}_sk{i}:")
        a("s_mov_b64 exec, -1")
        budget()
        a(f"L_{name}_chk:")
        a("s_waitcnt vmcnt(0)")
        for i, (d, va, off) in enumerate(loads): a(f"v_xor_b32 v{vt+i}, s33, v{d+1}")
        for i, (d, va, off) in enumerate(loads): a(f"v_bitop3_b32 v{vt+i}, v{d+3}, s33, v{vt+i} bitop3:0xbe")
        for i, (d, va, off) in enumerate(loads): a(f"v_cmp_ne_u32 s[{sm+2*i}:{sm+2*i+1}], 0, v{vt+i}")
        if n == 1: a(f"s_cmp_lg_u64 s[{sm}:{sm+1}], 0")
        else:
            a(f"s_or_b64 vcc, s[{sm}:{sm+1}], s[{sm+2}:{sm+3}]")
            for i in range(2, n): a(f"s_or_b64 vcc, vcc, s[{sm+2*i}:{sm+2*i+1}]")
        rounds = {"h1": rounds1, "h2": rounds2}.get(name)
        if rounds is not None:
            a("s_add_u32 s82, s82, 1"); a(f"s_cmp_lt_u32 s82, {rounds}")
        a(f"s_cbranch_scc1 L_{name}_retry")
    def rbf(dst, src):
        a(f"v_cvt_pk_bf16_f32 {dst}, {src}, {src}")
        a(f"v_and_b32 {dst}, 0xffff0000, {dst}")
    DPPF = "row_mask:0xf bank_mask:0xf"
    def red16(op, v):
        for m in ("quad_perm:[1,0,3,2]", "quad_perm:[2,3,0,1]", "row_half_mirror", "row_mirror"):
            a(f"{op}_dpp {v}, {v}, {v} {m} {DPPF}")
    def swapred(op, v, t, which):
        a(f"v_mov_b32 {t}, {v}")
        a(f"v_permlane{which}_swap_b32 {v}, {t}")
        a(f"{op} {v}, {v}, {t}")

    if diag: a("s_memrealtime s[66:67]")
    a("s_cmp_ge_u32 s2, 256")
    a("s_cbranch_scc1 L_end")
    a("s_load_dwordx16 s[8:23], s[0:1], 0")
    a("s_load_dwordx8 s[24:31], s[0:1], 64")
    a("v_lshrrev_b32 v1, 6, v0")
    a("v_and_b32 v0, 63, v0")
    a("v_readfirstlane_b32 s3, v1")
    a("s_and_b32 s4, s2, 7"); a("s_lshr_b32 s5, s2, 3"); a("s_and_b32 s6, s5, 3"); a("s_lshr_b32 s7, s5, 2")
    assert 5 * nA + 3 * nB == 56
    a(f"s_mul_i32 s48, s4, {nA}"); a(f"s_mul_i32 s49, s4, {nB}"); a(f"s_add_u32 s49, s49, {4*nA - 4*nB}")
    a("s_cmp_lt_u32 s4, 4"); a("s_cselect_b32 s48, s48, s49"); a(f"s_cselect_b32 s34, {24-nA}, {24-nB}")
    a("s_cmp_eq_u32 s4, 7"); a(f"s_cselect_b32 s34, {24-nA}, s34"); a("s_cselect_b32 s55, 0, 14")
    a("s_cmp_lt_u32 s5, s55"); a("s_cselect_b32 s35, 4, 0")
    a("s_add_u32 s48, s48, s5"); a("s_sub_u32 s48, s48, s34"); a("s_sub_u32 s49, s48, 28")
    a("s_cmp_lt_u32 s48, 28"); a("s_cselect_b32 s49, s48, s49"); a("s_cselect_b32 s48, 2, 3")
    a("s_cmp_ge_u32 s5, s34"); a("s_cselect_b32 s35, s48, s35")
    a("s_lshl_b32 s48, s4, 3"); a("s_add_u32 s48, s48, s5"); a("s_sub_u32 s48, s48, 24")
    a("s_movk_i32 s57, 3584"); a("s_mov_b32 s38, 1605632")
    a("s_cmp_ge_u32 s5, 24"); a("s_cselect_b32 s35, 1, s35"); a("s_cselect_b32 s49, s48, s49"); a("s_cselect_b32 s57, 8192, s57"); a("s_cselect_b32 s38, 3670016, s38")
    a("s_mov_b32 s39, 0x20000")
    a("s_mul_i32 s55, s5, 896"); a("s_add_u32 s55, s55, s4")
    a("s_cmp_eq_u32 s35, 4"); a("s_cselect_b32 s48, s55, s49"); a("s_cselect_b32 s57, 896, s57"); a("s_cselect_b32 s61, 8, 28")
    a(f"s_cselect_b32 s60, {(F2B-BIGW)//1024}, 0"); a("s_lshl_b32 s48, s48, 7"); a("s_lshl_b32 s60, s60, 10"); a(f"s_add_u32 s60, s60, {BIGW}")
    a("s_cmp_eq_u32 s35, 0"); a("s_cselect_b32 s61, 0, s61")
    a("s_lshl_b32 s56, s57, 3")
    a("s_lshl_b32 s52, s6, 3"); a("s_add_u32 s52, s52, s4"); a("s_lshl_b32 s52, s52, 21"); a("s_lshl_b32 s53, s7, 18"); a("s_add_u32 s54, s52, s53")
    a("s_mov_b32 s42, 0x4000000"); a("s_mov_b32 s43, 0x20000")
    a("v_lshlrev_b32 v9, 4, v0")
    a(f"v_mov_b32 v10, {CTRL}")
    a("v_lshrrev_b32 v2, 3, v0"); a("v_and_b32 v3, 7, v0"); a("v_and_b32 v8, 2, v2"); a("v_xor_b32 v3, v3, v8")
    a("v_lshlrev_b32 v3, 4, v3")
    a("v_mad_u32_u24 v24, v2, s57, v3"); a("v_xor_b32 v25, 64, v3"); a("v_mad_u32_u24 v25, v2, s57, v25")
    a("v_lshrrev_b32 v28, 5, v0"); a("v_and_b32 v29, 31, v0"); a("v_lshlrev_b32 v30, 9, v28"); a("v_xor_b32 v15, v29, v28")
    for p in range(8):
        if p: a(f"v_xor_b32 v{16+p}, {2*p}, v15"); a(f"v_lshl_add_u32 v{16+p}, v{16+p}, 4, v30")
        else: a("v_lshl_add_u32 v16, v15, 4, v30")
    a("s_mov_b32 s62, 0x100000")
    a("s_cmp_eq_u32 s3, 4")
    a("s_waitcnt lgkmcnt(0)")
    if diag: a("v_writelane_b32 v247, s66, 0"); a("v_writelane_b32 v247, s67, 1")
    a("s_cbranch_scc0 L_others")

    if diag == 3: a("s_memrealtime s[84:85]")
    a("s_cmp_eq_u32 s35, 2"); a("s_cselect_b32 s36, s20, s22"); a("s_cselect_b32 s37, s21, s23")
    a("s_cmp_eq_u32 s35, 1"); a("s_cselect_b32 s36, s14, s36"); a("s_cselect_b32 s37, s15, s37")
    a("s_cmp_eq_u32 s35, 4"); a("s_cselect_b32 s36, s24, s36"); a("s_cselect_b32 s37, s25, s37")
    a("s_mov_b32 m0, s60"); a("s_mov_b32 s40, s10"); a("s_mov_b32 s41, s11")
    a("s_setprio 3")
    a("s_mov_b32 s58, 1")
    a("s_cmp_eq_u32 s61, 0"); a("s_cbranch_scc1 L_ld_kv")
    if diag == 3: a("s_memrealtime s[86:87]")
    a("L_tile:")
    a(f"s_waitcnt vmcnt({w0-1})")
    a(f"buffer_load_dwordx4 v24, s[36:39], s48 offen{wf} lds")
    a("s_add_u32 m0, m0, 1024"); a("s_add_u32 s48, s48, s56")
    a(f"s_waitcnt vmcnt({w0-1})")
    a(f"buffer_load_dwordx4 v25, s[36:39], s48 offen{wf} lds")
    a("s_add_u32 m0, m0, 1024"); a("s_add_u32 s48, s48, s56")
    a("s_sub_u32 s61, s61, 1")
    a(f"s_cmp_lg_u32 s61, {28 - min(w0, 24)//2}"); a("s_cbranch_scc1 L_tile_nb"); a("s_waitcnt lgkmcnt(0)"); a("s_barrier"); a("s_movk_i32 s58, 100"); a("L_tile_nb:")
    a("s_cmp_lg_u32 s61, 0"); a("s_cbranch_scc1 L_tile")
    a("L_ld_kv:")
    if diag == 3: a("s_memrealtime s[88:89]")
    a("s_mov_b32 s52, s54"); a("s_mov_b32 s50, 0"); a("s_mov_b32 s51, 0"); a(f"s_mov_b32 s63, {NS*SLOT}"); a("s_mov_b32 s53, 5")
    a("s_sub_u32 s55, s35, 1"); a("s_cmp_lt_u32 s55, 3"); a("s_cselect_b32 s46, 1, 0"); a("s_cmp_eq_u32 s7, 7"); a(f"s_cselect_b32 s46, {2 if w7 else (1 if j7heavy else 0)}, s46")
    if lateplus:
        a("s_cmp_eq_u32 s46, 0"); a("s_cselect_b32 s55, 2, 1"); a("s_cmp_ge_u32 s4, 4"); a("s_cselect_b32 s46, s55, s46")
    NWO = -(-64 // wo_per) if womode == 'L' else wo_n1
    NQ = 64 - NWO * wo_per if womode == 'q' else 0
    assert wo_start >= 19 and wo_start + NWO <= 30 and wo_per % 2 == 0
    def item_check(c):
        a(f"L_check{c}:")
        a("s_waitcnt lgkmcnt(0)")
        a("v_min3_u32 v40, v40, v41, v42")
        a("v_min3_u32 v40, v40, v43, v44")
        a("s_sub_u32 s56, s50, s53")
        a("v_readfirstlane_b32 s55, v40")
        a("s_cmp_gt_u32 s55, s56")
        a(f"s_cbranch_scc0 L_slow{c}")
        a(f"L_chk_done{c}:")
        if lag:
            a("v_readfirstlane_b32 s47, v45"); a("s_cmp_lt_u32 s50, s47"); a(f"s_cbranch_scc1 L_go{c}l")
        if endboost and c == "P": a(f"s_cmp_ge_u32 s50, {32-endboost}"); a(f"s_cbranch_scc1 L_go{c}b")
        if c == "P": a("L_chk_earlyP:")
        if wh: a("s_cmp_eq_u32 s46, 1"); a(f"s_cbranch_scc1 L_go{c}h")
        if w7 and c == "P": a("s_cmp_eq_u32 s46, 2"); a("s_cbranch_scc1 L_goP7")
    def item_body(c, w, nwo):
        a(f"L_go{c}:")
        if diag == 2:
            a("s_memrealtime s[70:71]"); a("s_waitcnt lgkmcnt(0)"); a("s_mov_b32 m0, s50"); a("v_writelane_b32 v60, s70, m0")
        if nwo:
            a("s_mov_b32 m0, s60")
            for k in range(nwo):
                a(f"s_waitcnt vmcnt({w-1})")
                a(f"buffer_load_dwordx4 v{24+(k&1)}, s[36:39], s48 offen{wof} lds")
                a("s_add_u32 m0, m0, 1024"); a(f"s_add_u32 s48, s48, {8*896}")
            a("s_mov_b32 s60, m0")
        nsig = max(0, w - 17 - nwo)
        for grp in range(4):
            if grp == 0: a("s_mov_b32 m0, s51")
            else:
                a("s_add_u32 m0, m0, 4096"); a("s_add_u32 s52, s52, 4096")
            if grp == 3:
                a(f"ds_read_b128 v[40:43], v10 offset:{C_CP}"); a(f"ds_read_b64 v[44:45], v10 offset:{C_FP}")
            for q in range(4):
                n = grp * 4 + q
                a(f"s_waitcnt vmcnt({w-1})")
                if n == nsig:
                    a("v_mov_b32 v46, s50"); a(f"ds_write_b32 v10, v46 offset:{C_FILL}")
                a(f"buffer_load_dwordx4 v{16+(n&7)}, s[40:43], s52 offen offset:{1024*q}{kvf} lds")
        a("s_add_u32 s52, s52, 4096")
        a(f"s_add_u32 s51, s51, {SLOT}"); a("s_cmp_eq_u32 s51, s63"); a("s_cselect_b32 s51, 0, s51")
        a("s_add_u32 s50, s50, 1")
    def slow(c):
        a(f"L_slow{c}:")
        budget()
        a(f"ds_read_b128 v[40:43], v10 offset:{C_CP}"); a(f"ds_read_b64 v[44:45], v10 offset:{C_FP}")
        a(f"s_branch L_check{c}")
    a("L_item:")
    a("s_cmp_lg_u32 s50, s58"); a("s_cbranch_scc1 L_nobar"); a("s_waitcnt lgkmcnt(0)"); a("s_barrier"); a("L_nobar:")
    if early_inline: a(f"s_cmp_lt_u32 s50, {early_inline}"); a("s_cbranch_scc1 L_goP")
    a("s_cmp_lt_u32 s50, 5"); a("s_cbranch_scc1 L_chk_earlyP")
    item_check("P")
    item_body("P", win, 0)
    a("L_afterP:")
    a("s_cmp_eq_u32 s50, 16"); a("s_cbranch_scc1 L_tov")
    a(f"s_cmp_eq_u32 s50, {wo_start}"); a("s_cbranch_scc1 L_towo")
    a("L_item_next:")
    a("s_cmp_lt_u32 s50, 32"); a("s_cbranch_scc1 L_item")
    stamp(1)
    a("v_mov_b32 v46, 32"); a("v_mov_b32 v47, 33")
    a("s_waitcnt vmcnt(16)")
    a(f"ds_write_b32 v10, v46 offset:{C_FILL}")
    a("s_waitcnt vmcnt(0)")
    a(f"ds_write_b32 v10, v47 offset:{C_FILL}")
    stamp(3)
    stamp(2)
    if diag == 3:
        for k in range(6): a(f"v_writelane_b32 v247, s{84+k}, {8+k}")
    if diag:
        a("s_lshl_b32 s60, s2, 8"); a(f"s_add_u32 s60, s60, {W_DIAG + 0x80000}"); a("v_lshl_add_u32 v61, v0, 2, s60")
        a("global_store_dword v61, v60, s[30:31]")
    dump_stamps(4)
    a("s_endpgm")

    a("L_others:")
    a("s_load_dword s32, s[30:31], 0")
    a("s_cmp_ge_u32 s3, 4"); a("s_cbranch_scc1 L_nox")
    a("s_sub_u32 s50, s35, 1"); a("s_cmp_ge_u32 s50, 3"); a("s_cbranch_scc1 L_nox")
    a("s_mul_i32 s50, s3, 896")
    a("v_add_u32 v11, s50, v9")
    a("v_mov_b32 v4, 0"); a("v_mov_b32 v5, 0"); a("v_mov_b32 v6, 0"); a("v_mov_b32 v7, 0")
    a("s_mov_b32 exec_hi, 0x00ffffff")
    a("global_load_dwordx4 v[4:7], v11, s[8:9]")
    a("s_mov_b32 exec_hi, -1")
    a("L_nox:")
    a("s_sub_u32 s50, s35, 1"); a("s_cmp_ge_u32 s50, 3"); a("s_cselect_b32 s51, 1, 0"); a("s_cselect_b32 s52, 4, 1")
    a("v_mov_b32 v12, s52"); a("v_mad_u32_u24 v12, v0, s51, v12")
    a("v_cmp_gt_u32 vcc, 4, v0")
    a("s_cmp_eq_u32 s35, 4"); a(f"s_cselect_b32 s50, 3, {BIG}")
    a("v_cndmask_b32 v12, 0, v12, vcc")
    a("v_mov_b32 v13, s50")
    a("v_cmp_eq_u32 vcc, 4, v0")
    a("v_lshl_add_u32 v14, v0, 2, v10")
    a("v_cndmask_b32 v12, v12, v13, vcc")
    a("ds_write_b32 v14, v12")
    a("s_waitcnt lgkmcnt(0)")
    a("s_mul_i32 s33, s32, 0x9E3779B1"); a("s_add_u32 s33, s33, 0x7F4A7C15")
    a("s_barrier")
    a("s_cmp_lt_u32 s3, 4"); a("s_cbranch_scc1 L_C")
    a("s_cmp_eq_u32 s3, 5"); a("s_cbranch_scc1 L_Q")
    a("s_cmp_eq_u32 s3, 6"); a("s_cbranch_scc1 L_F")
    a("s_branch L_R")

    slow("P")
    a("L_tov:")
    a("s_mov_b32 s40, s12"); a("s_mov_b32 s41, s13"); a("s_mov_b32 s52, s54")
    a("s_mov_b32 s51, 0"); a(f"s_mov_b32 s63, {5*SLOT}"); a("s_mov_b32 s53, 1")
    a("v_lshlrev_b32 v15, 1, v28"); a("v_xor_b32 v15, v15, v29")
    for p in range(8):
        f = 4 * (p & 1) + 8 * ((p >> 2) & 1)
        a(f"v_xor_b32 v{16+p}, {f}, v15")
        a(f"v_lshl_add_u32 v{16+p}, v{16+p}, 4, v30")
    a("s_mov_b32 s36, s16"); a("s_mov_b32 s37, s17"); a("s_mov_b32 s38, 3670016")
    a(f"s_mul_i32 s48, s4, {512*896}"); a("s_lshl_b32 s55, s7, 7"); a("s_add_u32 s48, s48, s55")
    a("s_movk_i32 s57, 896"); a(f"s_mov_b32 s60, {WOB}")
    a("v_mad_u32_u24 v24, v2, s57, v3"); a("v_xor_b32 v25, 64, v3"); a("v_mad_u32_u24 v25, v2, s57, v25")
    a("s_branch L_item")
    a("L_towo:")
    a("s_cmp_eq_u32 s7, 7"); a("s_cbranch_scc1 L_item")
    if nowo or NWO == 0: a("s_branch L_item")
    a("L_itemW:")
    item_check("W")
    item_body("W", wwo, wo_per)
    a("L_afterW:")
    a(f"s_cmp_lt_u32 s50, {wo_start + NWO}"); a("s_cbranch_scc1 L_itemW")
    a("s_branch L_item_next")
    slow("W")
    if endboost: item_body("Pb", wboost, 0); a("s_branch L_afterP")
    if lag:
        item_body("Pl", wlag, 0); a("s_branch L_afterP")
        item_body("Wl", wwolag, wo_per); a("s_branch L_afterW")
    if w7: item_body("P7", w7, 0); a("s_branch L_afterP")
    if wh:
        item_body("Ph", wh, 0); a("s_branch L_afterP")
        item_body("Wh", wwoh, wo_per); a("s_branch L_afterW")

    def tile_tr_addr(dst, tau_sgpr_or_const, base):
        a("v_lshrrev_b32 v16, 2, v14"); a("v_lshl_add_u32 v16, v15, 3, v16"); a("v_lshlrev_b32 v16, 7, v16")
        a("v_and_b32 v17, 1, v14"); a("v_lshl_add_u32 v16, v17, 3, v16")
        a("v_and_b32 v17, 1, v15"); a("v_lshrrev_b32 v18, 3, v14"); a("v_lshl_add_u32 v17, v17, 1, v18"); a("v_lshlrev_b32 v17, 1, v17")
        a("v_bfe_u32 v18, v14, 1, 1"); a("v_xor_b32 v17, v17, v18")
        if tau_sgpr_or_const is not None:
            a(f"s_lshl_b32 s50, {tau_sgpr_or_const}, 1"); a("v_xor_b32 v17, s50, v17")
        a(f"v_lshl_add_u32 {dst}, v17, 4, v16")
        if base: a(f"v_add_u32 {dst}, {base}, {dst}")
    a("L_C:")
    a("v_and_b32 v14, 15, v0")
    a("v_lshrrev_b32 v15, 4, v0")
    a("s_lshl_b32 s50, s3, 2"); a("v_add_u32 v12, s50, v10")
    a("v_mov_b32 v13, 1")
    a("v_mov_b32 v81, s33"); a("v_mov_b32 v83, s33")
    a("s_sub_u32 s50, s35, 1"); a("s_cmp_ge_u32 s50, 3"); a("s_cbranch_scc1 L_C_noproj")
    tile_tr_addr("v38", "s3", BIGW)
    a("v_and_b32 v17, 3, v14"); a("s_movk_i32 s50, 896"); a("v_mul_u32_u24 v16, s50, v17"); a("v_lshl_add_u32 v39, v15, 4, v16"); a(f"v_add_u32 v39, {XN}, v39")
    a("s_lshl_b32 s50, s49, 4")
    a("s_lshr_b32 s51, s49, 1"); a("s_lshl_b32 s51, s51, 1"); a("s_add_u32 s51, s51, s35"); a("s_sub_u32 s51, s51, 2"); a("s_lshl_b32 s51, s51, 7")
    a("s_and_b32 s52, s49, 1"); a("s_lshl_b32 s52, s52, 4"); a("s_add_u32 s51, s51, s52"); a(f"s_add_u32 s51, s51, {W_GU//16}")
    a(f"s_add_u32 s50, s50, {W_QG//16}")
    a("s_cmp_eq_u32 s35, 1"); a("s_cselect_b32 s50, s50, s51"); a("s_cselect_b32 s51, 1024, 32")
    a("s_lshl_b32 s52, s3, 2"); a("s_add_u32 s50, s50, s52")
    a("v_mad_u32_u24 v16, v14, s51, v15"); a("v_add_u32 v16, s50, v16"); a("v_lshlrev_b32 v37, 4, v16")
    if warm & 1:
        a("s_mov_b32 exec_lo, 0x0000000f"); a("s_mov_b32 exec_hi, 0")
        a(f"global_load_dword v245, v37, s[30:31] {warmfl}"); a("s_mov_b64 exec, -1")
        a("s_waitcnt vmcnt(1)")
    else:
        a("s_waitcnt vmcnt(0)")
    stamp(1)
    for i in range(4):
        a(f"v_lshlrev_b32 v{16+2*i}, 16, v{4+i}"); a(f"v_and_b32 v{17+2*i}, 0xffff0000, v{4+i}")
    a("v_add_f32 v24, v16, v17"); a("v_add_f32 v25, v18, v19"); a("v_add_f32 v26, v20, v21"); a("v_add_f32 v27, v22, v23")
    a("v_add_f32 v24, v24, v25"); a("v_add_f32 v26, v26, v27"); a("v_add_f32 v24, v24, v26")
    red16("v_add_f32", "v24"); swapred("v_add_f32", "v24", "v25", 16); swapred("v_add_f32", "v24", "v25", 32)
    a(f"v_mul_f32 v24, {hex(f2u(1.0/448))}, v24")
    a("v_mov_b32 v26, 0")
    a("s_mov_b32 exec_hi, 0x00ffffff")
    for i in range(8): a(f"v_sub_f32 v{28+i}, v{16+i}, v24")
    for i in range(8): a(f"v_fmac_f32 v26, v{28+i}, v{28+i}")
    a("s_mov_b32 exec_hi, -1")
    rbf("v25", "v24")
    red16("v_add_f32", "v26"); swapred("v_add_f32", "v26", "v27", 16); swapred("v_add_f32", "v26", "v27", 32)
    a(f"v_mul_f32 v26, {hex(f2u(1.0/448))}, v26")
    rbf("v26", "v26")
    a(f"v_add_f32 v26, {hex(f2u(1e-5))}, v26")
    rbf("v26", "v26")
    a("v_sqrt_f32 v26, v26")
    for i in range(8): a(f"v_sub_f32 v{28+i}, v{16+i}, v25")
    rbf("v26", "v26")
    a("v_rcp_f32 v26, v26")
    for i in range(4): a(f"v_cvt_pk_bf16_f32 v{16+i}, v{28+2*i}, v{29+2*i}")
    for i in range(4):
        a(f"v_lshlrev_b32 v{28+2*i}, 16, v{16+i}"); a(f"v_and_b32 v{29+2*i}, 0xffff0000, v{16+i}")
    for i in range(8): a(f"v_mul_f32 v{28+i}, v{28+i}, v26")
    for i in range(4): a(f"v_cvt_pk_bf16_f32 v{16+i}, v{28+2*i}, v{29+2*i}")
    a(f"v_add_u32 v11, {XN}, v11")
    a("s_mov_b32 exec_hi, 0x00ffffff")
    a("ds_write_b128 v11, v[16:19]")
    a("s_mov_b32 exec_hi, -1")
    a(f"ds_write_b32 v12, v13 offset:{C_XNF}")
    spin_all4(40, "v10", C_XNF, sleep=0)
    for s in range(14): a(f"ds_read_b128 v[{84+4*s}:{87+4*s}], v39 offset:{64*s}")
    stamp(2)
    spin_ge("v16", "v10", C_FILL, 1, sleep=0)
    for s in range(14):
        a(f"ds_read_b64_tr_b16 v[{140+4*s}:{141+4*s}], v38 offset:{4096*s}")
        a(f"ds_read_b64_tr_b16 v[{142+4*s}:{143+4*s}], v38 offset:{4096*s+512}")
    for s in range(14):
        n = 26 - 2 * s
        if n <= 15 and (s % 2 == 0 or s == 13): a(f"s_waitcnt lgkmcnt({max(0, n-2) if s != 13 else 0})")
        elif s == 0: a("s_waitcnt lgkmcnt(14)")
        c = "0" if s == 0 else "v[48:51]"
        a(f"v_mfma_f32_16x16x32_bf16 v[48:51], v[{140+4*s}:{143+4*s}], v[{84+4*s}:{87+4*s}], {c}")
    a("s_add_u32 s50, s3, 4"); a("v_mov_b32 v16, s50"); a(f"ds_write_b32 v12, v16 offset:{C_CP}")
    a("s_mov_b32 s50, 0x000f000f")
    a("v_cvt_pk_bf16_f32 v80, v48, v49"); a("v_cvt_pk_bf16_f32 v82, v50, v51")
    a("s_mov_b32 exec_lo, s50"); a("s_mov_b32 exec_hi, s50")
    if qlocal:
        a("s_cmp_eq_u32 s35, 1"); a("s_cbranch_scc1 L_pub_q")
    a("global_store_dwordx4 v37, v[80:83], s[30:31] sc1")
    if qlocal:
        a("s_branch L_pub_done"); a("L_pub_q:"); a("global_store_dwordx4 v37, v[80:83], s[30:31]"); a("L_pub_done:")
    a("s_mov_b64 exec, -1")
    a("L_C_noproj:")
    stamp(3)
    a("v_xor_b32 v16, v15, v14")
    a("v_lshlrev_b32 v17, 9, v14")
    for s in range(4):
        if s: a(f"v_xor_b32 v{20+s}, {4*s}, v16")
        else: a("v_mov_b32 v20, v16")
        a(f"v_lshl_add_u32 v{20+s}, v{20+s}, 4, v17")
    a("v_lshrrev_b32 v16, 2, v14")
    a("v_lshl_add_u32 v17, v15, 3, v16")
    a("v_lshlrev_b32 v17, 9, v17")
    a("v_and_b32 v18, 1, v14"); a("v_lshl_add_u32 v17, v18, 3, v17")
    a("v_and_b32 v18, 1, v15"); a("v_lshl_add_u32 v18, v18, 2, v16"); a("v_lshlrev_b32 v18, 1, v18")
    a("v_bfe_u32 v19, v14, 1, 1")
    a("s_lshl_b32 s50, s3, 3"); a("v_add_u32 v19, s50, v19")
    a("v_xor_b32 v18, v18, v19")
    for tt in range(4):
        if tt: a(f"v_xor_b32 v{24+tt}, {2*tt}, v18")
        else: a("v_mov_b32 v24, v18")
        a(f"v_lshl_add_u32 v{24+tt}, v{24+tt}, 4, v17")
    a("v_and_b32 v16, 1, v0")
    a("v_lshlrev_b32 v17, 4, v15")
    a("v_lshl_add_u32 v28, v16, 9, v17"); a(f"v_add_u32 v28, {QI}, v28")
    a("v_lshl_add_u32 v29, v16, 10, v17"); a(f"v_add_u32 v29, {PB}, v29")
    a("v_lshrrev_b32 v16, 5, v0"); a("v_and_b32 v17, 31, v0"); a("s_lshl_b32 s50, s3, 5"); a("v_add_u32 v17, s50, v17")
    a("v_lshlrev_b32 v17, 1, v17"); a("v_lshl_add_u32 v30, v16, 10, v17"); a(f"v_add_u32 v30, {PB}, v30")
    a("v_lshl_add_u32 v31, v16, 4, v10")
    a("v_lshl_add_u32 v33, v16, 2, v10")
    a("s_lshl_b32 s50, s3, 2"); a("v_add_u32 v32, s50, v31")
    tile_tr_addr("v34", "s3", WOB)
    a("s_mov_b32 s44, 0xffff0000"); a("s_mov_b32 s45, 0xffff0000")
    a("s_mov_b32 s46, 0"); a("s_mov_b32 s47, -1")
    a("s_lshl_b32 s50, s6, 3"); a("s_add_u32 s50, s50, s4"); a("s_lshl_b32 s50, s50, 15"); a("s_lshl_b32 s51, s3, 10"); a("s_add_u32 s50, s50, s51"); a(f"s_add_u32 s50, s50, {W_H1}")
    a("v_add_u32 v16, s50, v9")
    a("s_lshl_b32 s51, s7, 12"); a("v_add_u32 v35, s51, v16")
    for i in range(1, 8):
        a(f"s_add_u32 s51, s7, {i}"); a("s_and_b32 s51, s51, 7"); a("s_lshl_b32 s51, s51, 12"); a(f"v_add_u32 v{247+i}, s51, v16")
    a("v_lshrrev_b32 v16, 5, v0"); a("v_lshlrev_b32 v16, 8, v16"); a("v_and_b32 v17, 1, v15"); a("v_lshl_add_u32 v16, v17, 5, v16"); a("v_add_u32 v16, v16, v14")
    a("s_lshl_b32 s50, s3, 6"); a("v_add_u32 v16, s50, v16"); a("v_lshlrev_b32 v16, 1, v16"); a(f"v_add_u32 v38, {OI}, v16")
    a("v_lshlrev_b32 v36, 4, v15"); a(f"v_add_u32 v36, {OI}, v36")
    a("s_mul_i32 s50, s6, 28"); a("s_lshl_b32 s51, s7, 2"); a("s_add_u32 s50, s50, s51"); a("s_add_u32 s50, s50, s3"); a("s_lshl_b32 s50, s50, 3"); a("s_add_u32 s50, s50, s4")
    a("s_lshl_b32 s50, s50, 7"); a(f"s_add_u32 s50, s50, {W_H2}"); a("v_add_u32 v37, s50, v9")
    if warm & 8:
        a("s_mov_b64 exec, 1"); a(f"global_load_dword v245, v37, s[30:31] {warmfl}"); a("s_mov_b64 exec, -1")
    a("s_mov_b32 s44, 0xffff0000"); a("s_mov_b32 s45, 0xffff0000")
    a("s_mov_b32 s46, 0"); a("s_mov_b32 s47, -1")
    spin_ge("v16", "v10", C_QRDY, 1)
    stamp(4)
    for s in range(8): a(f"ds_read_b128 v[{64+4*s if s < 4 else 84+4*(s-4)}:{(64+4*s if s < 4 else 84+4*(s-4))+3}], v28 offset:{64*s}")
    qreg = lambda s: 64 + 4 * s if s < 4 else 84 + 4 * (s - 4)
    a("s_mov_b32 s50, s3")
    a("L_kitem:")
    a("s_add_u32 s51, s50, 2")
    a("s_sub_u32 s52, s50, 9"); a("s_cmp_ge_u32 s50, 9"); a("s_cselect_b32 s52, s52, s50")
    a("s_lshl_b32 s52, s52, 14")
    for s in range(4): a(f"v_add_u32 v{40+s}, s52, v{20+s}")
    spin_ge("v16", "v10", C_FILL, "s51")
    for s in range(8):
        for tl in range(2):
            a(f"ds_read_b128 v[{100+8*s+4*tl}:{103+8*s+4*tl}], v{40+(s&3)} offset:{(s>>2)*256 + tl*8192}")
    a("s_add_u32 s51, s50, 4"); a("s_min_u32 s51, s51, 16"); a("s_add_u32 s51, s51, 4")
    a("v_mov_b32 v16, s51")
    a(f"ds_write_b32 v12, v16 offset:{C_CP}")
    a("v_mov_b32 v63, v62"); a("v_mov_b32 v62, v61"); a("v_mov_b32 v61, v60")
    for s in range(8):
        if s % 2 == 0: a(f"s_waitcnt lgkmcnt({13 - 2*s})")
        for tl in range(2):
            c = "0" if s == 0 else f"v[{48+4*tl}:{51+4*tl}]"
            a(f"v_mfma_f32_16x16x32_bf16 v[{48+4*tl}:{51+4*tl}], v[{qreg(s)}:{qreg(s)+3}], v[{100+8*s+4*tl}:{103+8*s+4*tl}], {c}")
    a("v_cndmask_b32 v16, v48, v52, s[44:45]"); a("v_cndmask_b32 v17, v49, v53, s[44:45]"); a("v_cndmask_b32 v16, v16, v17, s[46:47]")
    rbf("v60", "v16")
    a("s_add_u32 s50, s50, 4"); a("s_cmp_lt_u32 s50, 16"); a("s_cbranch_scc1 L_kitem")
    stamp(5)
    a("v_max_f32 v16, v60, v61"); a("v_max3_f32 v16, v16, v62, v63")
    red16("v_max_f32", "v16"); swapred("v_max_f32", "v16", "v17", 16)
    a(f"ds_write_b32 v32, v16 offset:{C_MX}")
    a(f"ds_write_b32 v12, v13 offset:{C_MXF}")
    spin_all4(40, "v10", C_MXF, sleep=0)
    a(f"ds_read_b128 v[40:43], v31 offset:{C_MX}")
    a("s_waitcnt lgkmcnt(0)")
    a("v_max_f32 v16, v40, v41"); a("v_max3_f32 v16, v16, v42, v43")
    a(f"s_mov_b32 s50, {hex(f2u(CEXP))}")
    for i in range(4): a(f"v_sub_f32 v{60+i}, v{60+i}, v16")
    for i in range(4): a(f"v_mul_f32 v{60+i}, s50, v{60+i}")
    for i in range(4): a(f"v_exp_f32 v{60+i}, v{60+i}")
    a("v_add_f32 v17, v60, v61"); a("v_add_f32 v18, v62, v63"); a("v_add_f32 v17, v17, v18")
    a("v_cvt_pk_bf16_f32 v40, v63, v62"); a("v_cvt_pk_bf16_f32 v41, v61, v60")
    a("ds_write_b16 v30, v40 offset:0"); a("ds_write_b16_d16_hi v30, v40 offset:256")
    a("ds_write_b16 v30, v41 offset:512"); a("ds_write_b16_d16_hi v30, v41 offset:768")
    red16("v_add_f32", "v17"); swapred("v_add_f32", "v17", "v18", 16)
    a(f"ds_write_b32 v32, v17 offset:{C_LS}")
    a(f"ds_write_b32 v12, v13 offset:{C_PF}")
    for i in range(16): a(f"v_mov_b32 v{64+i}, 0")
    if prestore:
        a("s_not_b32 s50, s33")
        for i in range(4): a(f"v_mov_b32 v{84+i}, s50")
        a("global_store_dwordx4 v35, v[84:87], s[30:31]")
    spin_all4(40, "v10", C_PF, sleep=0)
    stamp(6)
    a("s_mov_b32 s50, 0")
    a("s_mov_b32 s52, 0")
    a("L_vitem:")
    a("ds_read_b128 v[44:47], v29")
    a("v_add_u32 v29, 64, v29")
    for tt in range(4): a(f"v_add_u32 v{40+tt}, s52, v{24+tt}")
    a("s_add_u32 s51, s50, 18")
    spin_ge("v16", "v10", C_FILL, "s51", sleep=kvsleep)
    for tt in range(4):
        a(f"ds_read_b64_tr_b16 v[{96+4*tt}:{97+4*tt}], v{40+tt}")
        a(f"ds_read_b64_tr_b16 v[{98+4*tt}:{99+4*tt}], v{40+tt} offset:2048")
    a("s_add_u32 s51, s50, 21"); a("v_mov_b32 v16, s51")
    a(f"ds_write_b32 v12, v16 offset:{C_CP}")
    a(f"s_add_u32 s52, s52, {SLOT}"); a(f"s_cmp_eq_u32 s52, {5*SLOT}"); a("s_cselect_b32 s52, 0, s52")
    for tt in range(4):
        a(f"s_waitcnt lgkmcnt({7-2*tt})")
        a(f"v_mfma_f32_16x16x32_bf16 v[{64+4*tt}:{67+4*tt}], v[44:47], v[{96+4*tt}:{99+4*tt}], v[{64+4*tt}:{67+4*tt}]")
    a("s_add_u32 s50, s50, 1"); a("s_cmp_lt_u32 s50, 14"); a("s_cbranch_scc1 L_vitem")
    a("s_cmp_eq_u32 s50, 16"); a("s_cbranch_scc1 L_vdone")
    H1L = [(120 + 4 * i, f"v{248+i}", 0) for i in range(7)]
    a("s_cmp_eq_u32 s50, 15"); a("s_cbranch_scc1 L_first")
    spin_ge("v16", "v10", C_FACF, 1, sleep=0)
    a(f"ds_read_b32 v39, v33 offset:{C_FAC}"); a(f"ds_read_b32 v16, v10 offset:{C_LOC}")
    for s in range(16):
        r = 150 + 4 * s
        a(f"ds_read_b64_tr_b16 v[{r}:{r+1}], v34 offset:{4096*s}")
        a(f"ds_read_b64_tr_b16 v[{r+2}:{r+3}], v34 offset:{4096*s+512}")
    a("s_waitcnt lgkmcnt(0)"); a("v_readfirstlane_b32 s57, v16")
    a("s_branch L_vitem")
    a("L_first:")
    a("s_cmp_eq_u32 s7, 7"); a("s_cbranch_scc1 L_vitem")
    if not notail:
        for (d, va, off) in H1L: a(f"global_load_dwordx4 v[{d}:{d+3}], {va}, s[30:31] sc1")
    a("s_branch L_vitem")
    a("L_vdone:")
    a("s_nop 2")
    stamp(7)
    if notail: dump_stamps(11); a("s_endpgm")
    a("v_cndmask_b32 v16, v64, v72, s[44:45]"); a("v_cndmask_b32 v17, v65, v73, s[44:45]")
    a("v_cndmask_b32 v18, v68, v76, s[44:45]"); a("v_cndmask_b32 v19, v69, v77, s[44:45]")
    a("v_cndmask_b32 v16, v16, v17, s[46:47]"); a("v_cndmask_b32 v18, v18, v19, s[46:47]")
    a("s_cmp_eq_u32 s57, 1")
    a("v_mul_f32 v80, v16, v39"); a("v_mul_f32 v82, v18, v39")
    a("s_cbranch_scc0 L_st_far")
    a("global_store_dwordx4 v35, v[80:83], s[30:31]")
    a("L_st_done:")
    stamp(8)
    a("s_cmp_eq_u32 s7, 7"); a("s_cbranch_scc1 L_red")
    if h1mode == 'bf':
        a("s_waitcnt vmcnt(1)")
        a("L_h1_chk:")
        for i, (d, va, off) in enumerate(H1L): a(f"v_cmp_ne_u32 s[{68+2*i}:{69+2*i}], s33, v{d+3}")
        a("v_xor_b32 v96, s33, v121"); a("v_xor_b32 v97, s33, v125")
        a("s_or_b64 vcc, s[68:69], s[70:71]"); a("s_or_b64 s[82:83], s[72:73], s[74:75]"); a("s_or_b64 s[84:85], s[76:77], s[78:79]")
        a("v_bitop3_b32 v96, v129, s33, v96 bitop3:0xbe"); a("v_bitop3_b32 v97, v133, s33, v97 bitop3:0xbe")
        a("s_or_b64 vcc, vcc, s[80:81]"); a("s_or_b64 s[82:83], s[82:83], s[84:85]"); a("s_or_b64 vcc, vcc, s[82:83]")
        a("s_cbranch_scc1 L_h1_more")
        a("L_h1_ver:")
        a("v_bitop3_b32 v96, v137, s33, v96 bitop3:0xbe"); a("v_bitop3_b32 v97, v141, s33, v97 bitop3:0xbe")
        a("v_bitop3_b32 v96, v145, s33, v96 bitop3:0xbe"); a("v_or_b32 v96, v96, v97"); a("v_cmp_ne_u32 vcc, 0, v96")
        a("s_cbranch_vccnz L_h1_all")
    else:
        a("s_movk_i32 s56, 0x7f")
        a("s_waitcnt vmcnt(1)")
        a("L_h1_scan:")
        for i, (d, va, off) in enumerate(H1L):
            a(f"s_bitcmp1_b32 s56, {i}"); a(f"s_cbranch_scc0 L_h1_n{i}")
            a(f"v_xor_b32 v96, s33, v{d+1}"); a(f"v_bitop3_b32 v96, v{d+3}, s33, v96 bitop3:0xbe"); a("v_cmp_ne_u32 vcc, 0, v96")
            a(f"s_cbranch_vccnz L_h1_n{i}")
            a(f"s_bitset0_b32 s56, {i}")
            a(f"L_h1_n{i}:")
        a("s_cmp_lg_u32 s56, 0"); a("s_cbranch_scc1 L_h1_more")
    a("L_h1_done:")
    stamp(9)
    a("v_add_f32 v56, v80, v120"); a("v_add_f32 v57, v82, v122")
    a("v_add_f32 v124, v124, v128"); a("v_add_f32 v126, v126, v130")
    a("v_add_f32 v132, v132, v136"); a("v_add_f32 v134, v134, v138")
    a("v_add_f32 v140, v140, v144"); a("v_add_f32 v142, v142, v146")
    a("v_add_f32 v56, v56, v124"); a("v_add_f32 v57, v57, v126")
    a("v_add_f32 v132, v132, v140"); a("v_add_f32 v134, v134, v142")
    a("v_add_f32 v56, v56, v132"); a("v_add_f32 v57, v57, v134")
    a("v_cvt_pk_bf16_f32 v16, v56, v57")
    a("ds_write_b16 v38, v16"); a("ds_write_b16_d16_hi v38, v16 offset:32")
    a(f"ds_write_b32 v12, v13 offset:{C_OF}")
    spin_all4(40, "v10", C_OF, sleep=0)
    for s in range(16): a(f"ds_read_b128 v[{84+4*s if s < 16 else 0}:{87+4*s}], v36 offset:{64*s}")
    for s in range(16):
        if s % 4 == 0: a(f"s_waitcnt lgkmcnt({12 - s})")
        acc = 48 + 4 * (s & 1)
        c = "0" if s < 2 else f"v[{acc}:{acc+3}]"
        a(f"v_mfma_f32_16x16x32_bf16 v[{acc}:{acc+3}], v[{84+4*s}:{87+4*s}], v[{150+4*s}:{153+4*s}], {c}")
    a("v_add_f32 v80, v48, v52")
    a(f"v_mov_b32_dpp v82, v80 row_ror:8 {DPPF}")
    a("s_mov_b64 exec, 0xff")
    a("global_store_dwordx4 v37, v[80:83], s[30:31] sc1")
    a("L_c_exit:")
    stamp(10)
    dump_stamps(11)
    a("s_endpgm")
    if h1mode == 'bf':
        a("L_h1_all:")
        for i in range(7): a(f"s_mov_b64 s[{68+2*i}:{69+2*i}], -1")
        a("L_h1_more:")
        a("s_mov_b32 s56, 0")
        for i in range(7):
            a(f"s_cmp_lg_u64 s[{68+2*i}:{69+2*i}], 0"); a("s_addc_u32 s56, s56, s56")
        a("s_sub_u32 s55, s56, 1"); a("s_and_b32 s55, s55, s56"); a("s_cbranch_scc0 L_h1_one")
        for i, (d, va, off) in enumerate(H1L):
            a(f"s_mov_b64 exec, s[{68+2*i}:{69+2*i}]")
            a(f"global_load_dwordx4 v[{d}:{d+3}], {va}, s[30:31] sc1")
        a("s_mov_b64 exec, -1")
        budget()
        a("s_waitcnt vmcnt(0)")
        a("s_branch L_h1_chk")
        a("L_h1_one:")
        for i in range(6):
            a(f"s_bitcmp1_b32 s56, {6-i}"); a(f"s_cbranch_scc1 L_h1_t{i}")
        for i in (6, 0, 1, 2, 3, 4, 5):
            d, va, off = H1L[i]
            a(f"L_h1_t{i}:")
            a(f"global_load_dwordx4 v[{d}:{d+3}], {va}, s[30:31] sc1")
            budget()
            a("s_waitcnt vmcnt(0)")
            a(f"v_cmp_ne_u32 vcc, s33, v{d+3}")
            a("v_xor_b32 v96, s33, v121"); a("v_xor_b32 v97, s33, v125")
            a(f"s_cbranch_vccnz L_h1_t{i}")
            a("v_bitop3_b32 v96, v129, s33, v96 bitop3:0xbe"); a("v_bitop3_b32 v97, v133, s33, v97 bitop3:0xbe")
            a("s_branch L_h1_ver")
    else:
        a("L_h1_more:")
        a("s_sub_u32 s55, s56, 1"); a("s_and_b32 s55, s55, s56"); a("s_cbranch_scc0 L_h1_one")
        for i, (d, va, off) in enumerate(H1L):
            a(f"s_bitcmp1_b32 s56, {i}"); a(f"s_cbranch_scc0 L_h1_s{i}")
            a(f"global_load_dwordx4 v[{d}:{d+3}], {va}, s[30:31] sc1")
            a(f"L_h1_s{i}:")
        budget()
        a("s_waitcnt vmcnt(0)")
        a("s_branch L_h1_scan")
        a("L_h1_one:")
        for i in range(6):
            a(f"s_bitcmp1_b32 s56, {i}"); a(f"s_cbranch_scc1 L_h1_t{i}")
        for i in (6, 0, 1, 2, 3, 4, 5):
            d, va, off = H1L[i]
            a(f"L_h1_t{i}:")
            a(f"global_load_dwordx4 v[{d}:{d+3}], {va}, s[30:31] sc1")
            budget()
            a("s_waitcnt vmcnt(0)")
            a(f"v_xor_b32 v96, s33, v{d+1}"); a(f"v_bitop3_b32 v96, v{d+3}, s33, v96 bitop3:0xbe"); a("v_cmp_ne_u32 vcc, 0, v96")
            a(f"s_cbranch_vccnz L_h1_t{i}")
            a("s_branch L_h1_done")
    a("L_st_far:")
    a("global_store_dwordx4 v35, v[80:83], s[30:31] sc1")
    a("s_branch L_st_done")

    nq = [0]
    def needq():
        nq[0] += 1; k = nq[0]
        a("s_cmp_eq_u32 s58, 1"); a(f"s_cbranch_scc0 L_nq_skip{k}")
        a(f"L_nq{k}:")
        a("global_load_dwordx4 v[56:59], v30, s[30:31] sc1")
        budget()
        a("s_waitcnt vmcnt(0)")
        tagcheck(["v57", "v59"], "v18", "v19", f"L_nq{k}")
        a("global_store_dwordx4 v30, v[56:59], s[30:31] sc1")
        a("s_mov_b32 s58, 0")
        a(f"L_nq_skip{k}:")
    a("L_Q:")
    a("v_and_b32 v14, 15, v0"); a("v_lshrrev_b32 v15, 4, v0")
    a("s_lshl_b32 s50, s6, 10"); a("s_lshl_b32 s51, s4, 7"); a("s_add_u32 s50, s50, s51"); a("s_lshl_b32 s50, s50, 4"); a(f"s_add_u32 s50, s50, {W_QG}")
    a("v_add_u32 v25, s50, v9")
    a("v_lshlrev_b32 v26, 3, v0"); a(f"v_add_u32 v26, {QI}, v26")
    a("v_mov_b32 v43, s33")
    a("s_lshl_b32 s50, s49, 8"); a(f"s_add_u32 s50, s50, {W_QG}"); a("v_lshlrev_b32 v16, 14, v15"); a("v_lshl_add_u32 v16, v14, 4, v16"); a("v_add_u32 v30, s50, v16")
    a("s_cmp_eq_u32 s35, 1"); a(f"s_cselect_b32 s58, {1 if qlocal else 0}, 0")
    a(f"s_mov_b32 s55, {q_rounds}")
    spin_ge("v16", "v10", C_FILL, qpoll_fill, sleep=1)
    stamp(1)
    def qhook():
        a("s_sub_u32 s55, s55, 1"); a("s_cbranch_scc0 L_q_nohook"); needq(); a("L_q_nohook:")
    mpoll([(48, "v25", 0), (52, "v25", 1024)], "q", 16, sleep=qsleep, hook=qhook)
    a("ds_write2_b32 v26, v48, v50 offset0:0 offset1:1")
    a("ds_write2_b32 v26, v52, v54 offset0:128 offset1:129")
    a("v_mov_b32 v16, 1"); a(f"ds_write_b32 v10, v16 offset:{C_QRDY}")
    stamp(2)
    a("v_and_b32 v17, 1, v0"); a("v_lshlrev_b32 v16, 4, v17")
    a("v_add_u32 v18, s6, v15"); a("v_and_b32 v18, 3, v18"); a("v_lshlrev_b32 v18, 13, v18")
    a("v_lshrrev_b32 v19, 1, v14"); a("v_lshl_add_u32 v18, v19, 7, v18"); a("v_add_u32 v18, v18, v16")
    a("s_lshl_b32 s50, s4, 10"); a(f"s_add_u32 s50, s50, {W_MLG}"); a("v_add_u32 v25, s50, v18")
    a("s_lshl_b32 s51, s6, 13"); a("s_add_u32 s50, s50, s51"); a("s_lshl_b32 s51, s7, 7"); a("s_add_u32 s50, s50, s51"); a("v_add_u32 v24, s50, v16")
    a("v_add_u32 v27, v16, v10")
    a("v_lshl_add_u32 v28, v17, 2, v10")
    a("s_getreg_b32 s52, hwreg(HW_REG_XCC_ID, 0, 4)")
    a("s_xor_b32 s53, s52, s33"); a("v_mov_b32 v41, s53")
    spin_all4(44, "v10", C_PF, sleep=4)
    if lag: a("s_memrealtime s[84:85]")
    a(f"ds_read_b128 v[44:47], v27 offset:{C_MX}"); a(f"ds_read_b128 v[48:51], v27 offset:{C_LS}")
    a("s_waitcnt lgkmcnt(0)")
    a("v_max_f32 v40, v44, v45"); a("v_max3_f32 v40, v40, v46, v47")
    a("v_add_f32 v48, v48, v49"); a("v_add_f32 v50, v50, v51"); a("v_add_f32 v42, v48, v50")
    a("v_mov_b32 v39, v40")
    if lag:
        a("s_and_b32 s84, s84, 0xffff"); a("v_or_b32 v40, s84, v40")
    a("s_mov_b64 exec, 3")
    a("global_store_dwordx4 v24, v[40:43], s[30:31]")
    a("s_mov_b64 exec, -1")
    if lag:
        a(f"ds_read_b32 v21, v10 offset:{C_FILL}")
        a("global_load_dwordx4 v[48:51], v25, s[30:31] sc1")
        a("s_waitcnt vmcnt(0) lgkmcnt(0)")
        a("v_xor_b32 v16, s33, v49"); a("v_lshrrev_b32 v17, 4, v16"); a("v_bitop3_b32 v17, v51, s33, v17 bitop3:0xbe")
        a("v_sub_u32 v18, s84, v48"); a("v_bfe_i32 v18, v18, 0, 16"); a("v_cmp_eq_u32 vcc, 0, v17"); a("v_cndmask_b32 v18, 0, v18, vcc")
        a("v_readfirstlane_b32 s59, v21"); a("s_mov_b32 s85, 0")
        for th, n in lag:
            a(f"v_cmp_lt_i32 vcc, {th}, v18"); a("s_bcnt1_i32_b64 s86, vcc"); a(f"s_cmp_ge_u32 s86, {lagcnt}"); a(f"s_cselect_b32 s85, {n}, s85")
        a("s_add_u32 s59, s59, 4"); a("s_add_u32 s59, s59, s85"); a("s_cmp_eq_u32 s85, 0"); a("s_cselect_b32 s59, 0, s59")
        a("v_mov_b32 v21, s59"); a(f"ds_write_b32 v10, v21 offset:{C_FP+4}")
    a(f"s_mov_b32 s55, {ml_rounds}")
    stamp(3)
    spin_ge("v16", "v10", C_FILL, ml_fill, sleep=8)
    def mlload():
        a("global_load_dwordx4 v[48:51], v25, s[30:31] sc1")
        a("s_waitcnt vmcnt(0)")
        a("v_xor_b32 v16, s33, v49"); a("v_lshrrev_b32 v17, 4, v16"); a("v_bitop3_b32 v17, v51, s33, v17 bitop3:0xbe")
        a("v_cmp_ne_u32 s[56:57], s52, v16"); a("v_cmp_ne_u32 s[60:61], 0, v17")
        a("s_andn2_b64 s[56:57], s[56:57], s[60:61]")
    def mlpub():
        a("s_mov_b64 exec, 3")
        a("global_store_dwordx4 v24, v[40:43], s[30:31] sc1")
        a("s_mov_b64 exec, -1")
    a("s_branch L_ml_first")
    a("L_ml_retry:")
    budget()
    a("s_cmp_eq_u32 s55, 1000"); a("s_cbranch_scc1 L_ml_again")
    a("s_and_b32 s59, s56, 0xffff"); a("s_cbranch_scc1 L_ml_pub")
    a("s_sub_u32 s55, s55, 1"); a("s_cbranch_scc0 L_ml_again")
    a("L_ml_pub:")
    mlpub(); needq()
    a("s_movk_i32 s55, 1000")
    a("L_ml_again:")
    a("s_sleep 4")
    a("L_ml_first:")
    mlload()
    a("s_and_b32 s59, s60, 0xffff"); a("s_cbranch_scc1 L_ml_retry")
    a("s_and_b32 s59, s56, 0xffff"); a(f"s_cselect_b32 s54, 0, {0 if forcesc1 else 1}"); a("s_cbranch_scc0 L_ml_ok")
    mlpub()
    a("L_ml_ok:")
    a(f"s_mov_b32 s50, {hex(f2u(CEXP))}")
    a("v_and_b32 v48, 0xffff0000, v48")
    a("v_mov_b32 v44, v48")
    for m in ("quad_perm:[2,3,0,1]", "row_ror:4", "row_ror:8"): a(f"v_max_f32_dpp v44, v44, v44 {m} {DPPF}")
    a("v_sub_f32 v45, v48, v44"); a("v_sub_f32 v46, v39, v44")
    a("v_mul_f32 v45, s50, v45"); a("v_mul_f32 v46, s50, v46")
    a("v_exp_f32 v45, v45"); a("v_exp_f32 v46, v46")
    a("v_mul_f32 v45, v45, v50")
    for m in ("quad_perm:[2,3,0,1]", "row_ror:4", "row_ror:8"): a(f"v_add_f32_dpp v45, v45, v45 {m} {DPPF}")
    a("v_rcp_f32 v45, v45")
    a("v_mov_b32 v17, s54")
    a("v_mul_f32 v46, v46, v45")
    a("v_mov_b32 v16, 1")
    a("s_mov_b64 exec, 3")
    a(f"ds_write_b32 v28, v46 offset:{C_FAC}")
    a(f"ds_write_b32 v10, v17 offset:{C_LOC}")
    a(f"ds_write_b32 v10, v16 offset:{C_FACF}")
    a("s_mov_b64 exec, -1")
    stamp(4)
    a("s_cmp_eq_u32 s35, 4"); a("s_cselect_b32 s59, 1, s58"); a("s_cmp_eq_u32 s59, 0"); a("s_cbranch_scc1 L_q_exit")
    a(f"s_mov_b32 s55, {all_rounds}"); a("v_mov_b32 v20, 1")
    a("L_all:")
    a("s_cmp_lg_u64 s[56:57], 0"); a("s_cbranch_scc1 L_all_no")
    a("s_cmp_eq_u64 s[60:61], 0"); a("s_cbranch_scc1 L_all_yes")
    a("s_sub_u32 s55, s55, 1"); a("s_cbranch_scc1 L_all_no")
    a("s_sleep 8")
    mlload()
    a("s_branch L_all")
    a("L_all_no:")
    needq()
    a("v_mov_b32 v20, 2")
    a("L_all_yes:")
    a(f"ds_write_b32 v10, v20 offset:{C_ALL}")
    a("L_q_exit:")
    stamp(5)
    dump_stamps(7)
    a("s_endpgm")

    a("L_F:")
    a("s_cmp_eq_u32 s35, 4"); a("s_cbranch_scc0 L_end")
    a("v_and_b32 v14, 15, v0"); a("v_lshrrev_b32 v15, 4, v0")
    tile_tr_addr("v20", None, F2B)
    for tau in range(1, 4): a(f"v_xor_b32 v{20+tau}, {32*tau}, v20")
    a("s_mov_b32 s50, s5"); a("s_mov_b32 s51, s4")
    a("s_lshl_b32 s52, s50, 12"); a(f"s_add_u32 s52, s52, {W_GU}"); a("v_add_u32 v25, s52, v9")
    a("s_mul_i32 s52, s50, 28"); a("s_add_u32 s52, s52, s51"); a("s_lshl_b32 s52, s52, 9"); a(f"s_add_u32 s52, s52, {W_OG}")
    a("v_and_b32 v17, 3, v14"); a("v_lshrrev_b32 v18, 2, v14"); a("v_lshlrev_b32 v18, 6, v18"); a("v_lshl_add_u32 v18, v15, 4, v18")
    a(f"s_movk_i32 s51, {7*512}"); a("v_mad_u32_u24 v16, v17, s51, v18"); a("v_add_u32 v24, s52, v16")
    if warm & 4:
        a(f"global_load_dword v30, v24, s[30:31] {warmfl}"); a(f"global_load_dword v31, v24, s[30:31] offset:256 {warmfl}")
    a("v_lshlrev_b32 v26, 3, v0"); a(f"v_add_u32 v26, {HA}, v26")
    a("v_lshlrev_b32 v16, 8, v17"); a("v_lshl_add_u32 v27, v15, 4, v16"); a(f"v_add_u32 v27, {HA}, v27")
    a("s_mov_b32 s44, 0xf0f0f0f0"); a("s_mov_b32 s45, 0xf0f0f0f0"); a("s_mov_b32 s46, 0xff00ff00"); a("s_mov_b32 s47, 0xff00ff00")
    spin_ge("v16", "v10", C_FILL, 1, sleep=2)
    for s in range(4):
        for tau in range(4):
            r = 128 + (s * 4 + tau) * 4
            a(f"ds_read_b64_tr_b16 v[{r}:{r+1}], v{20+tau} offset:{4096*s}")
            a(f"ds_read_b64_tr_b16 v[{r+2}:{r+3}], v{20+tau} offset:{4096*s+512}")
    a(f"v_mov_b32 v16, {BIG}"); a("s_waitcnt lgkmcnt(0)"); a(f"ds_write_b32 v10, v16 offset:{C_FP}")
    stamp(1)
    if noffn: a("s_endpgm")
    if gu_fill is None: spin_ge("v16", "v10", C_QRDY, 1, sleep=4)
    else: spin_ge("v16", "v10", C_FILL, gu_fill, sleep=8)
    a("L_h_retry:")
    for i in range(4): a(f"global_load_dwordx4 v[{64+4*i}:{67+4*i}], v25, s[30:31] offset:{1024*i} sc1")
    budget()
    a("s_waitcnt vmcnt(0)")
    if not nogupoll: tagcheck([f"v{65+2*i}" for i in range(8)], "v16", "v17", "L_h_retry")
    stamp(2)
    for k in range(4):
        a(f"v_lshlrev_b32 v{84+2*k}, 16, v{64+2*k}"); a(f"v_and_b32 v{85+2*k}, 0xffff0000, v{64+2*k}")
        a(f"v_lshlrev_b32 v{92+2*k}, 16, v{72+2*k}"); a(f"v_and_b32 v{93+2*k}, 0xffff0000, v{72+2*k}")
    a(f"s_mov_b32 s50, {hex(f2u(-LOG2E))}")
    for i in range(8): a(f"v_mul_f32 v{100+i}, s50, v{84+i}")
    for i in range(8): a(f"v_exp_f32 v{100+i}, v{100+i}")
    for i in range(8): a(f"v_add_f32 v{100+i}, 1.0, v{100+i}")
    for i in range(8): a(f"v_rcp_f32 v{100+i}, v{100+i}")
    for i in range(8): a(f"v_mul_f32 v{100+i}, v{100+i}, v{84+i}")
    for i in range(8): rbf(f"v{100+i}", f"v{100+i}")
    for i in range(8): a(f"v_mul_f32 v{100+i}, v{100+i}, v{92+i}")
    for k in range(4): a(f"v_cvt_pk_bf16_f32 v{108+k}, v{100+2*k}, v{101+2*k}")
    a("ds_write_b64 v26, v[108:109]"); a("ds_write_b64 v26, v[110:111] offset:512")
    for s in range(4): a(f"ds_read_b128 v[{64+4*s}:{67+4*s}], v27 offset:{64*s}")
    a("s_waitcnt lgkmcnt(0)")
    for s in range(4):
        for tau in range(4):
            r = 128 + (s * 4 + tau) * 4
            c = "0" if s == 0 else f"v[{84+4*tau}:{87+4*tau}]"
            a(f"v_mfma_f32_16x16x32_bf16 v[{84+4*tau}:{87+4*tau}], v[{r}:{r+3}], v[{64+4*s}:{67+4*s}], {c}")
    for k in (41, 43, 45, 47): a(f"v_mov_b32 v{k}, s33")
    for r in range(4):
        a(f"v_cndmask_b32 v16, v{84+r}, v{88+r}, s[44:45]"); a(f"v_cndmask_b32 v17, v{92+r}, v{96+r}, s[44:45]")
        a(f"v_cndmask_b32 v{40+2*r}, v16, v17, s[46:47]")
    if oglocal:
        spin_ge("v16", "v10", C_ALL, 1, sleep=2)
        a("v_cmp_eq_u32 vcc, 1, v16"); a("s_cbranch_vccz L_og_far")
        a("global_store_dwordx4 v24, v[40:43], s[30:31]")
        a("global_store_dwordx4 v24, v[44:47], s[30:31] offset:256")
        a("s_branch L_og_done")
        a("L_og_far:")
    a("global_store_dwordx4 v24, v[40:43], s[30:31] sc1")
    a("global_store_dwordx4 v24, v[44:47], s[30:31] offset:256 sc1")
    a("L_og_done:")
    stamp(3)
    dump_stamps(4)
    a("s_endpgm")

    a("L_R:")
    if prefetch_code:
        a("s_getpc_b64 s[48:49]")
        a("L_pc:")
        a(f"s_sub_u32 s48, s48, L_pc-{KNAME}_kernel"); a("s_subb_u32 s49, s49, 0")
        a("s_lshl_b32 s50, s5, 10"); a(f"s_cmp_lt_u32 s50, L_fail-{KNAME}_kernel-1024"); a("s_cbranch_scc0 L_nopf")
        a("v_add_u32 v16, s50, v9")
        a("global_load_dwordx4 v[20:23], v16, s[48:49]")
        a("L_nopf:")
    a("s_cmp_lg_u32 s2, 255"); a("s_cbranch_scc1 L_r_exit")
    for k in range(4): a(f"v_add_u32 v{28+k}, {W_H2 + k*28*1024}, v9")
    spin_ge("v16", "v10", C_FILL, 33, sleep=16)
    if not notail and not noew: mpoll([(48 + 4 * k, f"v{28+k}", 0) for k in range(4)], "ew", 16, sleep=h2sleep)
    a("s_mov_b64 exec, 1")
    a("v_mov_b32 v16, 0"); a("v_mov_b32 v17, s33")
    a(f"global_store_dword v16, v17, s[30:31] {efl}")
    a("s_branch L_r_exit")
    a("L_red:")
    a("s_cmp_eq_u32 s4, 7"); a("s_cbranch_scc1 L_r_exit")
    a("s_mov_b32 s51, s6"); a("s_lshl_b32 s52, s4, 2"); a("s_add_u32 s52, s52, s3"); a("s_mul_i32 s50, s51, 28"); a("s_add_u32 s50, s50, s52")
    a("s_mul_i32 s53, s51, 448"); a("s_lshl_b32 s54, s52, 4"); a("s_add_u32 s53, s53, s54")
    a("v_lshrrev_b32 v16, 5, v0"); a("v_and_b32 v17, 7, v0"); a("v_lshl_add_u32 v18, v16, 3, v17")
    a("v_add_u32 v19, s53, v18"); a("v_lshlrev_b32 v24, 1, v19")
    a("s_lshr_b32 s53, s52, 2"); a("s_mul_i32 s54, s51, 7"); a("s_add_u32 s53, s53, s54"); a("s_lshl_b32 s53, s53, 9")
    a("s_and_b32 s54, s52, 3"); a("s_lshl_b32 s54, s54, 6"); a("s_add_u32 s53, s53, s54"); a(f"s_add_u32 s53, s53, {W_OG}")
    a("v_bfe_u32 v19, v18, 1, 1"); a("v_lshlrev_b32 v19, 8, v19"); a("v_lshrrev_b32 v20, 2, v18"); a("v_lshl_add_u32 v19, v20, 4, v19")
    a("v_and_b32 v20, 1, v18"); a("v_lshl_add_u32 v19, v20, 3, v19"); a("v_add_u32 v19, s53, v19")
    a("v_bfe_u32 v21, v0, 3, 2"); a(f"s_movk_i32 s54, {28*512}")
    a("v_mad_u32_u24 v25, v21, s54, v19")
    a(f"v_add_u32 v27, {4*28*512}, v25"); a(f"v_add_u32 v28, {8*28*512}, v25")
    a("v_min_u32 v22, 1, v21"); a("v_add_u32 v22, 12, v22"); a("v_mad_u32_u24 v29, v22, s54, v19")
    a("v_cmp_gt_u32 s[44:45], 2, v21")
    a("s_lshl_b32 s56, s50, 10"); a(f"s_add_u32 s56, s56, {W_H2}"); a("v_add_u32 v26, s56, v9")
    a("global_load_ushort v30, v24, s[8:9]")
    if touch_out: a("global_load_ushort v31, v24, s[26:27]")
    a("s_branch L_og_first")
    a("L_og_retry:")
    budget()
    a("s_waitcnt vmcnt(0)")
    a("L_og_first:")
    for k, va in enumerate(("v25", "v27", "v28", "v29")): a(f"global_load_dwordx2 v[{32+2*k}:{33+2*k}], {va}, s[30:31] sc1")
    def gate():
        a("s_waitcnt vmcnt(1)")
        if not noogpoll: tagcheck(["v33", "v35", "v37", "v39"], "v16", "v17", "L_og_retry")
        a("v_cndmask_b32 v38, 0, v38, s[44:45]"); a("v_add_f32 v32, v32, v34"); a("v_add_f32 v36, v36, v38"); a("v_add_f32 v32, v32, v36")
        a(f"v_add_f32_dpp v32, v32, v32 row_ror:8 {DPPF}")
        swapred("v_add_f32", "v32", "v33", 16)
        rbf("v32", "v32")
        a(f"v_mul_f32 v33, {hex(f2u(-LOG2E))}, v32"); a("v_exp_f32 v33, v33"); a("v_add_f32 v33, 1.0, v33"); a("v_rcp_f32 v33, v33")
        a("v_mul_f32 v32, v32, v33"); rbf("v32", "v32")
        a("v_lshlrev_b32 v30, 16, v30")
        stamp(11)
    mpoll([(48, "v26", 0)], "h2", 16, sleep=h2sleep, pre=gate)
    stamp(12)
    a("v_permlane32_swap_b32 v48, v50"); a("v_add_f32 v48, v48, v50")
    swapred("v_add_f32", "v48", "v50", 16)
    a(f"v_add_f32_dpp v48, v48, v48 row_ror:8 {DPPF}")
    rbf("v48", "v48")
    a("v_mul_f32 v48, v48, v32"); rbf("v48", "v48")
    a("v_add_f32 v48, v48, v30"); a("v_cvt_pk_bf16_f32 v48, v48, v48")
    a("s_mov_b32 exec_lo, 0xff"); a("s_mov_b32 exec_hi, 0xff")
    a(f"global_store_short v24, v48, s[26:27] {outfl}")
    a("L_r_exit:")
    stamp(13)
    dump_stamps(14)
    a("L_end:")
    a("s_endpgm")
    a("L_fail:")
    a("s_mov_b64 exec, 1")
    a("s_lshl_b32 s60, s3, 2"); a("s_or_b32 s61, s2, 0xbad00000")
    a("v_mov_b32 v16, s60"); a("v_mov_b32 v17, s61")
    a("global_store_dword v16, v17, s[28:29]")
    a("s_endpgm")
    a.raw('.section .rodata,"a"'); a.raw(".p2align 6"); a.raw(f".amdhsa_kernel {KNAME}_kernel")
    a.raw("  .amdhsa_next_free_vgpr 256"); a.raw("  .amdhsa_next_free_sgpr 96"); a.raw("  .amdhsa_accum_offset 256")
    a.raw("  .amdhsa_group_segment_fixed_size 0"); a.raw("  .amdhsa_kernarg_size 96"); a.raw("  .amdhsa_user_sgpr_count 2")
    a.raw("  .amdhsa_user_sgpr_kernarg_segment_ptr 1"); a.raw("  .amdhsa_system_sgpr_workgroup_id_x 1"); a.raw(".end_amdhsa_kernel")
    return a.text()

STAMPS = {'C': 11, 'L': 4, 'Q': 7, 'F': 4, 'R': 6}
if __name__ == "__main__":
    import ast
    kw = {}
    for x in sys.argv[2:]:
        k, v = x.split("=", 1)
        try: kw[k] = ast.literal_eval(v)
        except Exception: kw[k] = v
    open(sys.argv[1], "w").write(gen(**kw))
```

```python
import sys, struct
from asmlib import Asm
KNAME = "recurrent_scan__gqa_block_cached__glu_gated_swiglu__decode"

SLOT = 16384; NS = 9
RING = 0; RING_END = RING + NS * SLOT; BIGW = 6 * SLOT; WOB = 5 * SLOT; F2B = 8 * SLOT
CTRL = BIGW + 57344; XN = CTRL + 256; QI = XN + 3584; PB = QI + 1024; HA = PB + 2048; OAI = HA + 1024; LDS_END = OAI + 128; OI = XN
assert LDS_END <= 163840
C_CP = 0; C_FP = 16; C_FILL = 32; C_XNF = 48; C_QRDY = 64; C_MXF = 80; C_PF = 96; C_FACF = 112
C_MX = 128; C_LS = 160; C_FAC = 192; C_TAIL = 208; C_OF = 224; C_ALL = 204; C_LOC = 200
OA = None
W_E = 0; W_QG = 0x1000; W_GU = 0x20000; W_OG = 0x40000; W_MLG = 0x80000; W_H1 = 0x100000; W_H2 = 0x200000; W_GT = 0x90000; W_GP = 0x91000; W_DIAG = 0x400000
BIG = 1000
DEFCLS = 'g'
CEXP = 0.09016844005556021
LOG2E = 1.4426950408889634
def f2u(f): return struct.unpack("<I", struct.pack("<f", f))[0]

def gen(diag=False, kvflags="nt", wflags="nt", woflags="", win=18, w0=28, prefetch_code=True, qpoll_fill=3, cls='g', kvsleep=0,
        notail=False, nowo=False, noffn=False, og_fill=32, gu_fill=28, h1sleep=2, h2sleep=0, qsleep=4, ml_fill=24, ml_rounds=4, forcesc1=False,
        wo_start=19, wo_per=6, wwo=25, mlplain=True, womode='L', wo_fill=32, wo_n1=0,
        catch=0, wboost=30, wwoboost=32, tau=57, tauw=61, theta=40, t0item=2, h1seq=True, vspin=True, palign=12, pad=0, h2off=0x200000, touch_out=False, tlbwarm=False, endboost=2, h1mode='bf', noew=False, nA=7, nB=7, qlocal=True, oglocal=True, q_rounds=6, wh=21, wwoh=27, w7=20, prestore=False, lv0=2, lvF=4, lv7=8, lvH=12, lvlate=0, dyn=1, dynmul=54, wdelta=6, NB=6, dyn2=0, dyn2mul=200, dyn2fill=21, gufl='sc1', lateplus=1, first_at=15, j7heavy=False, lag=None, lagcnt=32, wlag=28, wwolag=31, early_inline=2, all_rounds=4, outfl='', efl='', startboost=0, noq=False, pubfl='sc1', ogfl='sc1', noogpoll=False, nogupoll=False):
    a = Asm()
    W_H2 = h2off
    assert 17 <= win <= 32
    qpipe = 0; warm = 0; rounds1 = rounds2 = None
    kvf = (" " + kvflags) if kvflags else ""
    wf = (" " + wflags) if wflags else ""
    wof = (" " + woflags) if woflags else ""
    hdr = open("cdna_kernels/" + KNAME + ".s.ref").read().split("; Override launch")[0]
    a.raw(hdr.rstrip())
    a.raw(f"; @launch grid=(256,1,1) block=(512,1,1) lds={LDS_END}")
    a.raw('.amdgcn_target "amdgcn-amd-amdhsa--gfx950"')
    a.raw(".text"); a.raw(f".globl {KNAME}_kernel")
    if palign: a.raw(f".p2align {palign}")
    if pad: a.raw(f".fill {pad//4}, 4, 0xbf800000")
    a.raw(".p2align 8"); a.raw(f".type {KNAME}_kernel,@function"); a.raw(f"{KNAME}_kernel:")
    def stamp(i):
        if diag:
            a(f"s_memrealtime s[64:65]"); a("s_waitcnt lgkmcnt(0)"); a(f"v_writelane_b32 v247, s64, {2*i}"); a(f"v_writelane_b32 v247, s65, {2*i+1}")
    def dump_stamps(n):
        if diag:
            a("s_mov_b32 exec_lo, -1"); a("s_mov_b32 exec_hi, 0")
            a("s_lshl_b32 s60, s2, 3"); a("s_add_u32 s60, s60, s3"); a("s_lshl_b32 s60, s60, 7"); a(f"s_add_u32 s60, s60, {W_DIAG}")
            a("v_lshl_add_u32 v246, v0, 2, s60")
            a("global_store_dword v246, v247, s[30:31]")
    lbl = [0]
    def newlabel(p):
        lbl[0] += 1; return f"L_{p}_{lbl[0]}"
    def budget():
        a("s_sub_u32 s62, s62, 1"); a("s_cbranch_scc1 L_fail")
    def _spin_tail(L, Ld, sleep):
        a(f"s_cbranch_scc1 {Ld}")
        if sleep: a(f"s_sleep {sleep}")
        a("s_sub_u32 s62, s62, 1"); a(f"s_cbranch_scc0 {L}"); a("s_branch L_fail"); a(f"{Ld}:")
    def spin_ge(vtmp, vctl, off, sval, sleep=1):
        L = newlabel("spin"); Ld = newlabel("spind")
        a(f"{L}:")
        a(f"ds_read_b32 {vtmp}, {vctl} offset:{off}")
        a("s_waitcnt lgkmcnt(0)")
        if vspin:
            a(f"v_cmp_le_u32 vcc, {sval}, {vtmp}")
            a(f"s_cbranch_vccnz {Ld}")
            if sleep: a(f"s_sleep {sleep}")
            a("s_sub_u32 s62, s62, 1"); a(f"s_cbranch_scc0 {L}"); a("s_branch L_fail"); a(f"{Ld}:")
        else:
            a(f"v_readfirstlane_b32 s59, {vtmp}")
            a(f"s_cmp_ge_u32 s59, {sval}")
            _spin_tail(L, Ld, sleep)
    def spin_all4(vt, vctl, off, sleep=1):
        L = newlabel("spin4"); Ld = newlabel("spin4d")
        a(f"{L}:")
        a(f"ds_read_b128 v[{vt}:{vt+3}], {vctl} offset:{off}")
        a("s_waitcnt lgkmcnt(0)")
        a(f"v_min_u32 v{vt}, v{vt}, v{vt+1}")
        a(f"v_min3_u32 v{vt}, v{vt}, v{vt+2}, v{vt+3}")
        if vspin:
            a(f"v_cmp_ne_u32 vcc, 0, v{vt}")
            a(f"s_cbranch_vccnz {Ld}")
            if sleep: a(f"s_sleep {sleep}")
            a("s_sub_u32 s62, s62, 1"); a(f"s_cbranch_scc0 {L}"); a("s_branch L_fail"); a(f"{Ld}:")
        else:
            a(f"v_readfirstlane_b32 s59, v{vt}")
            a("s_cmp_lg_u32 s59, 0")
            _spin_tail(L, Ld, sleep)
    def tagcheck(tags, vacc, vacc2, retry):
        h = (len(tags) + 1) // 2
        t1, t2 = tags[:h], tags[h:]
        a(f"v_xor_b32 {vacc}, s33, {t1[0]}")
        if t2: a(f"v_xor_b32 {vacc2}, s33, {t2[0]}")
        for i in range(1, h):
            a(f"v_bitop3_b32 {vacc}, {t1[i]}, s33, {vacc} bitop3:0xbe")
            if i < len(t2): a(f"v_bitop3_b32 {vacc2}, {t2[i]}, s33, {vacc2} bitop3:0xbe")
        if t2: a(f"v_or_b32 {vacc}, {vacc}, {vacc2}")
        a(f"v_cmp_ne_u32 vcc, 0, {vacc}")
        a(f"s_cbranch_vccnz {retry}")
    def mpoll(loads, name, vt, sm=72, pre=None, alt=None, sleep=0, preset=False, hook=None):
        n = len(loads)
        for i, (d, va, off) in enumerate(loads):
            if preset: a(f"s_mov_b64 exec, s[{sm+2*i}:{sm+2*i+1}]")
            a(f"global_load_dwordx4 v[{d}:{d+3}], {va}, s[30:31] offset:{off} sc1")
        if preset: a("s_mov_b64 exec, -1")
        if pre: pre()
        a(f"s_branch L_{name}_chk")
        a(f"L_{name}_retry:")
        if hook: hook()
        if sleep: a(f"s_sleep {sleep}")
        if alt:
            a("s_add_u32 s63, s63, 1"); a("s_and_b32 s61, s63, 3"); a("s_cmp_lt_u32 s61, 2"); a(f"s_cbranch_scc0 L_{name}_noalt")
            a(f"v_xor_b32 {alt[0]}, {alt[0]}, {alt[1]}"); a(f"L_{name}_noalt:")
        for i, (d, va, off) in enumerate(loads):
            a(f"s_mov_b64 exec, s[{sm+2*i}:{sm+2*i+1}]"); a(f"s_cbranch_execz L_{name}_sk{i}")
            a(f"global_load_dwordx4 v[{d}:{d+3}], {va}, s[30:31] offset:{off} sc1")
            a(f"L_{name}_sk{i}:")
        a("s_mov_b64 exec, -1")
        budget()
        a(f"L_{name}_chk:")
        a("s_waitcnt vmcnt(0)")
        for i, (d, va, off) in enumerate(loads): a(f"v_xor_b32 v{vt+i}, s33, v{d+1}")
        for i, (d, va, off) in enumerate(loads): a(f"v_bitop3_b32 v{vt+i}, v{d+3}, s33, v{vt+i} bitop3:0xbe")
        for i, (d, va, off) in enumerate(loads): a(f"v_cmp_ne_u32 s[{sm+2*i}:{sm+2*i+1}], 0, v{vt+i}")
        if n == 1: a(f"s_cmp_lg_u64 s[{sm}:{sm+1}], 0")
        else:
            a(f"s_or_b64 vcc, s[{sm}:{sm+1}], s[{sm+2}:{sm+3}]")
            for i in range(2, n): a(f"s_or_b64 vcc, vcc, s[{sm+2*i}:{sm+2*i+1}]")
        rounds = {"h1": rounds1, "h2": rounds2}.get(name)
        if rounds is not None:
            a("s_add_u32 s82, s82, 1"); a(f"s_cmp_lt_u32 s82, {rounds}")
        a(f"s_cbranch_scc1 L_{name}_retry")
    def rbf(dst, src):
        a(f"v_cvt_pk_bf16_f32 {dst}, {src}, {src}")
        a(f"v_and_b32 {dst}, 0xffff0000, {dst}")
    DPPF = "row_mask:0xf bank_mask:0xf"
    def red16(op, v):
        for m in ("quad_perm:[1,0,3,2]", "quad_perm:[2,3,0,1]", "row_half_mirror", "row_mirror"):
            a(f"{op}_dpp {v}, {v}, {v} {m} {DPPF}")
    def swapred(op, v, t, which):
        a(f"v_mov_b32 {t}, {v}")
        a(f"v_permlane{which}_swap_b32 {v}, {t}")
        a(f"{op} {v}, {v}, {t}")

    if diag: a("s_memrealtime s[66:67]")
    a("s_cmp_ge_u32 s2, 256")
    a("s_cbranch_scc1 L_end")
    if dyn: a("s_memrealtime s[44:45]")
    a("s_load_dwordx16 s[8:23], s[0:1], 0")
    a("s_load_dwordx8 s[24:31], s[0:1], 64")
    a("v_lshrrev_b32 v1, 6, v0")
    a("v_and_b32 v0, 63, v0")
    a("v_readfirstlane_b32 s3, v1")
    a("s_and_b32 s4, s2, 7"); a("s_lshr_b32 s5, s2, 3"); a("s_and_b32 s6, s5, 3"); a("s_lshr_b32 s7, s5, 2")
    assert 5 * nA + 3 * nB == 56
    a(f"s_mul_i32 s48, s4, {nA}"); a(f"s_mul_i32 s49, s4, {nB}"); a(f"s_add_u32 s49, s49, {4*nA - 4*nB}")
    a("s_cmp_lt_u32 s4, 4"); a("s_cselect_b32 s48, s48, s49"); a(f"s_cselect_b32 s34, {24-nA}, {24-nB}")
    a("s_cmp_eq_u32 s4, 7"); a(f"s_cselect_b32 s34, {24-nA}, s34"); a("s_cselect_b32 s55, 0, 14")
    a("s_cmp_lt_u32 s5, s55"); a("s_cselect_b32 s35, 4, 0")
    a("s_add_u32 s48, s48, s5"); a("s_sub_u32 s48, s48, s34"); a("s_sub_u32 s49, s48, 28")
    a("s_cmp_lt_u32 s48, 28"); a("s_cselect_b32 s49, s48, s49"); a("s_cselect_b32 s48, 2, 3")
    a("s_cmp_ge_u32 s5, s34"); a("s_cselect_b32 s35, s48, s35")
    a("s_lshl_b32 s48, s4, 3"); a("s_add_u32 s48, s48, s5"); a("s_sub_u32 s48, s48, 24")
    a("s_movk_i32 s57, 3584"); a("s_mov_b32 s38, 1605632")
    a("s_cmp_ge_u32 s5, 24"); a("s_cselect_b32 s35, 1, s35"); a("s_cselect_b32 s49, s48, s49"); a("s_cselect_b32 s57, 8192, s57"); a("s_cselect_b32 s38, 3670016, s38")
    a("s_mov_b32 s39, 0x20000")
    a("s_mul_i32 s55, s5, 896"); a("s_add_u32 s55, s55, s4")
    a("s_cmp_eq_u32 s35, 4"); a("s_cselect_b32 s48, s55, s49"); a("s_cselect_b32 s57, 896, s57"); a("s_cselect_b32 s61, 8, 28")
    a(f"s_cselect_b32 s60, {(F2B-BIGW)//1024}, 0"); a("s_lshl_b32 s48, s48, 7"); a("s_lshl_b32 s60, s60, 10"); a(f"s_add_u32 s60, s60, {BIGW}")
    a("s_cmp_eq_u32 s35, 0"); a("s_cselect_b32 s61, 0, s61")
    a("s_lshl_b32 s56, s57, 3")
    a("s_lshl_b32 s52, s6, 3"); a("s_add_u32 s52, s52, s4"); a("s_lshl_b32 s52, s52, 21"); a("s_lshl_b32 s53, s7, 18"); a("s_add_u32 s54, s52, s53")
    a("s_mov_b32 s42, 0x4000000"); a("s_mov_b32 s43, 0x20000")
    a("v_lshlrev_b32 v9, 4, v0")
    a(f"v_mov_b32 v10, {CTRL}")
    a("v_lshrrev_b32 v2, 3, v0"); a("v_and_b32 v3, 7, v0"); a("v_and_b32 v8, 2, v2"); a("v_xor_b32 v3, v3, v8")
    a("v_lshlrev_b32 v3, 4, v3")
    a("v_mad_u32_u24 v24, v2, s57, v3"); a("v_xor_b32 v25, 64, v3"); a("v_mad_u32_u24 v25, v2, s57, v25")
    a("v_lshrrev_b32 v28, 5, v0"); a("v_and_b32 v29, 31, v0"); a("v_lshlrev_b32 v30, 9, v28"); a("v_xor_b32 v15, v29, v28")
    for p in range(8):
        if p: a(f"v_xor_b32 v{16+p}, {2*p}, v15"); a(f"v_lshl_add_u32 v{16+p}, v{16+p}, 4, v30")
        else: a("v_lshl_add_u32 v16, v15, 4, v30")
    a("s_mov_b32 s62, 0x100000")
    a("s_cmp_eq_u32 s3, 4")
    a("s_waitcnt lgkmcnt(0)")
    if diag: a("v_writelane_b32 v247, s66, 0"); a("v_writelane_b32 v247, s67, 1")
    a("s_cbranch_scc0 L_others")

    if diag == 3: a("s_memrealtime s[84:85]")
    a("s_cmp_eq_u32 s35, 2"); a("s_cselect_b32 s36, s20, s22"); a("s_cselect_b32 s37, s21, s23")
    a("s_cmp_eq_u32 s35, 1"); a("s_cselect_b32 s36, s14, s36"); a("s_cselect_b32 s37, s15, s37")
    a("s_cmp_eq_u32 s35, 4"); a("s_cselect_b32 s36, s24, s36"); a("s_cselect_b32 s37, s25, s37")
    a("s_mov_b32 m0, s60"); a("s_mov_b32 s40, s10"); a("s_mov_b32 s41, s11")
    a("s_setprio 3")
    a("s_mov_b32 s58, 1")
    a("s_cmp_eq_u32 s61, 0"); a("s_cbranch_scc1 L_ld_kv")
    if diag == 3: a("s_memrealtime s[86:87]")
    a("L_tile:")
    a(f"s_waitcnt vmcnt({w0-1})")
    a(f"buffer_load_dwordx4 v24, s[36:39], s48 offen{wf} lds")
    a("s_add_u32 m0, m0, 1024"); a("s_add_u32 s48, s48, s56")
    a(f"s_waitcnt vmcnt({w0-1})")
    a(f"buffer_load_dwordx4 v25, s[36:39], s48 offen{wf} lds")
    a("s_add_u32 m0, m0, 1024"); a("s_add_u32 s48, s48, s56")
    a("s_sub_u32 s61, s61, 1")
    a(f"s_cmp_lg_u32 s61, {28 - min(w0, 24)//2}"); a("s_cbranch_scc1 L_tile_nb"); a("s_waitcnt lgkmcnt(0)"); a("s_barrier"); a("s_movk_i32 s58, 100"); a("L_tile_nb:")
    a("s_cmp_lg_u32 s61, 0"); a("s_cbranch_scc1 L_tile")
    a("L_ld_kv:")
    if diag == 3: a("s_memrealtime s[88:89]")
    a("s_mov_b32 s52, s54"); a("s_mov_b32 s50, 0"); a("s_mov_b32 s51, 0"); a(f"s_mov_b32 s63, {NS*SLOT}"); a("s_mov_b32 s53, 5")
    a(f"s_cmp_eq_u32 s35, 4"); a(f"s_cselect_b32 s46, {lvF}, {lv0}")
    a("s_sub_u32 s55, s35, 1"); a("s_cmp_lt_u32 s55, 3"); a(f"s_cselect_b32 s46, {lvH}, s46"); a("s_cmp_eq_u32 s7, 7"); a(f"s_cselect_b32 s46, {lv7}, s46")
    if lvlate: a("s_cmp_ge_u32 s4, 4"); a(f"s_cselect_b32 s55, {lvlate}, 0"); a("s_add_u32 s46, s46, s55")
    a("s_mov_b32 s47, 0"); a("v_mov_b32 v45, 0")
    NWO = -(-64 // wo_per) if womode == 'L' else wo_n1
    NQ = 64 - NWO * wo_per if womode == 'q' else 0
    assert wo_start >= 19 and wo_start + NWO <= 30 and wo_per % 2 == 0
    def item_check(c):
        a(f"L_check{c}:")
        a("s_waitcnt lgkmcnt(0)")
        a("v_min3_u32 v40, v40, v41, v42")
        a("v_min3_u32 v40, v40, v43, v44")
        a("s_sub_u32 s56, s50, s53")
        a("v_readfirstlane_b32 s55, v40")
        a("s_cmp_gt_u32 s55, s56")
        a(f"s_cbranch_scc0 L_slow{c}")
        a(f"L_chk_done{c}:")
        if endboost and c == "P": a(f"s_cmp_ge_u32 s50, {32-endboost}"); a(f"s_cbranch_scc1 L_go{c}b")
        if c == "P": a("L_chk_earlyP:")
        if dyn: a("v_readfirstlane_b32 s44, v45"); a("s_and_b32 s47, s47, 3"); a("s_add_i32 s44, s44, s46"); a("s_max_i32 s44, s44, 0"); a("s_add_u32 s47, s47, s44")
        else: a("s_and_b32 s47, s47, 3"); a("s_add_u32 s47, s47, s46")
        for k in range(NB - 1, 0, -1):
            a(f"s_cmp_ge_u32 s47, {4*k}"); a(f"s_cbranch_scc1 L_go{c}{k}")
    def item_body(c, w, nwo):
        a(f"L_go{c}:")
        if diag == 2:
            a("s_memrealtime s[70:71]"); a("s_waitcnt lgkmcnt(0)"); a("s_mov_b32 m0, s50"); a("v_writelane_b32 v60, s70, m0")
        if nwo:
            a("s_mov_b32 m0, s60")
            for k in range(nwo):
                a(f"s_waitcnt vmcnt({w-1})")
                a(f"buffer_load_dwordx4 v{24+(k&1)}, s[36:39], s48 offen{wof} lds")
                a("s_add_u32 m0, m0, 1024"); a(f"s_add_u32 s48, s48, {8*896}")
            a("s_mov_b32 s60, m0")
        nsig = max(0, w - 17 - nwo)
        for grp in range(4):
            if grp == 0: a("s_mov_b32 m0, s51")
            else:
                a("s_add_u32 m0, m0, 4096"); a("s_add_u32 s52, s52, 4096")
            if grp == 3:
                a(f"ds_read_b128 v[40:43], v10 offset:{C_CP}"); a(f"ds_read_b64 v[44:45], v10 offset:{C_FP}")
            for q in range(4):
                n = grp * 4 + q
                a(f"s_waitcnt vmcnt({w-1})")
                if n == nsig:
                    a("v_mov_b32 v46, s50"); a(f"ds_write_b32 v10, v46 offset:{C_FILL}")
                a(f"buffer_load_dwordx4 v{16+(n&7)}, s[40:43], s52 offen offset:{1024*q}{kvf} lds")
        a("s_add_u32 s52, s52, 4096")
        a(f"s_add_u32 s51, s51, {SLOT}"); a("s_cmp_eq_u32 s51, s63"); a("s_cselect_b32 s51, 0, s51")
        a("s_add_u32 s50, s50, 1")
    def slow(c):
        a(f"L_slow{c}:")
        budget()
        a(f"ds_read_b128 v[40:43], v10 offset:{C_CP}"); a(f"ds_read_b64 v[44:45], v10 offset:{C_FP}")
        a(f"s_branch L_check{c}")
    a("L_item:")
    a("s_cmp_lg_u32 s50, s58"); a("s_cbranch_scc1 L_nobar"); a("s_waitcnt lgkmcnt(0)"); a("s_barrier"); a("L_nobar:")
    if early_inline: a(f"s_cmp_lt_u32 s50, {early_inline}"); a("s_cbranch_scc1 L_goP")
    a("s_cmp_lt_u32 s50, 5"); a("s_cbranch_scc1 L_early5")
    item_check("P")
    item_body("P", win, 0)
    a("L_afterP:")
    a("s_cmp_eq_u32 s50, 16"); a("s_cbranch_scc1 L_tov")
    a(f"s_cmp_eq_u32 s50, {wo_start}"); a("s_cbranch_scc1 L_towo")
    a("L_item_next:")
    a("s_cmp_lt_u32 s50, 32"); a("s_cbranch_scc1 L_item")
    stamp(1)
    a("v_mov_b32 v46, 32"); a("v_mov_b32 v47, 33")
    a("s_waitcnt vmcnt(16)")
    a(f"ds_write_b32 v10, v46 offset:{C_FILL}")
    a("s_waitcnt vmcnt(0)")
    a(f"ds_write_b32 v10, v47 offset:{C_FILL}")
    stamp(3)
    stamp(2)
    if diag == 3:
        for k in range(6): a(f"v_writelane_b32 v247, s{84+k}, {8+k}")
    if diag:
        a("s_lshl_b32 s60, s2, 8"); a(f"s_add_u32 s60, s60, {W_DIAG + 0x80000}"); a("v_lshl_add_u32 v61, v0, 2, s60")
        a("global_store_dword v61, v60, s[30:31]")
    dump_stamps(4)
    a("s_endpgm")

    a("L_others:")
    a("s_load_dword s32, s[30:31], 0")
    a("s_cmp_ge_u32 s3, 4"); a("s_cbranch_scc1 L_nox")
    a("s_sub_u32 s50, s35, 1"); a("s_cmp_ge_u32 s50, 3"); a("s_cbranch_scc1 L_nox")
    a("s_mul_i32 s50, s3, 896")
    a("v_add_u32 v11, s50, v9")
    a("v_mov_b32 v4, 0"); a("v_mov_b32 v5, 0"); a("v_mov_b32 v6, 0"); a("v_mov_b32 v7, 0")
    a("s_mov_b32 exec_hi, 0x00ffffff")
    a("global_load_dwordx4 v[4:7], v11, s[8:9]")
    a("s_mov_b32 exec_hi, -1")
    a("L_nox:")
    a("s_sub_u32 s50, s35, 1"); a("s_cmp_ge_u32 s50, 3"); a("s_cselect_b32 s51, 1, 0"); a("s_cselect_b32 s52, 4, 1")
    a("v_mov_b32 v12, s52"); a("v_mad_u32_u24 v12, v0, s51, v12")
    a("v_cmp_gt_u32 vcc, 4, v0")
    a("s_cmp_eq_u32 s35, 4"); a(f"s_cselect_b32 s50, 3, {BIG}")
    a("v_cndmask_b32 v12, 0, v12, vcc")
    a("v_mov_b32 v13, s50")
    a("v_cmp_eq_u32 vcc, 4, v0")
    a("v_lshl_add_u32 v14, v0, 2, v10")
    a("v_cndmask_b32 v12, v12, v13, vcc")
    a("ds_write_b32 v14, v12")
    a("s_waitcnt lgkmcnt(0)")
    a("s_mul_i32 s33, s32, 0x9E3779B1"); a("s_add_u32 s33, s33, 0x7F4A7C15")
    a("s_barrier")
    a("s_cmp_lt_u32 s3, 4"); a("s_cbranch_scc1 L_C")
    a("s_cmp_eq_u32 s3, 5"); a("s_cbranch_scc1 L_Q")
    a("s_cmp_eq_u32 s3, 6"); a("s_cbranch_scc1 L_F")
    a("s_branch L_R")

    slow("P")
    a("L_early5:")
    a("s_waitcnt lgkmcnt(0)"); a("s_branch L_chk_earlyP")
    a("L_tov:")
    a("s_mov_b32 s40, s12"); a("s_mov_b32 s41, s13"); a("s_mov_b32 s52, s54")
    a("s_mov_b32 s51, 0"); a(f"s_mov_b32 s63, {5*SLOT}"); a("s_mov_b32 s53, 1")
    a("v_lshlrev_b32 v15, 1, v28"); a("v_xor_b32 v15, v15, v29")
    for p in range(8):
        f = 4 * (p & 1) + 8 * ((p >> 2) & 1)
        a(f"v_xor_b32 v{16+p}, {f}, v15")
        a(f"v_lshl_add_u32 v{16+p}, v{16+p}, 4, v30")
    a("s_mov_b32 s36, s16"); a("s_mov_b32 s37, s17"); a("s_mov_b32 s38, 3670016")
    a(f"s_mul_i32 s48, s4, {512*896}"); a("s_lshl_b32 s55, s7, 7"); a("s_add_u32 s48, s48, s55")
    a("s_movk_i32 s57, 896"); a(f"s_mov_b32 s60, {WOB}")
    a("v_mad_u32_u24 v24, v2, s57, v3"); a("v_xor_b32 v25, 64, v3"); a("v_mad_u32_u24 v25, v2, s57, v25")
    a("s_branch L_item")
    a("L_towo:")
    a("s_cmp_eq_u32 s7, 7"); a("s_cbranch_scc1 L_item")
    if nowo or NWO == 0: a("s_branch L_item")
    a("L_itemW:")
    item_check("W")
    item_body("W", win + wdelta, wo_per)
    a("L_afterW:")
    a(f"s_cmp_lt_u32 s50, {wo_start + NWO}"); a("s_cbranch_scc1 L_itemW")
    a("s_branch L_item_next")
    slow("W")
    if endboost: item_body("Pb", wboost, 0); a("s_branch L_afterP")
    for k in range(1, NB):
        item_body(f"P{k}", win + k, 0); a("s_branch L_afterP")
        item_body(f"W{k}", win + wdelta + k, wo_per); a("s_branch L_afterW")

    def tile_tr_addr(dst, tau_sgpr_or_const, base):
        a("v_lshrrev_b32 v16, 2, v14"); a("v_lshl_add_u32 v16, v15, 3, v16"); a("v_lshlrev_b32 v16, 7, v16")
        a("v_and_b32 v17, 1, v14"); a("v_lshl_add_u32 v16, v17, 3, v16")
        a("v_and_b32 v17, 1, v15"); a("v_lshrrev_b32 v18, 3, v14"); a("v_lshl_add_u32 v17, v17, 1, v18"); a("v_lshlrev_b32 v17, 1, v17")
        a("v_bfe_u32 v18, v14, 1, 1"); a("v_xor_b32 v17, v17, v18")
        if tau_sgpr_or_const is not None:
            a(f"s_lshl_b32 s50, {tau_sgpr_or_const}, 1"); a("v_xor_b32 v17, s50, v17")
        a(f"v_lshl_add_u32 {dst}, v17, 4, v16")
        if base: a(f"v_add_u32 {dst}, {base}, {dst}")
    a("L_C:")
    a("v_and_b32 v14, 15, v0")
    a("v_lshrrev_b32 v15, 4, v0")
    a("s_lshl_b32 s50, s3, 2"); a("v_add_u32 v12, s50, v10")
    a("v_mov_b32 v13, 1")
    a("v_mov_b32 v81, s33"); a("v_mov_b32 v83, s33")
    a("s_sub_u32 s50, s35, 1"); a("s_cmp_ge_u32 s50, 3"); a("s_cbranch_scc1 L_C_noproj")
    tile_tr_addr("v38", "s3", BIGW)
    a("v_and_b32 v17, 3, v14"); a("s_movk_i32 s50, 896"); a("v_mul_u32_u24 v16, s50, v17"); a("v_lshl_add_u32 v39, v15, 4, v16"); a(f"v_add_u32 v39, {XN}, v39")
    a("s_lshl_b32 s50, s49, 4")
    a("s_lshr_b32 s51, s49, 1"); a("s_lshl_b32 s51, s51, 1"); a("s_add_u32 s51, s51, s35"); a("s_sub_u32 s51, s51, 2"); a("s_lshl_b32 s51, s51, 7")
    a("s_and_b32 s52, s49, 1"); a("s_lshl_b32 s52, s52, 4"); a("s_add_u32 s51, s51, s52"); a(f"s_add_u32 s51, s51, {W_GU//16}")
    a(f"s_add_u32 s50, s50, {W_QG//16}")
    a("s_cmp_eq_u32 s35, 1"); a("s_cselect_b32 s50, s50, s51"); a("s_cselect_b32 s51, 1024, 32")
    a("s_lshl_b32 s52, s3, 2"); a("s_add_u32 s50, s50, s52")
    a("v_mad_u32_u24 v16, v14, s51, v15"); a("v_add_u32 v16, s50, v16"); a("v_lshlrev_b32 v37, 4, v16")
    if warm & 1:
        a("s_mov_b32 exec_lo, 0x0000000f"); a("s_mov_b32 exec_hi, 0")
        a(f"global_load_dword v245, v37, s[30:31] {warmfl}"); a("s_mov_b64 exec, -1")
        a("s_waitcnt vmcnt(1)")
    else:
        a("s_waitcnt vmcnt(0)")
    stamp(1)
    for i in range(4):
        a(f"v_lshlrev_b32 v{16+2*i}, 16, v{4+i}"); a(f"v_and_b32 v{17+2*i}, 0xffff0000, v{4+i}")
    a("v_add_f32 v24, v16, v17"); a("v_add_f32 v25, v18, v19"); a("v_add_f32 v26, v20, v21"); a("v_add_f32 v27, v22, v23")
    a("v_add_f32 v24, v24, v25"); a("v_add_f32 v26, v26, v27"); a("v_add_f32 v24, v24, v26")
    red16("v_add_f32", "v24"); swapred("v_add_f32", "v24", "v25", 16); swapred("v_add_f32", "v24", "v25", 32)
    a(f"v_mul_f32 v24, {hex(f2u(1.0/448))}, v24")
    a("v_mov_b32 v26, 0")
    a("s_mov_b32 exec_hi, 0x00ffffff")
    for i in range(8): a(f"v_sub_f32 v{28+i}, v{16+i}, v24")
    for i in range(8): a(f"v_fmac_f32 v26, v{28+i}, v{28+i}")
    a("s_mov_b32 exec_hi, -1")
    rbf("v25", "v24")
    red16("v_add_f32", "v26"); swapred("v_add_f32", "v26", "v27", 16); swapred("v_add_f32", "v26", "v27", 32)
    a(f"v_mul_f32 v26, {hex(f2u(1.0/448))}, v26")
    rbf("v26", "v26")
    a(f"v_add_f32 v26, {hex(f2u(1e-5))}, v26")
    rbf("v26", "v26")
    a("v_sqrt_f32 v26, v26")
    for i in range(8): a(f"v_sub_f32 v{28+i}, v{16+i}, v25")
    rbf("v26", "v26")
    a("v_rcp_f32 v26, v26")
    for i in range(4): a(f"v_cvt_pk_bf16_f32 v{16+i}, v{28+2*i}, v{29+2*i}")
    for i in range(4):
        a(f"v_lshlrev_b32 v{28+2*i}, 16, v{16+i}"); a(f"v_and_b32 v{29+2*i}, 0xffff0000, v{16+i}")
    for i in range(8): a(f"v_mul_f32 v{28+i}, v{28+i}, v26")
    for i in range(4): a(f"v_cvt_pk_bf16_f32 v{16+i}, v{28+2*i}, v{29+2*i}")
    a(f"v_add_u32 v11, {XN}, v11")
    a("s_mov_b32 exec_hi, 0x00ffffff")
    a("ds_write_b128 v11, v[16:19]")
    a("s_mov_b32 exec_hi, -1")
    a(f"ds_write_b32 v12, v13 offset:{C_XNF}")
    spin_all4(40, "v10", C_XNF, sleep=0)
    for s in range(14): a(f"ds_read_b128 v[{84+4*s}:{87+4*s}], v39 offset:{64*s}")
    stamp(2)
    spin_ge("v16", "v10", C_FILL, 1, sleep=0)
    for s in range(14):
        a(f"ds_read_b64_tr_b16 v[{140+4*s}:{141+4*s}], v38 offset:{4096*s}")
        a(f"ds_read_b64_tr_b16 v[{142+4*s}:{143+4*s}], v38 offset:{4096*s+512}")
    for s in range(14):
        n = 26 - 2 * s
        if n <= 15 and (s % 2 == 0 or s == 13): a(f"s_waitcnt lgkmcnt({max(0, n-2) if s != 13 else 0})")
        elif s == 0: a("s_waitcnt lgkmcnt(14)")
        c = "0" if s == 0 else "v[48:51]"
        a(f"v_mfma_f32_16x16x32_bf16 v[48:51], v[{140+4*s}:{143+4*s}], v[{84+4*s}:{87+4*s}], {c}")
    a("s_add_u32 s50, s3, 4"); a("v_mov_b32 v16, s50"); a(f"ds_write_b32 v12, v16 offset:{C_CP}")
    a("s_mov_b32 s50, 0x000f000f")
    a("v_cvt_pk_bf16_f32 v80, v48, v49"); a("v_cvt_pk_bf16_f32 v82, v50, v51")
    a("s_mov_b32 exec_lo, s50"); a("s_mov_b32 exec_hi, s50")
    if qlocal:
        a("s_cmp_eq_u32 s35, 1"); a("s_cbranch_scc1 L_pub_q")
    a(f"global_store_dwordx4 v37, v[80:83], s[30:31] {gufl}")
    if qlocal:
        a("s_branch L_pub_done"); a("L_pub_q:"); a("global_store_dwordx4 v37, v[80:83], s[30:31]"); a("L_pub_done:")
    a("s_mov_b64 exec, -1")
    a("L_C_noproj:")
    stamp(3)
    a("v_xor_b32 v16, v15, v14")
    a("v_lshlrev_b32 v17, 9, v14")
    for s in range(4):
        if s: a(f"v_xor_b32 v{20+s}, {4*s}, v16")
        else: a("v_mov_b32 v20, v16")
        a(f"v_lshl_add_u32 v{20+s}, v{20+s}, 4, v17")
    a("v_lshrrev_b32 v16, 2, v14")
    a("v_lshl_add_u32 v17, v15, 3, v16")
    a("v_lshlrev_b32 v17, 9, v17")
    a("v_and_b32 v18, 1, v14"); a("v_lshl_add_u32 v17, v18, 3, v17")
    a("v_and_b32 v18, 1, v15"); a("v_lshl_add_u32 v18, v18, 2, v16"); a("v_lshlrev_b32 v18, 1, v18")
    a("v_bfe_u32 v19, v14, 1, 1")
    a("s_lshl_b32 s50, s3, 3"); a("v_add_u32 v19, s50, v19")
    a("v_xor_b32 v18, v18, v19")
    for tt in range(4):
        if tt: a(f"v_xor_b32 v{24+tt}, {2*tt}, v18")
        else: a("v_mov_b32 v24, v18")
        a(f"v_lshl_add_u32 v{24+tt}, v{24+tt}, 4, v17")
    a("v_and_b32 v16, 1, v0")
    a("v_lshlrev_b32 v17, 4, v15")
    a("v_lshl_add_u32 v28, v16, 9, v17"); a(f"v_add_u32 v28, {QI}, v28")
    a("v_lshl_add_u32 v29, v16, 10, v17"); a(f"v_add_u32 v29, {PB}, v29")
    a("v_lshrrev_b32 v16, 5, v0"); a("v_and_b32 v17, 31, v0"); a("s_lshl_b32 s50, s3, 5"); a("v_add_u32 v17, s50, v17")
    a("v_lshlrev_b32 v17, 1, v17"); a("v_lshl_add_u32 v30, v16, 10, v17"); a(f"v_add_u32 v30, {PB}, v30")
    a("v_lshl_add_u32 v31, v16, 4, v10")
    a("v_lshl_add_u32 v33, v16, 2, v10")
    a("s_lshl_b32 s50, s3, 2"); a("v_add_u32 v32, s50, v31")
    tile_tr_addr("v34", "s3", WOB)
    a("s_mov_b32 s44, 0xffff0000"); a("s_mov_b32 s45, 0xffff0000")
    a("s_mov_b32 s46, 0"); a("s_mov_b32 s47, -1")
    a("s_lshl_b32 s50, s6, 3"); a("s_add_u32 s50, s50, s4"); a("s_lshl_b32 s50, s50, 15"); a("s_lshl_b32 s51, s3, 10"); a("s_add_u32 s50, s50, s51"); a(f"s_add_u32 s50, s50, {W_H1}")
    a("v_add_u32 v16, s50, v9")
    a("s_lshl_b32 s51, s7, 12"); a("v_add_u32 v35, s51, v16")
    for i in range(1, 8):
        a(f"s_add_u32 s51, s7, {i}"); a("s_and_b32 s51, s51, 7"); a("s_lshl_b32 s51, s51, 12"); a(f"v_add_u32 v{247+i}, s51, v16")
    a("v_lshrrev_b32 v16, 5, v0"); a("v_lshlrev_b32 v16, 8, v16"); a("v_and_b32 v17, 1, v15"); a("v_lshl_add_u32 v16, v17, 5, v16"); a("v_add_u32 v16, v16, v14")
    a("s_lshl_b32 s50, s3, 6"); a("v_add_u32 v16, s50, v16"); a("v_lshlrev_b32 v16, 1, v16"); a(f"v_add_u32 v38, {OI}, v16")
    a("v_lshlrev_b32 v36, 4, v15"); a(f"v_add_u32 v36, {OI}, v36")
    a("s_mul_i32 s50, s6, 28"); a("s_lshl_b32 s51, s7, 2"); a("s_add_u32 s50, s50, s51"); a("s_add_u32 s50, s50, s3"); a("s_lshl_b32 s50, s50, 3"); a("s_add_u32 s50, s50, s4")
    a("s_lshl_b32 s50, s50, 7"); a(f"s_add_u32 s50, s50, {W_H2}"); a("v_add_u32 v37, s50, v9")
    if warm & 8:
        a("s_mov_b64 exec, 1"); a(f"global_load_dword v245, v37, s[30:31] {warmfl}"); a("s_mov_b64 exec, -1")
    a("s_mov_b32 s44, 0xffff0000"); a("s_mov_b32 s45, 0xffff0000")
    a("s_mov_b32 s46, 0"); a("s_mov_b32 s47, -1")
    spin_ge("v16", "v10", C_QRDY, 1)
    stamp(4)
    for s in range(8): a(f"ds_read_b128 v[{64+4*s if s < 4 else 84+4*(s-4)}:{(64+4*s if s < 4 else 84+4*(s-4))+3}], v28 offset:{64*s}")
    qreg = lambda s: 64 + 4 * s if s < 4 else 84 + 4 * (s - 4)
    a("s_mov_b32 s50, s3")
    a("L_kitem:")
    a("s_add_u32 s51, s50, 2")
    a("s_sub_u32 s52, s50, 9"); a("s_cmp_ge_u32 s50, 9"); a("s_cselect_b32 s52, s52, s50")
    a("s_lshl_b32 s52, s52, 14")
    for s in range(4): a(f"v_add_u32 v{40+s}, s52, v{20+s}")
    spin_ge("v16", "v10", C_FILL, "s51")
    for s in range(8):
        for tl in range(2):
            a(f"ds_read_b128 v[{100+8*s+4*tl}:{103+8*s+4*tl}], v{40+(s&3)} offset:{(s>>2)*256 + tl*8192}")
    a("s_add_u32 s51, s50, 4"); a("s_min_u32 s51, s51, 16"); a("s_add_u32 s51, s51, 4")
    a("v_mov_b32 v16, s51")
    a(f"ds_write_b32 v12, v16 offset:{C_CP}")
    a("v_mov_b32 v63, v62"); a("v_mov_b32 v62, v61"); a("v_mov_b32 v61, v60")
    for s in range(8):
        if s % 2 == 0: a(f"s_waitcnt lgkmcnt({13 - 2*s})")
        for tl in range(2):
            c = "0" if s == 0 else f"v[{48+4*tl}:{51+4*tl}]"
            a(f"v_mfma_f32_16x16x32_bf16 v[{48+4*tl}:{51+4*tl}], v[{qreg(s)}:{qreg(s)+3}], v[{100+8*s+4*tl}:{103+8*s+4*tl}], {c}")
    a("v_cndmask_b32 v16, v48, v52, s[44:45]"); a("v_cndmask_b32 v17, v49, v53, s[44:45]"); a("v_cndmask_b32 v16, v16, v17, s[46:47]")
    rbf("v60", "v16")
    a("s_add_u32 s50, s50, 4"); a("s_cmp_lt_u32 s50, 16"); a("s_cbranch_scc1 L_kitem")
    stamp(5)
    a("v_max_f32 v16, v60, v61"); a("v_max3_f32 v16, v16, v62, v63")
    red16("v_max_f32", "v16"); swapred("v_max_f32", "v16", "v17", 16)
    a(f"ds_write_b32 v32, v16 offset:{C_MX}")
    a(f"ds_write_b32 v12, v13 offset:{C_MXF}")
    spin_all4(40, "v10", C_MXF, sleep=0)
    a(f"ds_read_b128 v[40:43], v31 offset:{C_MX}")
    a("s_waitcnt lgkmcnt(0)")
    a("v_max_f32 v16, v40, v41"); a("v_max3_f32 v16, v16, v42, v43")
    a(f"s_mov_b32 s50, {hex(f2u(CEXP))}")
    for i in range(4): a(f"v_sub_f32 v{60+i}, v{60+i}, v16")
    for i in range(4): a(f"v_mul_f32 v{60+i}, s50, v{60+i}")
    for i in range(4): a(f"v_exp_f32 v{60+i}, v{60+i}")
    a("v_add_f32 v17, v60, v61"); a("v_add_f32 v18, v62, v63"); a("v_add_f32 v17, v17, v18")
    a("v_cvt_pk_bf16_f32 v40, v63, v62"); a("v_cvt_pk_bf16_f32 v41, v61, v60")
    a("ds_write_b16 v30, v40 offset:0"); a("ds_write_b16_d16_hi v30, v40 offset:256")
    a("ds_write_b16 v30, v41 offset:512"); a("ds_write_b16_d16_hi v30, v41 offset:768")
    red16("v_add_f32", "v17"); swapred("v_add_f32", "v17", "v18", 16)
    a(f"ds_write_b32 v32, v17 offset:{C_LS}")
    a(f"ds_write_b32 v12, v13 offset:{C_PF}")
    for i in range(16): a(f"v_mov_b32 v{64+i}, 0")
    if prestore:
        a("s_not_b32 s50, s33")
        for i in range(4): a(f"v_mov_b32 v{84+i}, s50")
        a("global_store_dwordx4 v35, v[84:87], s[30:31]")
    spin_all4(40, "v10", C_PF, sleep=0)
    stamp(6)
    a("s_mov_b32 s50, 0")
    a("s_mov_b32 s52, 0")
    a("L_vitem:")
    a("ds_read_b128 v[44:47], v29")
    a("v_add_u32 v29, 64, v29")
    for tt in range(4): a(f"v_add_u32 v{40+tt}, s52, v{24+tt}")
    a("s_add_u32 s51, s50, 18")
    spin_ge("v16", "v10", C_FILL, "s51", sleep=kvsleep)
    for tt in range(4):
        a(f"ds_read_b64_tr_b16 v[{96+4*tt}:{97+4*tt}], v{40+tt}")
        a(f"ds_read_b64_tr_b16 v[{98+4*tt}:{99+4*tt}], v{40+tt} offset:2048")
    a("s_add_u32 s51, s50, 21"); a("v_mov_b32 v16, s51")
    a(f"ds_write_b32 v12, v16 offset:{C_CP}")
    a(f"s_add_u32 s52, s52, {SLOT}"); a(f"s_cmp_eq_u32 s52, {5*SLOT}"); a("s_cselect_b32 s52, 0, s52")
    for tt in range(4):
        a(f"s_waitcnt lgkmcnt({7-2*tt})")
        a(f"v_mfma_f32_16x16x32_bf16 v[{64+4*tt}:{67+4*tt}], v[44:47], v[{96+4*tt}:{99+4*tt}], v[{64+4*tt}:{67+4*tt}]")
    a("s_add_u32 s50, s50, 1"); a("s_cmp_lt_u32 s50, 14"); a("s_cbranch_scc1 L_vitem")
    a("s_cmp_eq_u32 s50, 16"); a("s_cbranch_scc1 L_vdone")
    H1L = [(120 + 4 * i, f"v{248+i}", 0) for i in range(7)]
    a("s_cmp_eq_u32 s50, 15"); a("s_cbranch_scc1 L_first")
    spin_ge("v16", "v10", C_FACF, 1, sleep=0)
    a(f"ds_read_b32 v39, v33 offset:{C_FAC}"); a(f"ds_read_b32 v16, v10 offset:{C_LOC}")
    for s in range(16):
        r = 150 + 4 * s
        a(f"ds_read_b64_tr_b16 v[{r}:{r+1}], v34 offset:{4096*s}")
        a(f"ds_read_b64_tr_b16 v[{r+2}:{r+3}], v34 offset:{4096*s+512}")
    a("s_waitcnt lgkmcnt(0)"); a("v_readfirstlane_b32 s57, v16")
    a("s_branch L_vitem")
    a("L_first:")
    a("s_cmp_eq_u32 s7, 7"); a("s_cbranch_scc1 L_vitem")
    if not notail:
        for (d, va, off) in H1L: a(f"global_load_dwordx4 v[{d}:{d+3}], {va}, s[30:31] sc1")
    a("s_branch L_vitem")
    a("L_vdone:")
    a("s_nop 2")
    stamp(7)
    if notail: dump_stamps(11); a("s_endpgm")
    a("v_cndmask_b32 v16, v64, v72, s[44:45]"); a("v_cndmask_b32 v17, v65, v73, s[44:45]")
    a("v_cndmask_b32 v18, v68, v76, s[44:45]"); a("v_cndmask_b32 v19, v69, v77, s[44:45]")
    a("v_cndmask_b32 v16, v16, v17, s[46:47]"); a("v_cndmask_b32 v18, v18, v19, s[46:47]")
    a("s_cmp_eq_u32 s57, 1")
    a("v_mul_f32 v80, v16, v39"); a("v_mul_f32 v82, v18, v39")
    a("s_cbranch_scc0 L_st_far")
    a("global_store_dwordx4 v35, v[80:83], s[30:31]")
    a("L_st_done:")
    stamp(8)
    a("s_cmp_eq_u32 s7, 7"); a("s_cbranch_scc1 L_red")
    if h1mode == 'bf':
        a("s_waitcnt vmcnt(1)")
        a("L_h1_chk:")
        for i, (d, va, off) in enumerate(H1L): a(f"v_cmp_ne_u32 s[{68+2*i}:{69+2*i}], s33, v{d+3}")
        a("v_xor_b32 v96, s33, v121"); a("v_xor_b32 v97, s33, v125")
        a("s_or_b64 vcc, s[68:69], s[70:71]"); a("s_or_b64 s[82:83], s[72:73], s[74:75]"); a("s_or_b64 s[84:85], s[76:77], s[78:79]")
        a("v_bitop3_b32 v96, v129, s33, v96 bitop3:0xbe"); a("v_bitop3_b32 v97, v133, s33, v97 bitop3:0xbe")
        a("s_or_b64 vcc, vcc, s[80:81]"); a("s_or_b64 s[82:83], s[82:83], s[84:85]"); a("s_or_b64 vcc, vcc, s[82:83]")
        a("s_cbranch_scc1 L_h1_more")
        a("L_h1_ver:")
        a("v_bitop3_b32 v96, v137, s33, v96 bitop3:0xbe"); a("v_bitop3_b32 v97, v141, s33, v97 bitop3:0xbe")
        a("v_bitop3_b32 v96, v145, s33, v96 bitop3:0xbe"); a("v_or_b32 v96, v96, v97"); a("v_cmp_ne_u32 vcc, 0, v96")
        a("s_cbranch_vccnz L_h1_all")
    else:
        a("s_movk_i32 s56, 0x7f")
        a("s_waitcnt vmcnt(1)")
        a("L_h1_scan:")
        for i, (d, va, off) in enumerate(H1L):
            a(f"s_bitcmp1_b32 s56, {i}"); a(f"s_cbranch_scc0 L_h1_n{i}")
            a(f"v_xor_b32 v96, s33, v{d+1}"); a(f"v_bitop3_b32 v96, v{d+3}, s33, v96 bitop3:0xbe"); a("v_cmp_ne_u32 vcc, 0, v96")
            a(f"s_cbranch_vccnz L_h1_n{i}")
            a(f"s_bitset0_b32 s56, {i}")
            a(f"L_h1_n{i}:")
        a("s_cmp_lg_u32 s56, 0"); a("s_cbranch_scc1 L_h1_more")
    a("L_h1_done:")
    stamp(9)
    a("v_add_f32 v56, v80, v120"); a("v_add_f32 v57, v82, v122")
    a("v_add_f32 v124, v124, v128"); a("v_add_f32 v126, v126, v130")
    a("v_add_f32 v132, v132, v136"); a("v_add_f32 v134, v134, v138")
    a("v_add_f32 v140, v140, v144"); a("v_add_f32 v142, v142, v146")
    a("v_add_f32 v56, v56, v124"); a("v_add_f32 v57, v57, v126")
    a("v_add_f32 v132, v132, v140"); a("v_add_f32 v134, v134, v142")
    a("v_add_f32 v56, v56, v132"); a("v_add_f32 v57, v57, v134")
    a("v_cvt_pk_bf16_f32 v16, v56, v57")
    a("ds_write_b16 v38, v16"); a("ds_write_b16_d16_hi v38, v16 offset:32")
    a(f"ds_write_b32 v12, v13 offset:{C_OF}")
    spin_all4(40, "v10", C_OF, sleep=0)
    for s in range(16): a(f"ds_read_b128 v[{84+4*s if s < 16 else 0}:{87+4*s}], v36 offset:{64*s}")
    for s in range(16):
        if s % 4 == 0: a(f"s_waitcnt lgkmcnt({12 - s})")
        acc = 48 + 4 * (s & 1)
        c = "0" if s < 2 else f"v[{acc}:{acc+3}]"
        a(f"v_mfma_f32_16x16x32_bf16 v[{acc}:{acc+3}], v[{84+4*s}:{87+4*s}], v[{150+4*s}:{153+4*s}], {c}")
    a("v_add_f32 v80, v48, v52")
    a(f"v_mov_b32_dpp v82, v80 row_ror:8 {DPPF}")
    a("s_mov_b64 exec, 0xff")
    a("global_store_dwordx4 v37, v[80:83], s[30:31] sc1")
    a("L_c_exit:")
    stamp(10)
    dump_stamps(11)
    a("s_endpgm")
    if h1mode == 'bf':
        a("L_h1_all:")
        for i in range(7): a(f"s_mov_b64 s[{68+2*i}:{69+2*i}], -1")
        a("L_h1_more:")
        a("s_mov_b32 s56, 0")
        for i in range(7):
            a(f"s_cmp_lg_u64 s[{68+2*i}:{69+2*i}], 0"); a("s_addc_u32 s56, s56, s56")
        a("s_sub_u32 s55, s56, 1"); a("s_and_b32 s55, s55, s56"); a("s_cbranch_scc0 L_h1_one")
        for i, (d, va, off) in enumerate(H1L):
            a(f"s_mov_b64 exec, s[{68+2*i}:{69+2*i}]")
            a(f"global_load_dwordx4 v[{d}:{d+3}], {va}, s[30:31] sc1")
        a("s_mov_b64 exec, -1")
        budget()
        a("s_waitcnt vmcnt(0)")
        a("s_branch L_h1_chk")
        a("L_h1_one:")
        for i in range(6):
            a(f"s_bitcmp1_b32 s56, {6-i}"); a(f"s_cbranch_scc1 L_h1_t{i}")
        for i in (6, 0, 1, 2, 3, 4, 5):
            d, va, off = H1L[i]
            a(f"L_h1_t{i}:")
            a(f"global_load_dwordx4 v[{d}:{d+3}], {va}, s[30:31] sc1")
            budget()
            a("s_waitcnt vmcnt(0)")
            a(f"v_cmp_ne_u32 vcc, s33, v{d+3}")
            a("v_xor_b32 v96, s33, v121"); a("v_xor_b32 v97, s33, v125")
            a(f"s_cbranch_vccnz L_h1_t{i}")
            a("v_bitop3_b32 v96, v129, s33, v96 bitop3:0xbe"); a("v_bitop3_b32 v97, v133, s33, v97 bitop3:0xbe")
            a("s_branch L_h1_ver")
    else:
        a("L_h1_more:")
        a("s_sub_u32 s55, s56, 1"); a("s_and_b32 s55, s55, s56"); a("s_cbranch_scc0 L_h1_one")
        for i, (d, va, off) in enumerate(H1L):
            a(f"s_bitcmp1_b32 s56, {i}"); a(f"s_cbranch_scc0 L_h1_s{i}")
            a(f"global_load_dwordx4 v[{d}:{d+3}], {va}, s[30:31] sc1")
            a(f"L_h1_s{i}:")
        budget()
        a("s_waitcnt vmcnt(0)")
        a("s_branch L_h1_scan")
        a("L_h1_one:")
        for i in range(6):
            a(f"s_bitcmp1_b32 s56, {i}"); a(f"s_cbranch_scc1 L_h1_t{i}")
        for i in (6, 0, 1, 2, 3, 4, 5):
            d, va, off = H1L[i]
            a(f"L_h1_t{i}:")
            a(f"global_load_dwordx4 v[{d}:{d+3}], {va}, s[30:31] sc1")
            budget()
            a("s_waitcnt vmcnt(0)")
            a(f"v_xor_b32 v96, s33, v{d+1}"); a(f"v_bitop3_b32 v96, v{d+3}, s33, v96 bitop3:0xbe"); a("v_cmp_ne_u32 vcc, 0, v96")
            a(f"s_cbranch_vccnz L_h1_t{i}")
            a("s_branch L_h1_done")
    a("L_st_far:")
    a("global_store_dwordx4 v35, v[80:83], s[30:31] sc1")
    a("s_branch L_st_done")

    nq = [0]
    def needq():
        nq[0] += 1; k = nq[0]
        a("s_cmp_eq_u32 s58, 1"); a(f"s_cbranch_scc0 L_nq_skip{k}")
        a(f"L_nq{k}:")
        a("global_load_dwordx4 v[56:59], v30, s[30:31] sc1")
        budget()
        a("s_waitcnt vmcnt(0)")
        tagcheck(["v57", "v59"], "v18", "v19", f"L_nq{k}")
        a("global_store_dwordx4 v30, v[56:59], s[30:31] sc1")
        a("s_mov_b32 s58, 0")
        a(f"L_nq_skip{k}:")
    a("L_Q:")
    a("v_and_b32 v14, 15, v0"); a("v_lshrrev_b32 v15, 4, v0")
    a("s_lshl_b32 s50, s6, 10"); a("s_lshl_b32 s51, s4, 7"); a("s_add_u32 s50, s50, s51"); a("s_lshl_b32 s50, s50, 4"); a(f"s_add_u32 s50, s50, {W_QG}")
    a("v_add_u32 v25, s50, v9")
    a("v_lshlrev_b32 v26, 3, v0"); a(f"v_add_u32 v26, {QI}, v26")
    a("v_mov_b32 v43, s33")
    a("s_lshl_b32 s50, s49, 8"); a(f"s_add_u32 s50, s50, {W_QG}"); a("v_lshlrev_b32 v16, 14, v15"); a("v_lshl_add_u32 v16, v14, 4, v16"); a("v_add_u32 v30, s50, v16")
    a("s_cmp_eq_u32 s35, 1"); a(f"s_cselect_b32 s58, {1 if qlocal else 0}, 0")
    a(f"s_mov_b32 s55, {q_rounds}")
    if dyn:
        a("v_and_b32 v16, 7, v0"); a("v_lshlrev_b32 v16, 7, v16"); a(f"v_add_u32 v31, {W_GT}, v16")
        a("s_cmp_lg_u32 s5, 0"); a("s_cbranch_scc1 L_nogt")
        a("s_lshl_b32 s50, s4, 7"); a(f"s_add_u32 s50, s50, {W_GT}"); a("v_mov_b32 v16, s50"); a("v_mov_b32 v32, s44"); a("v_mov_b32 v33, s33")
        a("s_mov_b64 exec, 1"); a("global_store_dwordx2 v16, v[32:33], s[30:31] sc1"); a("s_mov_b64 exec, -1")
        a("L_nogt:")
    spin_ge("v16", "v10", C_FILL, qpoll_fill, sleep=1)
    stamp(1)
    if dyn: a("global_load_dwordx2 v[34:35], v31, s[30:31] sc1")
    def qhook():
        a("s_sub_u32 s55, s55, 1"); a("s_cbranch_scc0 L_q_nohook"); needq(); a("L_q_nohook:")
    mpoll([(48, "v25", 0), (52, "v25", 1024)], "q", 16, sleep=qsleep, hook=qhook)
    a("ds_write2_b32 v26, v48, v50 offset0:0 offset1:1")
    a("ds_write2_b32 v26, v52, v54 offset0:128 offset1:129")
    a("v_mov_b32 v16, 1"); a(f"ds_write_b32 v10, v16 offset:{C_QRDY}")
    stamp(2)
    if dyn:
        a("v_sub_u32 v34, s44, v34"); a("v_cmp_eq_u32 vcc, s33, v35"); a("v_cndmask_b32 v34, 0, v34, vcc"); a("v_max_i32 v34, 0, v34")
        for m in ("quad_perm:[1,0,3,2]", "quad_perm:[2,3,0,1]", "row_half_mirror"): a(f"v_max_i32_dpp v34, v34, v34 {m} {DPPF}")
        a("v_min_u32 v34, 200, v34"); a(f"v_mul_u32_u24 v34, {dynmul}, v34"); a("v_add_u32 v34, 512, v34"); a("v_lshrrev_b32 v34, 10, v34")
        a(f"ds_write_b32 v10, v34 offset:{C_FP+4}"); a("v_mov_b32 v36, v34")
    a("v_and_b32 v17, 1, v0"); a("v_lshlrev_b32 v16, 4, v17")
    a("v_add_u32 v18, s6, v15"); a("v_and_b32 v18, 3, v18"); a("v_lshlrev_b32 v18, 13, v18")
    a("v_lshrrev_b32 v19, 1, v14"); a("v_lshl_add_u32 v18, v19, 7, v18"); a("v_add_u32 v18, v18, v16")
    a("s_lshl_b32 s50, s4, 10"); a(f"s_add_u32 s50, s50, {W_MLG}"); a("v_add_u32 v25, s50, v18")
    a("s_lshl_b32 s51, s6, 13"); a("s_add_u32 s50, s50, s51"); a("s_lshl_b32 s51, s7, 7"); a("s_add_u32 s50, s50, s51"); a("v_add_u32 v24, s50, v16")
    a("v_add_u32 v27, v16, v10")
    a("v_lshl_add_u32 v28, v17, 2, v10")
    a("s_getreg_b32 s52, hwreg(HW_REG_XCC_ID, 0, 4)")
    a("s_xor_b32 s53, s52, s33"); a("v_mov_b32 v41, s53")
    spin_all4(44, "v10", C_PF, sleep=4)
    if dyn2: a("s_memrealtime s[84:85]")
    a(f"ds_read_b128 v[44:47], v27 offset:{C_MX}"); a(f"ds_read_b128 v[48:51], v27 offset:{C_LS}")
    a("s_waitcnt lgkmcnt(0)")
    a("v_max_f32 v40, v44, v45"); a("v_max3_f32 v40, v40, v46, v47")
    a("v_add_f32 v48, v48, v49"); a("v_add_f32 v50, v50, v51"); a("v_add_f32 v42, v48, v50")
    a("v_mov_b32 v39, v40")
    a("s_mov_b64 exec, 3")
    a("global_store_dwordx4 v24, v[40:43], s[30:31]")
    a("s_mov_b64 exec, -1")
    a(f"s_mov_b32 s55, {ml_rounds}")
    stamp(3)
    if dyn2:
        a("s_and_b32 s50, s5, 0x17"); a("s_cmp_lg_u32 s50, 0"); a("s_cbranch_scc1 L_nogt2")
        a("s_lshl_b32 s50, s4, 1"); a("s_lshr_b32 s51, s5, 3"); a("s_add_u32 s50, s50, s51"); a("s_lshl_b32 s50, s50, 7"); a(f"s_add_u32 s50, s50, {W_GT + 0x1000}")
        a("v_mov_b32 v16, s50"); a("v_mov_b32 v32, s84"); a("v_mov_b32 v33, s33")
        a("s_mov_b64 exec, 1"); a("global_store_dwordx2 v16, v[32:33], s[30:31] sc1"); a("s_mov_b64 exec, -1")
        a("L_nogt2:")
        a("v_lshlrev_b32 v16, 7, v14"); a(f"v_add_u32 v31, {W_GT + 0x1000}, v16")
        spin_ge("v16", "v10", C_FILL, dyn2fill, sleep=8)
        a("global_load_dwordx2 v[34:35], v31, s[30:31] sc1"); a("s_memrealtime s[86:87]")
        a("s_waitcnt vmcnt(0) lgkmcnt(0)")
        a("v_mov_b32 v37, s86"); a("v_cmp_eq_u32 vcc, s33, v35"); a("v_cndmask_b32 v34, v37, v34, vcc"); a("v_sub_u32 v34, v37, v34")
        a(f"v_add_u32_dpp v34, v34, v34 quad_perm:[1,0,3,2] {DPPF}")
        a("v_mov_b32 v35, v34")
        for m in ("quad_perm:[2,3,0,1]", "row_ror:4", "row_ror:8"): a(f"v_add_u32_dpp v35, v35, v35 {m} {DPPF}")
        a("s_lshl_b32 s50, s4, 1"); a("v_readlane_b32 s51, v34, s50"); a("v_readfirstlane_b32 s50, v35")
        a("s_lshl_b32 s51, s51, 3"); a("s_sub_i32 s50, s50, s51"); a(f"s_mul_i32 s50, s50, {dyn2mul}"); a("s_ashr_i32 s50, s50, 14")
        a("s_max_i32 s50, s50, -8"); a("s_min_i32 s50, s50, 12")
        a("v_add_u32 v36, s50, v36"); a(f"ds_write_b32 v10, v36 offset:{C_FP+4}")
    spin_ge("v16", "v10", C_FILL, ml_fill, sleep=8)
    def mlload():
        a("global_load_dwordx4 v[48:51], v25, s[30:31] sc1")
        a("s_waitcnt vmcnt(0)")
        a("v_xor_b32 v16, s33, v49"); a("v_lshrrev_b32 v17, 4, v16"); a("v_bitop3_b32 v17, v51, s33, v17 bitop3:0xbe")
        a("v_cmp_ne_u32 s[56:57], s52, v16"); a("v_cmp_ne_u32 s[60:61], 0, v17")
        a("s_andn2_b64 s[56:57], s[56:57], s[60:61]")
    def mlpub():
        a("s_mov_b64 exec, 3")
        a("global_store_dwordx4 v24, v[40:43], s[30:31] sc1")
        a("s_mov_b64 exec, -1")
    a("s_branch L_ml_first")
    a("L_ml_retry:")
    budget()
    a("s_cmp_eq_u32 s55, 1000"); a("s_cbranch_scc1 L_ml_again")
    a("s_and_b32 s59, s56, 0xffff"); a("s_cbranch_scc1 L_ml_pub")
    a("s_sub_u32 s55, s55, 1"); a("s_cbranch_scc0 L_ml_again")
    a("L_ml_pub:")
    mlpub(); needq()
    a("s_movk_i32 s55, 1000")
    a("L_ml_again:")
    a("s_sleep 4")
    a("L_ml_first:")
    mlload()
    a("s_and_b32 s59, s60, 0xffff"); a("s_cbranch_scc1 L_ml_retry")
    a("s_and_b32 s59, s56, 0xffff"); a(f"s_cselect_b32 s54, 0, {0 if forcesc1 else 1}"); a("s_cbranch_scc0 L_ml_ok")
    mlpub()
    a("L_ml_ok:")
    a(f"s_mov_b32 s50, {hex(f2u(CEXP))}")
    a("v_and_b32 v48, 0xffff0000, v48")
    a("v_mov_b32 v44, v48")
    for m in ("quad_perm:[2,3,0,1]", "row_ror:4", "row_ror:8"): a(f"v_max_f32_dpp v44, v44, v44 {m} {DPPF}")
    a("v_sub_f32 v45, v48, v44"); a("v_sub_f32 v46, v39, v44")
    a("v_mul_f32 v45, s50, v45"); a("v_mul_f32 v46, s50, v46")
    a("v_exp_f32 v45, v45"); a("v_exp_f32 v46, v46")
    a("v_mul_f32 v45, v45, v50")
    for m in ("quad_perm:[2,3,0,1]", "row_ror:4", "row_ror:8"): a(f"v_add_f32_dpp v45, v45, v45 {m} {DPPF}")
    a("v_rcp_f32 v45, v45")
    a("v_mov_b32 v17, s54")
    a("v_mul_f32 v46, v46, v45")
    a("v_mov_b32 v16, 1")
    a("s_mov_b64 exec, 3")
    a(f"ds_write_b32 v28, v46 offset:{C_FAC}")
    a(f"ds_write_b32 v10, v17 offset:{C_LOC}")
    a(f"ds_write_b32 v10, v16 offset:{C_FACF}")
    a("s_mov_b64 exec, -1")
    stamp(4)
    a("s_cmp_eq_u32 s35, 4"); a("s_cselect_b32 s59, 1, s58"); a("s_cmp_eq_u32 s59, 0"); a("s_cbranch_scc1 L_q_exit")
    a(f"s_mov_b32 s55, {all_rounds}"); a("v_mov_b32 v20, 1")
    a("L_all:")
    a("s_cmp_lg_u64 s[56:57], 0"); a("s_cbranch_scc1 L_all_no")
    a("s_cmp_eq_u64 s[60:61], 0"); a("s_cbranch_scc1 L_all_yes")
    a("s_sub_u32 s55, s55, 1"); a("s_cbranch_scc1 L_all_no")
    a("s_sleep 8")
    mlload()
    a("s_branch L_all")
    a("L_all_no:")
    needq()
    a("v_mov_b32 v20, 2")
    a("L_all_yes:")
    a(f"ds_write_b32 v10, v20 offset:{C_ALL}")
    a("L_q_exit:")
    stamp(5)
    dump_stamps(7)
    a("s_endpgm")

    a("L_F:")
    a("s_cmp_eq_u32 s35, 4"); a("s_cbranch_scc0 L_end")
    a("v_and_b32 v14, 15, v0"); a("v_lshrrev_b32 v15, 4, v0")
    tile_tr_addr("v20", None, F2B)
    for tau in range(1, 4): a(f"v_xor_b32 v{20+tau}, {32*tau}, v20")
    a("s_mov_b32 s50, s5"); a("s_mov_b32 s51, s4")
    a("s_lshl_b32 s52, s50, 12"); a(f"s_add_u32 s52, s52, {W_GU}"); a("v_add_u32 v25, s52, v9")
    a("s_mul_i32 s52, s50, 28"); a("s_add_u32 s52, s52, s51"); a("s_lshl_b32 s52, s52, 9"); a(f"s_add_u32 s52, s52, {W_OG}")
    a("v_and_b32 v17, 3, v14"); a("v_lshrrev_b32 v18, 2, v14"); a("v_lshlrev_b32 v18, 6, v18"); a("v_lshl_add_u32 v18, v15, 4, v18")
    a(f"s_movk_i32 s51, {7*512}"); a("v_mad_u32_u24 v16, v17, s51, v18"); a("v_add_u32 v24, s52, v16")
    if warm & 4:
        a(f"global_load_dword v30, v24, s[30:31] {warmfl}"); a(f"global_load_dword v31, v24, s[30:31] offset:256 {warmfl}")
    a("v_lshlrev_b32 v26, 3, v0"); a(f"v_add_u32 v26, {HA}, v26")
    a("v_lshlrev_b32 v16, 8, v17"); a("v_lshl_add_u32 v27, v15, 4, v16"); a(f"v_add_u32 v27, {HA}, v27")
    a("s_mov_b32 s44, 0xf0f0f0f0"); a("s_mov_b32 s45, 0xf0f0f0f0"); a("s_mov_b32 s46, 0xff00ff00"); a("s_mov_b32 s47, 0xff00ff00")
    spin_ge("v16", "v10", C_FILL, 1, sleep=2)
    for s in range(4):
        for tau in range(4):
            r = 128 + (s * 4 + tau) * 4
            a(f"ds_read_b64_tr_b16 v[{r}:{r+1}], v{20+tau} offset:{4096*s}")
            a(f"ds_read_b64_tr_b16 v[{r+2}:{r+3}], v{20+tau} offset:{4096*s+512}")
    a(f"v_mov_b32 v16, {BIG}"); a("s_waitcnt lgkmcnt(0)"); a(f"ds_write_b32 v10, v16 offset:{C_FP}")
    stamp(1)
    if noffn: a("s_endpgm")
    if gu_fill is None: spin_ge("v16", "v10", C_QRDY, 1, sleep=4)
    else: spin_ge("v16", "v10", C_FILL, gu_fill, sleep=8)
    a("L_h_retry:")
    for i in range(4): a(f"global_load_dwordx4 v[{64+4*i}:{67+4*i}], v25, s[30:31] offset:{1024*i} sc1")
    budget()
    a("s_waitcnt vmcnt(0)")
    if not nogupoll: tagcheck([f"v{65+2*i}" for i in range(8)], "v16", "v17", "L_h_retry")
    stamp(2)
    for k in range(4):
        a(f"v_lshlrev_b32 v{84+2*k}, 16, v{64+2*k}"); a(f"v_and_b32 v{85+2*k}, 0xffff0000, v{64+2*k}")
        a(f"v_lshlrev_b32 v{92+2*k}, 16, v{72+2*k}"); a(f"v_and_b32 v{93+2*k}, 0xffff0000, v{72+2*k}")
    a(f"s_mov_b32 s50, {hex(f2u(-LOG2E))}")
    for i in range(8): a(f"v_mul_f32 v{100+i}, s50, v{84+i}")
    for i in range(8): a(f"v_exp_f32 v{100+i}, v{100+i}")
    for i in range(8): a(f"v_add_f32 v{100+i}, 1.0, v{100+i}")
    for i in range(8): a(f"v_rcp_f32 v{100+i}, v{100+i}")
    for i in range(8): a(f"v_mul_f32 v{100+i}, v{100+i}, v{84+i}")
    for i in range(8): rbf(f"v{100+i}", f"v{100+i}")
    for i in range(8): a(f"v_mul_f32 v{100+i}, v{100+i}, v{92+i}")
    for k in range(4): a(f"v_cvt_pk_bf16_f32 v{108+k}, v{100+2*k}, v{101+2*k}")
    a("ds_write_b64 v26, v[108:109]"); a("ds_write_b64 v26, v[110:111] offset:512")
    for s in range(4): a(f"ds_read_b128 v[{64+4*s}:{67+4*s}], v27 offset:{64*s}")
    a("s_waitcnt lgkmcnt(0)")
    for s in range(4):
        for tau in range(4):
            r = 128 + (s * 4 + tau) * 4
            c = "0" if s == 0 else f"v[{84+4*tau}:{87+4*tau}]"
            a(f"v_mfma_f32_16x16x32_bf16 v[{84+4*tau}:{87+4*tau}], v[{r}:{r+3}], v[{64+4*s}:{67+4*s}], {c}")
    for k in (41, 43, 45, 47): a(f"v_mov_b32 v{k}, s33")
    for r in range(4):
        a(f"v_cndmask_b32 v16, v{84+r}, v{88+r}, s[44:45]"); a(f"v_cndmask_b32 v17, v{92+r}, v{96+r}, s[44:45]")
        a(f"v_cndmask_b32 v{40+2*r}, v16, v17, s[46:47]")
    if oglocal:
        spin_ge("v16", "v10", C_ALL, 1, sleep=2)
        a("v_cmp_eq_u32 vcc, 1, v16"); a("s_cbranch_vccz L_og_far")
        a("global_store_dwordx4 v24, v[40:43], s[30:31]")
        a("global_store_dwordx4 v24, v[44:47], s[30:31] offset:256")
        a("s_branch L_og_done")
        a("L_og_far:")
    a("global_store_dwordx4 v24, v[40:43], s[30:31] sc1")
    a("global_store_dwordx4 v24, v[44:47], s[30:31] offset:256 sc1")
    a("L_og_done:")
    stamp(3)
    dump_stamps(4)
    a("s_endpgm")

    a("L_R:")
    if prefetch_code:
        a("s_getpc_b64 s[48:49]")
        a("L_pc:")
        a(f"s_sub_u32 s48, s48, L_pc-{KNAME}_kernel"); a("s_subb_u32 s49, s49, 0")
        a("s_lshl_b32 s50, s5, 10"); a(f"s_cmp_lt_u32 s50, L_fail-{KNAME}_kernel-1024"); a("s_cbranch_scc0 L_nopf")
        a("v_add_u32 v16, s50, v9")
        a("global_load_dwordx4 v[20:23], v16, s[48:49]")
        a("L_nopf:")
    a("s_cmp_lg_u32 s2, 255"); a("s_cbranch_scc1 L_r_exit")
    for k in range(4): a(f"v_add_u32 v{28+k}, {W_H2 + k*28*1024}, v9")
    spin_ge("v16", "v10", C_FILL, 33, sleep=16)
    if not notail and not noew: mpoll([(48 + 4 * k, f"v{28+k}", 0) for k in range(4)], "ew", 16, sleep=h2sleep)
    a("s_mov_b64 exec, 1")
    a("v_mov_b32 v16, 0"); a("v_mov_b32 v17, s33")
    a(f"global_store_dword v16, v17, s[30:31] {efl}")
    a("s_branch L_r_exit")
    a("L_red:")
    a("s_cmp_eq_u32 s4, 7"); a("s_cbranch_scc1 L_r_exit")
    a("s_mov_b32 s51, s6"); a("s_lshl_b32 s52, s4, 2"); a("s_add_u32 s52, s52, s3"); a("s_mul_i32 s50, s51, 28"); a("s_add_u32 s50, s50, s52")
    a("s_mul_i32 s53, s51, 448"); a("s_lshl_b32 s54, s52, 4"); a("s_add_u32 s53, s53, s54")
    a("v_lshrrev_b32 v16, 5, v0"); a("v_and_b32 v17, 7, v0"); a("v_lshl_add_u32 v18, v16, 3, v17")
    a("v_add_u32 v19, s53, v18"); a("v_lshlrev_b32 v24, 1, v19")
    a("s_lshr_b32 s53, s52, 2"); a("s_mul_i32 s54, s51, 7"); a("s_add_u32 s53, s53, s54"); a("s_lshl_b32 s53, s53, 9")
    a("s_and_b32 s54, s52, 3"); a("s_lshl_b32 s54, s54, 6"); a("s_add_u32 s53, s53, s54"); a(f"s_add_u32 s53, s53, {W_OG}")
    a("v_bfe_u32 v19, v18, 1, 1"); a("v_lshlrev_b32 v19, 8, v19"); a("v_lshrrev_b32 v20, 2, v18"); a("v_lshl_add_u32 v19, v20, 4, v19")
    a("v_and_b32 v20, 1, v18"); a("v_lshl_add_u32 v19, v20, 3, v19"); a("v_add_u32 v19, s53, v19")
    a("v_bfe_u32 v21, v0, 3, 2"); a(f"s_movk_i32 s54, {28*512}")
    a("v_mad_u32_u24 v25, v21, s54, v19")
    a(f"v_add_u32 v27, {4*28*512}, v25"); a(f"v_add_u32 v28, {8*28*512}, v25")
    a("v_min_u32 v22, 1, v21"); a("v_add_u32 v22, 12, v22"); a("v_mad_u32_u24 v29, v22, s54, v19")
    a("v_cmp_gt_u32 s[44:45], 2, v21")
    a("s_lshl_b32 s56, s50, 10"); a(f"s_add_u32 s56, s56, {W_H2}"); a("v_add_u32 v26, s56, v9")
    a("global_load_ushort v30, v24, s[8:9]")
    if touch_out: a("global_load_ushort v31, v24, s[26:27]")
    a("s_branch L_og_first")
    a("L_og_retry:")
    budget()
    a("s_waitcnt vmcnt(0)")
    a("L_og_first:")
    for k, va in enumerate(("v25", "v27", "v28", "v29")): a(f"global_load_dwordx2 v[{32+2*k}:{33+2*k}], {va}, s[30:31] sc1")
    def gate():
        a("s_waitcnt vmcnt(1)")
        if not noogpoll: tagcheck(["v33", "v35", "v37", "v39"], "v16", "v17", "L_og_retry")
        a("v_cndmask_b32 v38, 0, v38, s[44:45]"); a("v_add_f32 v32, v32, v34"); a("v_add_f32 v36, v36, v38"); a("v_add_f32 v32, v32, v36")
        a(f"v_add_f32_dpp v32, v32, v32 row_ror:8 {DPPF}")
        swapred("v_add_f32", "v32", "v33", 16)
        rbf("v32", "v32")
        a(f"v_mul_f32 v33, {hex(f2u(-LOG2E))}, v32"); a("v_exp_f32 v33, v33"); a("v_add_f32 v33, 1.0, v33"); a("v_rcp_f32 v33, v33")
        a("v_mul_f32 v32, v32, v33"); rbf("v32", "v32")
        a("v_lshlrev_b32 v30, 16, v30")
        stamp(11)
    mpoll([(48, "v26", 0)], "h2", 16, sleep=h2sleep, pre=gate)
    stamp(12)
    a("v_permlane32_swap_b32 v48, v50"); a("v_add_f32 v48, v48, v50")
    swapred("v_add_f32", "v48", "v50", 16)
    a(f"v_add_f32_dpp v48, v48, v48 row_ror:8 {DPPF}")
    rbf("v48", "v48")
    a("v_mul_f32 v48, v48, v32"); rbf("v48", "v48")
    a("v_add_f32 v48, v48, v30"); a("v_cvt_pk_bf16_f32 v48, v48, v48")
    a("s_mov_b32 exec_lo, 0xff"); a("s_mov_b32 exec_hi, 0xff")
    a(f"global_store_short v24, v48, s[26:27] {outfl}")
    a("L_r_exit:")
    stamp(13)
    dump_stamps(14)
    a("L_end:")
    a("s_endpgm")
    a("L_fail:")
    a("s_mov_b64 exec, 1")
    a("s_lshl_b32 s60, s3, 2"); a("s_or_b32 s61, s2, 0xbad00000")
    a("v_mov_b32 v16, s60"); a("v_mov_b32 v17, s61")
    a("global_store_dword v16, v17, s[28:29]")
    a("s_endpgm")
    a.raw('.section .rodata,"a"'); a.raw(".p2align 6"); a.raw(f".amdhsa_kernel {KNAME}_kernel")
    a.raw("  .amdhsa_next_free_vgpr 256"); a.raw("  .amdhsa_next_free_sgpr 96"); a.raw("  .amdhsa_accum_offset 256")
    a.raw("  .amdhsa_group_segment_fixed_size 0"); a.raw("  .amdhsa_kernarg_size 96"); a.raw("  .amdhsa_user_sgpr_count 2")
    a.raw("  .amdhsa_user_sgpr_kernarg_segment_ptr 1"); a.raw("  .amdhsa_system_sgpr_workgroup_id_x 1"); a.raw(".end_amdhsa_kernel")
    return a.text()

STAMPS = {'C': 11, 'L': 4, 'Q': 7, 'F': 4, 'R': 6}
if __name__ == "__main__":
    import ast
    kw = {}
    for x in sys.argv[2:]:
        k, v = x.split("=", 1)
        try: kw[k] = ast.literal_eval(v)
        except Exception: kw[k] = v
    open(sys.argv[1], "w").write(gen(**kw))
```

```python
import sys, struct
from asmlib import Asm
KNAME = "recurrent_scan__gqa_block_cached__glu_gated_swiglu__decode"

SLOT = 16384; NS = 9
RING = 0; RING_END = RING + NS * SLOT; BIGW = 6 * SLOT; WOB = 5 * SLOT; F2B = 8 * SLOT
CTRL = BIGW + 57344; XN = CTRL + 256; QI = XN + 3584; PB = QI + 1024; HA = PB + 2048; OAI = HA + 1024; LDS_END = OAI + 128; OI = XN
assert LDS_END <= 163840
C_CP = 0; C_FP = 16; C_FILL = 32; C_XNF = 48; C_QRDY = 64; C_MXF = 80; C_PF = 96; C_FACF = 112
C_MX = 128; C_LS = 160; C_FAC = 192; C_TAIL = 208; C_OF = 224; C_ALL = 204; C_LOC = 200
OA = None
W_E = 0; W_QG = 0x1000; W_GU = 0x20000; W_OG = 0x40000; W_MLG = 0x80000; W_H1 = 0x100000; W_H2 = 0x200000; W_GT = 0x90000; W_GP = 0x91000; W_DIAG = 0x400000
BIG = 1000
DEFCLS = 'g'
CEXP = 0.09016844005556021
LOG2E = 1.4426950408889634
def f2u(f): return struct.unpack("<I", struct.pack("<f", f))[0]

def gen(diag=False, kvflags="nt", wflags="nt", woflags="", win=18, w0=28, prefetch_code=True, qpoll_fill=3, cls='g', kvsleep=0,
        notail=False, nowo=False, noffn=False, og_fill=32, gu_fill=28, h1sleep=2, h2sleep=0, qsleep=4, ml_fill=24, ml_rounds=4, forcesc1=False,
        wo_start=19, wo_per=6, wwo=25, mlplain=True, womode='L', wo_fill=32, wo_n1=0,
        catch=0, wboost=30, wwoboost=32, tau=57, tauw=61, theta=40, t0item=2, h1seq=True, vspin=True, palign=12, pad=0, h2off=0x200000, touch_out=False, tlbwarm=False, endboost=2, h1mode='bf', noew=False, nA=7, nB=7, qlocal=True, oglocal=True, q_rounds=6, wh=21, wwoh=27, w7=20, prestore=False, lv0=2, lvF=4, lv7=8, lvH=12, lvlate=2, dyn=0, dynmul=54, wdelta=6, NB=4, gufull=True, probe=False, dyn2=0, dyn2mul=200, dyn2fill=21, gufl='sc1', lateplus=1, first_at=15, j7heavy=False, lag=None, lagcnt=32, wlag=28, wwolag=31, early_inline=2, all_rounds=4, outfl='', efl='', startboost=0, noq=False, pubfl='sc1', ogfl='sc1', noogpoll=False, nogupoll=False):
    a = Asm()
    W_H2 = h2off
    assert 17 <= win <= 32
    qpipe = 0; warm = 0; rounds1 = rounds2 = None
    kvf = (" " + kvflags) if kvflags else ""
    wf = (" " + wflags) if wflags else ""
    wof = (" " + woflags) if woflags else ""
    hdr = open("cdna_kernels/" + KNAME + ".s.ref").read().split("; Override launch")[0]
    a.raw(hdr.rstrip())
    a.raw(f"; @launch grid=(256,1,1) block=(512,1,1) lds={LDS_END}")
    a.raw('.amdgcn_target "amdgcn-amd-amdhsa--gfx950"')
    a.raw(".text"); a.raw(f".globl {KNAME}_kernel")
    if palign: a.raw(f".p2align {palign}")
    if pad: a.raw(f".fill {pad//4}, 4, 0xbf800000")
    a.raw(".p2align 8"); a.raw(f".type {KNAME}_kernel,@function"); a.raw(f"{KNAME}_kernel:")
    def stamp(i):
        if diag:
            a(f"s_memrealtime s[64:65]"); a("s_waitcnt lgkmcnt(0)"); a(f"v_writelane_b32 v247, s64, {2*i}"); a(f"v_writelane_b32 v247, s65, {2*i+1}")
    def dump_stamps(n):
        if diag:
            a("s_mov_b32 exec_lo, -1"); a("s_mov_b32 exec_hi, 0")
            a("s_lshl_b32 s60, s2, 3"); a("s_add_u32 s60, s60, s3"); a("s_lshl_b32 s60, s60, 7"); a(f"s_add_u32 s60, s60, {W_DIAG}")
            a("v_lshl_add_u32 v246, v0, 2, s60")
            a("global_store_dword v246, v247, s[30:31]")
    lbl = [0]
    def newlabel(p):
        lbl[0] += 1; return f"L_{p}_{lbl[0]}"
    def budget():
        a("s_sub_u32 s62, s62, 1"); a("s_cbranch_scc1 L_fail")
    def _spin_tail(L, Ld, sleep):
        a(f"s_cbranch_scc1 {Ld}")
        if sleep: a(f"s_sleep {sleep}")
        a("s_sub_u32 s62, s62, 1"); a(f"s_cbranch_scc0 {L}"); a("s_branch L_fail"); a(f"{Ld}:")
    def spin_ge(vtmp, vctl, off, sval, sleep=1):
        L = newlabel("spin"); Ld = newlabel("spind")
        a(f"{L}:")
        a(f"ds_read_b32 {vtmp}, {vctl} offset:{off}")
        a("s_waitcnt lgkmcnt(0)")
        if vspin:
            a(f"v_cmp_le_u32 vcc, {sval}, {vtmp}")
            a(f"s_cbranch_vccnz {Ld}")
            if sleep: a(f"s_sleep {sleep}")
            a("s_sub_u32 s62, s62, 1"); a(f"s_cbranch_scc0 {L}"); a("s_branch L_fail"); a(f"{Ld}:")
        else:
            a(f"v_readfirstlane_b32 s59, {vtmp}")
            a(f"s_cmp_ge_u32 s59, {sval}")
            _spin_tail(L, Ld, sleep)
    def spin_all4(vt, vctl, off, sleep=1):
        L = newlabel("spin4"); Ld = newlabel("spin4d")
        a(f"{L}:")
        a(f"ds_read_b128 v[{vt}:{vt+3}], {vctl} offset:{off}")
        a("s_waitcnt lgkmcnt(0)")
        a(f"v_min_u32 v{vt}, v{vt}, v{vt+1}")
        a(f"v_min3_u32 v{vt}, v{vt}, v{vt+2}, v{vt+3}")
        if vspin:
            a(f"v_cmp_ne_u32 vcc, 0, v{vt}")
            a(f"s_cbranch_vccnz {Ld}")
            if sleep: a(f"s_sleep {sleep}")
            a("s_sub_u32 s62, s62, 1"); a(f"s_cbranch_scc0 {L}"); a("s_branch L_fail"); a(f"{Ld}:")
        else:
            a(f"v_readfirstlane_b32 s59, v{vt}")
            a("s_cmp_lg_u32 s59, 0")
            _spin_tail(L, Ld, sleep)
    def tagcheck(tags, vacc, vacc2, retry):
        h = (len(tags) + 1) // 2
        t1, t2 = tags[:h], tags[h:]
        a(f"v_xor_b32 {vacc}, s33, {t1[0]}")
        if t2: a(f"v_xor_b32 {vacc2}, s33, {t2[0]}")
        for i in range(1, h):
            a(f"v_bitop3_b32 {vacc}, {t1[i]}, s33, {vacc} bitop3:0xbe")
            if i < len(t2): a(f"v_bitop3_b32 {vacc2}, {t2[i]}, s33, {vacc2} bitop3:0xbe")
        if t2: a(f"v_or_b32 {vacc}, {vacc}, {vacc2}")
        a(f"v_cmp_ne_u32 vcc, 0, {vacc}")
        a(f"s_cbranch_vccnz {retry}")
    def mpoll(loads, name, vt, sm=72, pre=None, alt=None, sleep=0, preset=False, hook=None):
        n = len(loads)
        for i, (d, va, off) in enumerate(loads):
            if preset: a(f"s_mov_b64 exec, s[{sm+2*i}:{sm+2*i+1}]")
            a(f"global_load_dwordx4 v[{d}:{d+3}], {va}, s[30:31] offset:{off} sc1")
        if preset: a("s_mov_b64 exec, -1")
        if pre: pre()
        a(f"s_branch L_{name}_chk")
        a(f"L_{name}_retry:")
        if hook: hook()
        if sleep: a(f"s_sleep {sleep}")
        if alt:
            a("s_add_u32 s63, s63, 1"); a("s_and_b32 s61, s63, 3"); a("s_cmp_lt_u32 s61, 2"); a(f"s_cbranch_scc0 L_{name}_noalt")
            a(f"v_xor_b32 {alt[0]}, {alt[0]}, {alt[1]}"); a(f"L_{name}_noalt:")
        for i, (d, va, off) in enumerate(loads):
            a(f"s_mov_b64 exec, s[{sm+2*i}:{sm+2*i+1}]"); a(f"s_cbranch_execz L_{name}_sk{i}")
            a(f"global_load_dwordx4 v[{d}:{d+3}], {va}, s[30:31] offset:{off} sc1")
            a(f"L_{name}_sk{i}:")
        a("s_mov_b64 exec, -1")
        budget()
        a(f"L_{name}_chk:")
        a("s_waitcnt vmcnt(0)")
        for i, (d, va, off) in enumerate(loads): a(f"v_xor_b32 v{vt+i}, s33, v{d+1}")
        for i, (d, va, off) in enumerate(loads): a(f"v_bitop3_b32 v{vt+i}, v{d+3}, s33, v{vt+i} bitop3:0xbe")
        for i, (d, va, off) in enumerate(loads): a(f"v_cmp_ne_u32 s[{sm+2*i}:{sm+2*i+1}], 0, v{vt+i}")
        if n == 1: a(f"s_cmp_lg_u64 s[{sm}:{sm+1}], 0")
        else:
            a(f"s_or_b64 vcc, s[{sm}:{sm+1}], s[{sm+2}:{sm+3}]")
            for i in range(2, n): a(f"s_or_b64 vcc, vcc, s[{sm+2*i}:{sm+2*i+1}]")
        rounds = {"h1": rounds1, "h2": rounds2}.get(name)
        if rounds is not None:
            a("s_add_u32 s82, s82, 1"); a(f"s_cmp_lt_u32 s82, {rounds}")
        a(f"s_cbranch_scc1 L_{name}_retry")
    def rbf(dst, src):
        a(f"v_cvt_pk_bf16_f32 {dst}, {src}, {src}")
        a(f"v_and_b32 {dst}, 0xffff0000, {dst}")
    DPPF = "row_mask:0xf bank_mask:0xf"
    def red16(op, v):
        for m in ("quad_perm:[1,0,3,2]", "quad_perm:[2,3,0,1]", "row_half_mirror", "row_mirror"):
            a(f"{op}_dpp {v}, {v}, {v} {m} {DPPF}")
    def swapred(op, v, t, which):
        a(f"v_mov_b32 {t}, {v}")
        a(f"v_permlane{which}_swap_b32 {v}, {t}")
        a(f"{op} {v}, {v}, {t}")

    if diag: a("s_memrealtime s[66:67]")
    a("s_cmp_ge_u32 s2, 256")
    a("s_cbranch_scc1 L_end")
    if dyn or probe: a("s_memrealtime s[44:45]")
    a("s_load_dwordx16 s[8:23], s[0:1], 0")
    a("s_load_dwordx8 s[24:31], s[0:1], 64")
    a("v_lshrrev_b32 v1, 6, v0")
    a("v_and_b32 v0, 63, v0")
    a("v_readfirstlane_b32 s3, v1")
    a("s_and_b32 s4, s2, 7"); a("s_lshr_b32 s5, s2, 3"); a("s_and_b32 s6, s5, 3"); a("s_lshr_b32 s7, s5, 2")
    assert 5 * nA + 3 * nB == 56
    a(f"s_mul_i32 s48, s4, {nA}"); a(f"s_mul_i32 s49, s4, {nB}"); a(f"s_add_u32 s49, s49, {4*nA - 4*nB}")
    a("s_cmp_lt_u32 s4, 4"); a("s_cselect_b32 s48, s48, s49"); a(f"s_cselect_b32 s34, {24-nA}, {24-nB}")
    a("s_cmp_eq_u32 s4, 7"); a(f"s_cselect_b32 s34, {24-nA}, s34"); a("s_cselect_b32 s55, 0, 14")
    a("s_cmp_lt_u32 s5, s55"); a("s_cselect_b32 s35, 4, 0")
    a("s_add_u32 s48, s48, s5"); a("s_sub_u32 s48, s48, s34"); a("s_sub_u32 s49, s48, 28")
    a("s_cmp_lt_u32 s48, 28"); a("s_cselect_b32 s49, s48, s49"); a("s_cselect_b32 s48, 2, 3")
    a("s_cmp_ge_u32 s5, s34"); a("s_cselect_b32 s35, s48, s35")
    a("s_lshl_b32 s48, s4, 3"); a("s_add_u32 s48, s48, s5"); a("s_sub_u32 s48, s48, 24")
    a("s_movk_i32 s57, 3584"); a("s_mov_b32 s38, 1605632")
    a("s_cmp_ge_u32 s5, 24"); a("s_cselect_b32 s35, 1, s35"); a("s_cselect_b32 s49, s48, s49"); a("s_cselect_b32 s57, 8192, s57"); a("s_cselect_b32 s38, 3670016, s38")
    a("s_mov_b32 s39, 0x20000")
    a("s_mul_i32 s55, s5, 896"); a("s_add_u32 s55, s55, s4")
    a("s_cmp_eq_u32 s35, 4"); a("s_cselect_b32 s48, s55, s49"); a("s_cselect_b32 s57, 896, s57"); a("s_cselect_b32 s61, 8, 28")
    a(f"s_cselect_b32 s60, {(F2B-BIGW)//1024}, 0"); a("s_lshl_b32 s48, s48, 7"); a("s_lshl_b32 s60, s60, 10"); a(f"s_add_u32 s60, s60, {BIGW}")
    a("s_cmp_eq_u32 s35, 0"); a("s_cselect_b32 s61, 0, s61")
    a("s_lshl_b32 s56, s57, 3")
    a("s_lshl_b32 s52, s6, 3"); a("s_add_u32 s52, s52, s4"); a("s_lshl_b32 s52, s52, 21"); a("s_lshl_b32 s53, s7, 18"); a("s_add_u32 s54, s52, s53")
    a("s_mov_b32 s42, 0x4000000"); a("s_mov_b32 s43, 0x20000")
    a("v_lshlrev_b32 v9, 4, v0")
    a(f"v_mov_b32 v10, {CTRL}")
    a("v_lshrrev_b32 v2, 3, v0"); a("v_and_b32 v3, 7, v0"); a("v_and_b32 v8, 2, v2"); a("v_xor_b32 v3, v3, v8")
    a("v_lshlrev_b32 v3, 4, v3")
    a("v_mad_u32_u24 v24, v2, s57, v3"); a("v_xor_b32 v25, 64, v3"); a("v_mad_u32_u24 v25, v2, s57, v25")
    a("v_lshrrev_b32 v28, 5, v0"); a("v_and_b32 v29, 31, v0"); a("v_lshlrev_b32 v30, 9, v28"); a("v_xor_b32 v15, v29, v28")
    for p in range(8):
        if p: a(f"v_xor_b32 v{16+p}, {2*p}, v15"); a(f"v_lshl_add_u32 v{16+p}, v{16+p}, 4, v30")
        else: a("v_lshl_add_u32 v16, v15, 4, v30")
    a("s_mov_b32 s62, 0x100000")
    a("s_cmp_eq_u32 s3, 4")
    a("s_waitcnt lgkmcnt(0)")
    if diag: a("v_writelane_b32 v247, s66, 0"); a("v_writelane_b32 v247, s67, 1")
    a("s_cbranch_scc0 L_others")

    if diag == 3: a("s_memrealtime s[84:85]")
    a("s_cmp_eq_u32 s35, 2"); a("s_cselect_b32 s36, s20, s22"); a("s_cselect_b32 s37, s21, s23")
    a("s_cmp_eq_u32 s35, 1"); a("s_cselect_b32 s36, s14, s36"); a("s_cselect_b32 s37, s15, s37")
    a("s_cmp_eq_u32 s35, 4"); a("s_cselect_b32 s36, s24, s36"); a("s_cselect_b32 s37, s25, s37")
    a("s_mov_b32 m0, s60"); a("s_mov_b32 s40, s10"); a("s_mov_b32 s41, s11")
    a("s_setprio 3")
    a("s_mov_b32 s58, 1")
    a("s_cmp_eq_u32 s61, 0"); a("s_cbranch_scc1 L_ld_kv")
    if diag == 3: a("s_memrealtime s[86:87]")
    a("L_tile:")
    a(f"s_waitcnt vmcnt({w0-1})")
    a(f"buffer_load_dwordx4 v24, s[36:39], s48 offen{wf} lds")
    a("s_add_u32 m0, m0, 1024"); a("s_add_u32 s48, s48, s56")
    a(f"s_waitcnt vmcnt({w0-1})")
    a(f"buffer_load_dwordx4 v25, s[36:39], s48 offen{wf} lds")
    a("s_add_u32 m0, m0, 1024"); a("s_add_u32 s48, s48, s56")
    a("s_sub_u32 s61, s61, 1")
    a(f"s_cmp_lg_u32 s61, {28 - min(w0, 24)//2}"); a("s_cbranch_scc1 L_tile_nb"); a("s_waitcnt lgkmcnt(0)"); a("s_barrier"); a("s_movk_i32 s58, 100"); a("L_tile_nb:")
    a("s_cmp_lg_u32 s61, 0"); a("s_cbranch_scc1 L_tile")
    a("L_ld_kv:")
    if diag == 3: a("s_memrealtime s[88:89]")
    a("s_mov_b32 s52, s54"); a("s_mov_b32 s50, 0"); a("s_mov_b32 s51, 0"); a(f"s_mov_b32 s63, {NS*SLOT}"); a("s_mov_b32 s53, 5")
    a(f"s_cmp_eq_u32 s35, 4"); a(f"s_cselect_b32 s46, {lvF}, {lv0}")
    a("s_sub_u32 s55, s35, 1"); a("s_cmp_lt_u32 s55, 3"); a(f"s_cselect_b32 s46, {lvH}, s46"); a("s_cmp_eq_u32 s7, 7"); a(f"s_cselect_b32 s46, {lv7}, s46")
    if lvlate: a("s_cmp_ge_u32 s4, 4"); a(f"s_cselect_b32 s55, {lvlate}, 0"); a("s_add_u32 s46, s46, s55")
    a("s_mov_b32 s47, 0"); a("v_mov_b32 v45, 0")
    NWO = -(-64 // wo_per) if womode == 'L' else wo_n1
    NQ = 64 - NWO * wo_per if womode == 'q' else 0
    assert wo_start >= 19 and wo_start + NWO <= 30 and wo_per % 2 == 0
    def item_check(c):
        a(f"L_check{c}:")
        a("s_waitcnt lgkmcnt(0)")
        a("v_min3_u32 v40, v40, v41, v42")
        a("v_min3_u32 v40, v40, v43, v44")
        a("s_sub_u32 s56, s50, s53")
        a("v_readfirstlane_b32 s55, v40")
        a("s_cmp_gt_u32 s55, s56")
        a(f"s_cbranch_scc0 L_slow{c}")
        a(f"L_chk_done{c}:")
        if endboost and c == "P": a(f"s_cmp_ge_u32 s50, {32-endboost}"); a(f"s_cbranch_scc1 L_go{c}b")
        if c == "P": a("L_chk_earlyP:")
        if dyn: a("v_readfirstlane_b32 s44, v45"); a("s_and_b32 s47, s47, 3"); a("s_add_i32 s44, s44, s46"); a("s_max_i32 s44, s44, 0"); a("s_add_u32 s47, s47, s44")
        else: a("s_and_b32 s47, s47, 3"); a("s_add_u32 s47, s47, s46")
        for k in range(NB - 1, 0, -1):
            a(f"s_cmp_ge_u32 s47, {4*k}"); a(f"s_cbranch_scc1 L_go{c}{k}")
    def item_body(c, w, nwo):
        a(f"L_go{c}:")
        if diag == 2:
            a("s_memrealtime s[70:71]"); a("s_waitcnt lgkmcnt(0)"); a("s_mov_b32 m0, s50"); a("v_writelane_b32 v60, s70, m0")
        if nwo:
            a("s_mov_b32 m0, s60")
            for k in range(nwo):
                a(f"s_waitcnt vmcnt({w-1})")
                a(f"buffer_load_dwordx4 v{24+(k&1)}, s[36:39], s48 offen{wof} lds")
                a("s_add_u32 m0, m0, 1024"); a(f"s_add_u32 s48, s48, {8*896}")
            a("s_mov_b32 s60, m0")
        nsig = max(0, w - 17 - nwo)
        for grp in range(4):
            if grp == 0: a("s_mov_b32 m0, s51")
            else:
                a("s_add_u32 m0, m0, 4096"); a("s_add_u32 s52, s52, 4096")
            if grp == 3:
                a(f"ds_read_b128 v[40:43], v10 offset:{C_CP}"); a(f"ds_read_b64 v[44:45], v10 offset:{C_FP}")
            for q in range(4):
                n = grp * 4 + q
                a(f"s_waitcnt vmcnt({w-1})")
                if n == nsig:
                    a("v_mov_b32 v46, s50"); a(f"ds_write_b32 v10, v46 offset:{C_FILL}")
                a(f"buffer_load_dwordx4 v{16+(n&7)}, s[40:43], s52 offen offset:{1024*q}{kvf} lds")
        a("s_add_u32 s52, s52, 4096")
        a(f"s_add_u32 s51, s51, {SLOT}"); a("s_cmp_eq_u32 s51, s63"); a("s_cselect_b32 s51, 0, s51")
        a("s_add_u32 s50, s50, 1")
    def slow(c):
        a(f"L_slow{c}:")
        budget()
        a(f"ds_read_b128 v[40:43], v10 offset:{C_CP}"); a(f"ds_read_b64 v[44:45], v10 offset:{C_FP}")
        a(f"s_branch L_check{c}")
    a("L_item:")
    a("s_cmp_lg_u32 s50, s58"); a("s_cbranch_scc1 L_nobar"); a("s_waitcnt lgkmcnt(0)"); a("s_barrier"); a("L_nobar:")
    if early_inline: a(f"s_cmp_lt_u32 s50, {early_inline}"); a("s_cbranch_scc1 L_goP")
    a("s_cmp_lt_u32 s50, 5"); a("s_cbranch_scc1 L_early5")
    item_check("P")
    item_body("P", win, 0)
    a("L_afterP:")
    a("s_cmp_eq_u32 s50, 16"); a("s_cbranch_scc1 L_tov")
    a(f"s_cmp_eq_u32 s50, {wo_start}"); a("s_cbranch_scc1 L_towo")
    a("L_item_next:")
    a("s_cmp_lt_u32 s50, 32"); a("s_cbranch_scc1 L_item")
    stamp(1)
    a("v_mov_b32 v46, 32"); a("v_mov_b32 v47, 33")
    a("s_waitcnt vmcnt(16)")
    a(f"ds_write_b32 v10, v46 offset:{C_FILL}")
    a("s_waitcnt vmcnt(0)")
    a(f"ds_write_b32 v10, v47 offset:{C_FILL}")
    stamp(3)
    stamp(2)
    if diag == 3:
        for k in range(6): a(f"v_writelane_b32 v247, s{84+k}, {8+k}")
    if diag:
        a("s_lshl_b32 s60, s2, 8"); a(f"s_add_u32 s60, s60, {W_DIAG + 0x80000}"); a("v_lshl_add_u32 v61, v0, 2, s60")
        a("global_store_dword v61, v60, s[30:31]")
    dump_stamps(4)
    a("s_endpgm")

    a("L_others:")
    a("s_load_dword s32, s[30:31], 0")
    a("s_cmp_ge_u32 s3, 4"); a("s_cbranch_scc1 L_nox")
    a("s_sub_u32 s50, s35, 1"); a("s_cmp_ge_u32 s50, 3"); a("s_cbranch_scc1 L_nox")
    a("s_mul_i32 s50, s3, 896")
    a("v_add_u32 v11, s50, v9")
    a("v_mov_b32 v4, 0"); a("v_mov_b32 v5, 0"); a("v_mov_b32 v6, 0"); a("v_mov_b32 v7, 0")
    a("s_mov_b32 exec_hi, 0x00ffffff")
    a("global_load_dwordx4 v[4:7], v11, s[8:9]")
    a("s_mov_b32 exec_hi, -1")
    a("L_nox:")
    a("s_sub_u32 s50, s35, 1"); a("s_cmp_ge_u32 s50, 3"); a("s_cselect_b32 s51, 1, 0"); a("s_cselect_b32 s52, 4, 1")
    a("v_mov_b32 v12, s52"); a("v_mad_u32_u24 v12, v0, s51, v12")
    a("v_cmp_gt_u32 vcc, 4, v0")
    a("s_cmp_eq_u32 s35, 4"); a(f"s_cselect_b32 s50, 3, {BIG}")
    a("v_cndmask_b32 v12, 0, v12, vcc")
    a("v_mov_b32 v13, s50")
    a("v_cmp_eq_u32 vcc, 4, v0")
    a("v_lshl_add_u32 v14, v0, 2, v10")
    a("v_cndmask_b32 v12, v12, v13, vcc")
    a("ds_write_b32 v14, v12")
    a("s_waitcnt lgkmcnt(0)")
    a("s_mul_i32 s33, s32, 0x9E3779B1"); a("s_add_u32 s33, s33, 0x7F4A7C15")
    a("s_barrier")
    a("s_cmp_lt_u32 s3, 4"); a("s_cbranch_scc1 L_C")
    a("s_cmp_eq_u32 s3, 5"); a("s_cbranch_scc1 L_Q")
    a("s_cmp_eq_u32 s3, 6"); a("s_cbranch_scc1 L_F")
    a("s_branch L_R")

    slow("P")
    a("L_early5:")
    a("s_waitcnt lgkmcnt(0)"); a("s_branch L_chk_earlyP")
    a("L_tov:")
    a("s_mov_b32 s40, s12"); a("s_mov_b32 s41, s13"); a("s_mov_b32 s52, s54")
    a("s_mov_b32 s51, 0"); a(f"s_mov_b32 s63, {5*SLOT}"); a("s_mov_b32 s53, 1")
    a("v_lshlrev_b32 v15, 1, v28"); a("v_xor_b32 v15, v15, v29")
    for p in range(8):
        f = 4 * (p & 1) + 8 * ((p >> 2) & 1)
        a(f"v_xor_b32 v{16+p}, {f}, v15")
        a(f"v_lshl_add_u32 v{16+p}, v{16+p}, 4, v30")
    a("s_mov_b32 s36, s16"); a("s_mov_b32 s37, s17"); a("s_mov_b32 s38, 3670016")
    a(f"s_mul_i32 s48, s4, {512*896}"); a("s_lshl_b32 s55, s7, 7"); a("s_add_u32 s48, s48, s55")
    a("s_movk_i32 s57, 896"); a(f"s_mov_b32 s60, {WOB}")
    a("v_mad_u32_u24 v24, v2, s57, v3"); a("v_xor_b32 v25, 64, v3"); a("v_mad_u32_u24 v25, v2, s57, v25")
    a("s_branch L_item")
    a("L_towo:")
    a("s_cmp_eq_u32 s7, 7"); a("s_cbranch_scc1 L_item")
    if nowo or NWO == 0: a("s_branch L_item")
    a("L_itemW:")
    item_check("W")
    item_body("W", win + wdelta, wo_per)
    a("L_afterW:")
    a(f"s_cmp_lt_u32 s50, {wo_start + NWO}"); a("s_cbranch_scc1 L_itemW")
    a("s_branch L_item_next")
    slow("W")
    if endboost: item_body("Pb", wboost, 0); a("s_branch L_afterP")
    for k in range(1, NB):
        item_body(f"P{k}", win + k, 0); a("s_branch L_afterP")
        item_body(f"W{k}", win + wdelta + k, wo_per); a("s_branch L_afterW")

    def tile_tr_addr(dst, tau_sgpr_or_const, base):
        a("v_lshrrev_b32 v16, 2, v14"); a("v_lshl_add_u32 v16, v15, 3, v16"); a("v_lshlrev_b32 v16, 7, v16")
        a("v_and_b32 v17, 1, v14"); a("v_lshl_add_u32 v16, v17, 3, v16")
        a("v_and_b32 v17, 1, v15"); a("v_lshrrev_b32 v18, 3, v14"); a("v_lshl_add_u32 v17, v17, 1, v18"); a("v_lshlrev_b32 v17, 1, v17")
        a("v_bfe_u32 v18, v14, 1, 1"); a("v_xor_b32 v17, v17, v18")
        if tau_sgpr_or_const is not None:
            a(f"s_lshl_b32 s50, {tau_sgpr_or_const}, 1"); a("v_xor_b32 v17, s50, v17")
        a(f"v_lshl_add_u32 {dst}, v17, 4, v16")
        if base: a(f"v_add_u32 {dst}, {base}, {dst}")
    a("L_C:")
    a("v_and_b32 v14, 15, v0")
    a("v_lshrrev_b32 v15, 4, v0")
    a("s_lshl_b32 s50, s3, 2"); a("v_add_u32 v12, s50, v10")
    a("v_mov_b32 v13, 1")
    a("v_mov_b32 v81, s33"); a("v_mov_b32 v83, s33")
    a("s_sub_u32 s50, s35, 1"); a("s_cmp_ge_u32 s50, 3"); a("s_cbranch_scc1 L_C_noproj")
    tile_tr_addr("v38", "s3", BIGW)
    a("v_and_b32 v17, 3, v14"); a("s_movk_i32 s50, 896"); a("v_mul_u32_u24 v16, s50, v17"); a("v_lshl_add_u32 v39, v15, 4, v16"); a(f"v_add_u32 v39, {XN}, v39")
    if gufull:
        a("s_lshl_b32 s50, s49, 4"); a("s_lshl_b32 s52, s3, 2"); a("s_add_u32 s50, s50, s52"); a(f"s_add_u32 s50, s50, {W_QG//16}")
        a("s_lshr_b32 s51, s49, 1"); a("s_lshl_b32 s51, s51, 1"); a("s_add_u32 s51, s51, s35"); a("s_sub_u32 s51, s51, 2"); a("s_lshl_b32 s51, s51, 3")
        a("s_and_b32 s52, s49, 1"); a("s_lshl_b32 s52, s52, 2"); a("s_add_u32 s51, s51, s52"); a("s_add_u32 s51, s51, s3"); a("s_lshl_b32 s51, s51, 4"); a(f"s_add_u32 s51, s51, {W_GU//16}")
        a("s_cmp_eq_u32 s35, 1"); a("s_cselect_b32 s50, s50, s51"); a("s_cselect_b32 s51, 1024, 4")
    else:
        a("s_lshl_b32 s50, s49, 4")
        a("s_lshr_b32 s51, s49, 1"); a("s_lshl_b32 s51, s51, 1"); a("s_add_u32 s51, s51, s35"); a("s_sub_u32 s51, s51, 2"); a("s_lshl_b32 s51, s51, 7")
        a("s_and_b32 s52, s49, 1"); a("s_lshl_b32 s52, s52, 4"); a("s_add_u32 s51, s51, s52"); a(f"s_add_u32 s51, s51, {W_GU//16}")
        a(f"s_add_u32 s50, s50, {W_QG//16}")
        a("s_cmp_eq_u32 s35, 1"); a("s_cselect_b32 s50, s50, s51"); a("s_cselect_b32 s51, 1024, 32")
        a("s_lshl_b32 s52, s3, 2"); a("s_add_u32 s50, s50, s52")
    a("v_mad_u32_u24 v16, v14, s51, v15"); a("v_add_u32 v16, s50, v16"); a("v_lshlrev_b32 v37, 4, v16")
    if warm & 1:
        a("s_mov_b32 exec_lo, 0x0000000f"); a("s_mov_b32 exec_hi, 0")
        a(f"global_load_dword v245, v37, s[30:31] {warmfl}"); a("s_mov_b64 exec, -1")
        a("s_waitcnt vmcnt(1)")
    else:
        a("s_waitcnt vmcnt(0)")
    stamp(1)
    for i in range(4):
        a(f"v_lshlrev_b32 v{16+2*i}, 16, v{4+i}"); a(f"v_and_b32 v{17+2*i}, 0xffff0000, v{4+i}")
    a("v_add_f32 v24, v16, v17"); a("v_add_f32 v25, v18, v19"); a("v_add_f32 v26, v20, v21"); a("v_add_f32 v27, v22, v23")
    a("v_add_f32 v24, v24, v25"); a("v_add_f32 v26, v26, v27"); a("v_add_f32 v24, v24, v26")
    red16("v_add_f32", "v24"); swapred("v_add_f32", "v24", "v25", 16); swapred("v_add_f32", "v24", "v25", 32)
    a(f"v_mul_f32 v24, {hex(f2u(1.0/448))}, v24")
    a("v_mov_b32 v26, 0")
    a("s_mov_b32 exec_hi, 0x00ffffff")
    for i in range(8): a(f"v_sub_f32 v{28+i}, v{16+i}, v24")
    for i in range(8): a(f"v_fmac_f32 v26, v{28+i}, v{28+i}")
    a("s_mov_b32 exec_hi, -1")
    rbf("v25", "v24")
    red16("v_add_f32", "v26"); swapred("v_add_f32", "v26", "v27", 16); swapred("v_add_f32", "v26", "v27", 32)
    a(f"v_mul_f32 v26, {hex(f2u(1.0/448))}, v26")
    rbf("v26", "v26")
    a(f"v_add_f32 v26, {hex(f2u(1e-5))}, v26")
    rbf("v26", "v26")
    a("v_sqrt_f32 v26, v26")
    for i in range(8): a(f"v_sub_f32 v{28+i}, v{16+i}, v25")
    rbf("v26", "v26")
    a("v_rcp_f32 v26, v26")
    for i in range(4): a(f"v_cvt_pk_bf16_f32 v{16+i}, v{28+2*i}, v{29+2*i}")
    for i in range(4):
        a(f"v_lshlrev_b32 v{28+2*i}, 16, v{16+i}"); a(f"v_and_b32 v{29+2*i}, 0xffff0000, v{16+i}")
    for i in range(8): a(f"v_mul_f32 v{28+i}, v{28+i}, v26")
    for i in range(4): a(f"v_cvt_pk_bf16_f32 v{16+i}, v{28+2*i}, v{29+2*i}")
    a(f"v_add_u32 v11, {XN}, v11")
    a("s_mov_b32 exec_hi, 0x00ffffff")
    a("ds_write_b128 v11, v[16:19]")
    a("s_mov_b32 exec_hi, -1")
    a(f"ds_write_b32 v12, v13 offset:{C_XNF}")
    spin_all4(40, "v10", C_XNF, sleep=0)
    for s in range(14): a(f"ds_read_b128 v[{84+4*s}:{87+4*s}], v39 offset:{64*s}")
    stamp(2)
    spin_ge("v16", "v10", C_FILL, 1, sleep=0)
    for s in range(14):
        a(f"ds_read_b64_tr_b16 v[{140+4*s}:{141+4*s}], v38 offset:{4096*s}")
        a(f"ds_read_b64_tr_b16 v[{142+4*s}:{143+4*s}], v38 offset:{4096*s+512}")
    for s in range(14):
        n = 26 - 2 * s
        if n <= 15 and (s % 2 == 0 or s == 13): a(f"s_waitcnt lgkmcnt({max(0, n-2) if s != 13 else 0})")
        elif s == 0: a("s_waitcnt lgkmcnt(14)")
        c = "0" if s == 0 else "v[48:51]"
        a(f"v_mfma_f32_16x16x32_bf16 v[48:51], v[{140+4*s}:{143+4*s}], v[{84+4*s}:{87+4*s}], {c}")
    a("s_add_u32 s50, s3, 4"); a("v_mov_b32 v16, s50"); a(f"ds_write_b32 v12, v16 offset:{C_CP}")
    a("s_mov_b32 s50, 0x000f000f")
    a("v_cvt_pk_bf16_f32 v80, v48, v49"); a("v_cvt_pk_bf16_f32 v82, v50, v51")
    a("s_mov_b32 exec_lo, s50"); a("s_mov_b32 exec_hi, s50")
    if qlocal:
        a("s_cmp_eq_u32 s35, 1"); a("s_cbranch_scc1 L_pub_q")
    a(f"global_store_dwordx4 v37, v[80:83], s[30:31] {gufl}")
    if qlocal:
        a("s_branch L_pub_done"); a("L_pub_q:"); a("global_store_dwordx4 v37, v[80:83], s[30:31]"); a("L_pub_done:")
    a("s_mov_b64 exec, -1")
    a("L_C_noproj:")
    stamp(3)
    a("v_xor_b32 v16, v15, v14")
    a("v_lshlrev_b32 v17, 9, v14")
    for s in range(4):
        if s: a(f"v_xor_b32 v{20+s}, {4*s}, v16")
        else: a("v_mov_b32 v20, v16")
        a(f"v_lshl_add_u32 v{20+s}, v{20+s}, 4, v17")
    a("v_lshrrev_b32 v16, 2, v14")
    a("v_lshl_add_u32 v17, v15, 3, v16")
    a("v_lshlrev_b32 v17, 9, v17")
    a("v_and_b32 v18, 1, v14"); a("v_lshl_add_u32 v17, v18, 3, v17")
    a("v_and_b32 v18, 1, v15"); a("v_lshl_add_u32 v18, v18, 2, v16"); a("v_lshlrev_b32 v18, 1, v18")
    a("v_bfe_u32 v19, v14, 1, 1")
    a("s_lshl_b32 s50, s3, 3"); a("v_add_u32 v19, s50, v19")
    a("v_xor_b32 v18, v18, v19")
    for tt in range(4):
        if tt: a(f"v_xor_b32 v{24+tt}, {2*tt}, v18")
        else: a("v_mov_b32 v24, v18")
        a(f"v_lshl_add_u32 v{24+tt}, v{24+tt}, 4, v17")
    a("v_and_b32 v16, 1, v0")
    a("v_lshlrev_b32 v17, 4, v15")
    a("v_lshl_add_u32 v28, v16, 9, v17"); a(f"v_add_u32 v28, {QI}, v28")
    a("v_lshl_add_u32 v29, v16, 10, v17"); a(f"v_add_u32 v29, {PB}, v29")
    a("v_lshrrev_b32 v16, 5, v0"); a("v_and_b32 v17, 31, v0"); a("s_lshl_b32 s50, s3, 5"); a("v_add_u32 v17, s50, v17")
    a("v_lshlrev_b32 v17, 1, v17"); a("v_lshl_add_u32 v30, v16, 10, v17"); a(f"v_add_u32 v30, {PB}, v30")
    a("v_lshl_add_u32 v31, v16, 4, v10")
    a("v_lshl_add_u32 v33, v16, 2, v10")
    a("s_lshl_b32 s50, s3, 2"); a("v_add_u32 v32, s50, v31")
    tile_tr_addr("v34", "s3", WOB)
    a("s_mov_b32 s44, 0xffff0000"); a("s_mov_b32 s45, 0xffff0000")
    a("s_mov_b32 s46, 0"); a("s_mov_b32 s47, -1")
    a("s_lshl_b32 s50, s6, 3"); a("s_add_u32 s50, s50, s4"); a("s_lshl_b32 s50, s50, 15"); a("s_lshl_b32 s51, s3, 10"); a("s_add_u32 s50, s50, s51"); a(f"s_add_u32 s50, s50, {W_H1}")
    a("v_add_u32 v16, s50, v9")
    a("s_lshl_b32 s51, s7, 12"); a("v_add_u32 v35, s51, v16")
    for i in range(1, 8):
        a(f"s_add_u32 s51, s7, {i}"); a("s_and_b32 s51, s51, 7"); a("s_lshl_b32 s51, s51, 12"); a(f"v_add_u32 v{247+i}, s51, v16")
    a("v_lshrrev_b32 v16, 5, v0"); a("v_lshlrev_b32 v16, 8, v16"); a("v_and_b32 v17, 1, v15"); a("v_lshl_add_u32 v16, v17, 5, v16"); a("v_add_u32 v16, v16, v14")
    a("s_lshl_b32 s50, s3, 6"); a("v_add_u32 v16, s50, v16"); a("v_lshlrev_b32 v16, 1, v16"); a(f"v_add_u32 v38, {OI}, v16")
    a("v_lshlrev_b32 v36, 4, v15"); a(f"v_add_u32 v36, {OI}, v36")
    a("s_mul_i32 s50, s6, 28"); a("s_lshl_b32 s51, s7, 2"); a("s_add_u32 s50, s50, s51"); a("s_add_u32 s50, s50, s3"); a("s_lshl_b32 s50, s50, 3"); a("s_add_u32 s50, s50, s4")
    a("s_lshl_b32 s50, s50, 7"); a(f"s_add_u32 s50, s50, {W_H2}"); a("v_add_u32 v37, s50, v9")
    if warm & 8:
        a("s_mov_b64 exec, 1"); a(f"global_load_dword v245, v37, s[30:31] {warmfl}"); a("s_mov_b64 exec, -1")
    a("s_mov_b32 s44, 0xffff0000"); a("s_mov_b32 s45, 0xffff0000")
    a("s_mov_b32 s46, 0"); a("s_mov_b32 s47, -1")
    spin_ge("v16", "v10", C_QRDY, 1)
    stamp(4)
    for s in range(8): a(f"ds_read_b128 v[{64+4*s if s < 4 else 84+4*(s-4)}:{(64+4*s if s < 4 else 84+4*(s-4))+3}], v28 offset:{64*s}")
    qreg = lambda s: 64 + 4 * s if s < 4 else 84 + 4 * (s - 4)
    a("s_mov_b32 s50, s3")
    a("L_kitem:")
    a("s_add_u32 s51, s50, 2")
    a("s_sub_u32 s52, s50, 9"); a("s_cmp_ge_u32 s50, 9"); a("s_cselect_b32 s52, s52, s50")
    a("s_lshl_b32 s52, s52, 14")
    for s in range(4): a(f"v_add_u32 v{40+s}, s52, v{20+s}")
    spin_ge("v16", "v10", C_FILL, "s51")
    for s in range(8):
        for tl in range(2):
            a(f"ds_read_b128 v[{100+8*s+4*tl}:{103+8*s+4*tl}], v{40+(s&3)} offset:{(s>>2)*256 + tl*8192}")
    a("s_add_u32 s51, s50, 4"); a("s_min_u32 s51, s51, 16"); a("s_add_u32 s51, s51, 4")
    a("v_mov_b32 v16, s51")
    a(f"ds_write_b32 v12, v16 offset:{C_CP}")
    a("v_mov_b32 v63, v62"); a("v_mov_b32 v62, v61"); a("v_mov_b32 v61, v60")
    for s in range(8):
        if s % 2 == 0: a(f"s_waitcnt lgkmcnt({13 - 2*s})")
        for tl in range(2):
            c = "0" if s == 0 else f"v[{48+4*tl}:{51+4*tl}]"
            a(f"v_mfma_f32_16x16x32_bf16 v[{48+4*tl}:{51+4*tl}], v[{qreg(s)}:{qreg(s)+3}], v[{100+8*s+4*tl}:{103+8*s+4*tl}], {c}")
    a("v_cndmask_b32 v16, v48, v52, s[44:45]"); a("v_cndmask_b32 v17, v49, v53, s[44:45]"); a("v_cndmask_b32 v16, v16, v17, s[46:47]")
    rbf("v60", "v16")
    a("s_add_u32 s50, s50, 4"); a("s_cmp_lt_u32 s50, 16"); a("s_cbranch_scc1 L_kitem")
    stamp(5)
    a("v_max_f32 v16, v60, v61"); a("v_max3_f32 v16, v16, v62, v63")
    red16("v_max_f32", "v16"); swapred("v_max_f32", "v16", "v17", 16)
    a(f"ds_write_b32 v32, v16 offset:{C_MX}")
    a(f"ds_write_b32 v12, v13 offset:{C_MXF}")
    spin_all4(40, "v10", C_MXF, sleep=0)
    a(f"ds_read_b128 v[40:43], v31 offset:{C_MX}")
    a("s_waitcnt lgkmcnt(0)")
    a("v_max_f32 v16, v40, v41"); a("v_max3_f32 v16, v16, v42, v43")
    a(f"s_mov_b32 s50, {hex(f2u(CEXP))}")
    for i in range(4): a(f"v_sub_f32 v{60+i}, v{60+i}, v16")
    for i in range(4): a(f"v_mul_f32 v{60+i}, s50, v{60+i}")
    for i in range(4): a(f"v_exp_f32 v{60+i}, v{60+i}")
    a("v_add_f32 v17, v60, v61"); a("v_add_f32 v18, v62, v63"); a("v_add_f32 v17, v17, v18")
    a("v_cvt_pk_bf16_f32 v40, v63, v62"); a("v_cvt_pk_bf16_f32 v41, v61, v60")
    a("ds_write_b16 v30, v40 offset:0"); a("ds_write_b16_d16_hi v30, v40 offset:256")
    a("ds_write_b16 v30, v41 offset:512"); a("ds_write_b16_d16_hi v30, v41 offset:768")
    red16("v_add_f32", "v17"); swapred("v_add_f32", "v17", "v18", 16)
    a(f"ds_write_b32 v32, v17 offset:{C_LS}")
    a(f"ds_write_b32 v12, v13 offset:{C_PF}")
    for i in range(16): a(f"v_mov_b32 v{64+i}, 0")
    if prestore:
        a("s_not_b32 s50, s33")
        for i in range(4): a(f"v_mov_b32 v{84+i}, s50")
        a("global_store_dwordx4 v35, v[84:87], s[30:31]")
    spin_all4(40, "v10", C_PF, sleep=0)
    stamp(6)
    a("s_mov_b32 s50, 0")
    a("s_mov_b32 s52, 0")
    a("L_vitem:")
    a("ds_read_b128 v[44:47], v29")
    a("v_add_u32 v29, 64, v29")
    for tt in range(4): a(f"v_add_u32 v{40+tt}, s52, v{24+tt}")
    a("s_add_u32 s51, s50, 18")
    spin_ge("v16", "v10", C_FILL, "s51", sleep=kvsleep)
    for tt in range(4):
        a(f"ds_read_b64_tr_b16 v[{96+4*tt}:{97+4*tt}], v{40+tt}")
        a(f"ds_read_b64_tr_b16 v[{98+4*tt}:{99+4*tt}], v{40+tt} offset:2048")
    a("s_add_u32 s51, s50, 21"); a("v_mov_b32 v16, s51")
    a(f"ds_write_b32 v12, v16 offset:{C_CP}")
    a(f"s_add_u32 s52, s52, {SLOT}"); a(f"s_cmp_eq_u32 s52, {5*SLOT}"); a("s_cselect_b32 s52, 0, s52")
    for tt in range(4):
        a(f"s_waitcnt lgkmcnt({7-2*tt})")
        a(f"v_mfma_f32_16x16x32_bf16 v[{64+4*tt}:{67+4*tt}], v[44:47], v[{96+4*tt}:{99+4*tt}], v[{64+4*tt}:{67+4*tt}]")
    a("s_add_u32 s50, s50, 1"); a("s_cmp_lt_u32 s50, 14"); a("s_cbranch_scc1 L_vitem")
    a("s_cmp_eq_u32 s50, 16"); a("s_cbranch_scc1 L_vdone")
    H1L = [(120 + 4 * i, f"v{248+i}", 0) for i in range(7)]
    a("s_cmp_eq_u32 s50, 15"); a("s_cbranch_scc1 L_first")
    spin_ge("v16", "v10", C_FACF, 1, sleep=0)
    a(f"ds_read_b32 v39, v33 offset:{C_FAC}"); a(f"ds_read_b32 v16, v10 offset:{C_LOC}")
    for s in range(16):
        r = 150 + 4 * s
        a(f"ds_read_b64_tr_b16 v[{r}:{r+1}], v34 offset:{4096*s}")
        a(f"ds_read_b64_tr_b16 v[{r+2}:{r+3}], v34 offset:{4096*s+512}")
    a("s_waitcnt lgkmcnt(0)"); a("v_readfirstlane_b32 s57, v16")
    a("s_branch L_vitem")
    a("L_first:")
    a("s_cmp_eq_u32 s7, 7"); a("s_cbranch_scc1 L_vitem")
    if not notail:
        for (d, va, off) in H1L: a(f"global_load_dwordx4 v[{d}:{d+3}], {va}, s[30:31] sc1")
    a("s_branch L_vitem")
    a("L_vdone:")
    a("s_nop 2")
    stamp(7)
    if notail: dump_stamps(11); a("s_endpgm")
    a("v_cndmask_b32 v16, v64, v72, s[44:45]"); a("v_cndmask_b32 v17, v65, v73, s[44:45]")
    a("v_cndmask_b32 v18, v68, v76, s[44:45]"); a("v_cndmask_b32 v19, v69, v77, s[44:45]")
    a("v_cndmask_b32 v16, v16, v17, s[46:47]"); a("v_cndmask_b32 v18, v18, v19, s[46:47]")
    a("s_cmp_eq_u32 s57, 1")
    a("v_mul_f32 v80, v16, v39"); a("v_mul_f32 v82, v18, v39")
    a("s_cbranch_scc0 L_st_far")
    a("global_store_dwordx4 v35, v[80:83], s[30:31]")
    a("L_st_done:")
    stamp(8)
    a("s_cmp_eq_u32 s7, 7"); a("s_cbranch_scc1 L_red")
    if h1mode == 'bf':
        a("s_waitcnt vmcnt(1)")
        a("L_h1_chk:")
        for i, (d, va, off) in enumerate(H1L): a(f"v_cmp_ne_u32 s[{68+2*i}:{69+2*i}], s33, v{d+3}")
        a("v_xor_b32 v96, s33, v121"); a("v_xor_b32 v97, s33, v125")
        a("s_or_b64 vcc, s[68:69], s[70:71]"); a("s_or_b64 s[82:83], s[72:73], s[74:75]"); a("s_or_b64 s[84:85], s[76:77], s[78:79]")
        a("v_bitop3_b32 v96, v129, s33, v96 bitop3:0xbe"); a("v_bitop3_b32 v97, v133, s33, v97 bitop3:0xbe")
        a("s_or_b64 vcc, vcc, s[80:81]"); a("s_or_b64 s[82:83], s[82:83], s[84:85]"); a("s_or_b64 vcc, vcc, s[82:83]")
        a("s_cbranch_scc1 L_h1_more")
        a("L_h1_ver:")
        a("v_bitop3_b32 v96, v137, s33, v96 bitop3:0xbe"); a("v_bitop3_b32 v97, v141, s33, v97 bitop3:0xbe")
        a("v_bitop3_b32 v96, v145, s33, v96 bitop3:0xbe"); a("v_or_b32 v96, v96, v97"); a("v_cmp_ne_u32 vcc, 0, v96")
        a("s_cbranch_vccnz L_h1_all")
    else:
        a("s_movk_i32 s56, 0x7f")
        a("s_waitcnt vmcnt(1)")
        a("L_h1_scan:")
        for i, (d, va, off) in enumerate(H1L):
            a(f"s_bitcmp1_b32 s56, {i}"); a(f"s_cbranch_scc0 L_h1_n{i}")
            a(f"v_xor_b32 v96, s33, v{d+1}"); a(f"v_bitop3_b32 v96, v{d+3}, s33, v96 bitop3:0xbe"); a("v_cmp_ne_u32 vcc, 0, v96")
            a(f"s_cbranch_vccnz L_h1_n{i}")
            a(f"s_bitset0_b32 s56, {i}")
            a(f"L_h1_n{i}:")
        a("s_cmp_lg_u32 s56, 0"); a("s_cbranch_scc1 L_h1_more")
    a("L_h1_done:")
    stamp(9)
    a("v_add_f32 v56, v80, v120"); a("v_add_f32 v57, v82, v122")
    a("v_add_f32 v124, v124, v128"); a("v_add_f32 v126, v126, v130")
    a("v_add_f32 v132, v132, v136"); a("v_add_f32 v134, v134, v138")
    a("v_add_f32 v140, v140, v144"); a("v_add_f32 v142, v142, v146")
    a("v_add_f32 v56, v56, v124"); a("v_add_f32 v57, v57, v126")
    a("v_add_f32 v132, v132, v140"); a("v_add_f32 v134, v134, v142")
    a("v_add_f32 v56, v56, v132"); a("v_add_f32 v57, v57, v134")
    a("v_cvt_pk_bf16_f32 v16, v56, v57")
    a("ds_write_b16 v38, v16"); a("ds_write_b16_d16_hi v38, v16 offset:32")
    a(f"ds_write_b32 v12, v13 offset:{C_OF}")
    spin_all4(40, "v10", C_OF, sleep=0)
    for s in range(16): a(f"ds_read_b128 v[{84+4*s if s < 16 else 0}:{87+4*s}], v36 offset:{64*s}")
    for s in range(16):
        if s % 4 == 0: a(f"s_waitcnt lgkmcnt({12 - s})")
        acc = 48 + 4 * (s & 1)
        c = "0" if s < 2 else f"v[{acc}:{acc+3}]"
        a(f"v_mfma_f32_16x16x32_bf16 v[{acc}:{acc+3}], v[{84+4*s}:{87+4*s}], v[{150+4*s}:{153+4*s}], {c}")
    a("v_add_f32 v80, v48, v52")
    a(f"v_mov_b32_dpp v82, v80 row_ror:8 {DPPF}")
    a("s_mov_b64 exec, 0xff")
    a("global_store_dwordx4 v37, v[80:83], s[30:31] sc1")
    a("L_c_exit:")
    stamp(10)
    dump_stamps(11)
    a("s_endpgm")
    if h1mode == 'bf':
        a("L_h1_all:")
        for i in range(7): a(f"s_mov_b64 s[{68+2*i}:{69+2*i}], -1")
        a("L_h1_more:")
        a("s_mov_b32 s56, 0")
        for i in range(7):
            a(f"s_cmp_lg_u64 s[{68+2*i}:{69+2*i}], 0"); a("s_addc_u32 s56, s56, s56")
        a("s_sub_u32 s55, s56, 1"); a("s_and_b32 s55, s55, s56"); a("s_cbranch_scc0 L_h1_one")
        for i, (d, va, off) in enumerate(H1L):
            a(f"s_mov_b64 exec, s[{68+2*i}:{69+2*i}]")
            a(f"global_load_dwordx4 v[{d}:{d+3}], {va}, s[30:31] sc1")
        a("s_mov_b64 exec, -1")
        budget()
        a("s_waitcnt vmcnt(0)")
        a("s_branch L_h1_chk")
        a("L_h1_one:")
        for i in range(6):
            a(f"s_bitcmp1_b32 s56, {6-i}"); a(f"s_cbranch_scc1 L_h1_t{i}")
        for i in (6, 0, 1, 2, 3, 4, 5):
            d, va, off = H1L[i]
            a(f"L_h1_t{i}:")
            a(f"global_load_dwordx4 v[{d}:{d+3}], {va}, s[30:31] sc1")
            budget()
            a("s_waitcnt vmcnt(0)")
            a(f"v_cmp_ne_u32 vcc, s33, v{d+3}")
            a("v_xor_b32 v96, s33, v121"); a("v_xor_b32 v97, s33, v125")
            a(f"s_cbranch_vccnz L_h1_t{i}")
            a("v_bitop3_b32 v96, v129, s33, v96 bitop3:0xbe"); a("v_bitop3_b32 v97, v133, s33, v97 bitop3:0xbe")
            a("s_branch L_h1_ver")
    else:
        a("L_h1_more:")
        a("s_sub_u32 s55, s56, 1"); a("s_and_b32 s55, s55, s56"); a("s_cbranch_scc0 L_h1_one")
        for i, (d, va, off) in enumerate(H1L):
            a(f"s_bitcmp1_b32 s56, {i}"); a(f"s_cbranch_scc0 L_h1_s{i}")
            a(f"global_load_dwordx4 v[{d}:{d+3}], {va}, s[30:31] sc1")
            a(f"L_h1_s{i}:")
        budget()
        a("s_waitcnt vmcnt(0)")
        a("s_branch L_h1_scan")
        a("L_h1_one:")
        for i in range(6):
            a(f"s_bitcmp1_b32 s56, {i}"); a(f"s_cbranch_scc1 L_h1_t{i}")
        for i in (6, 0, 1, 2, 3, 4, 5):
            d, va, off = H1L[i]
            a(f"L_h1_t{i}:")
            a(f"global_load_dwordx4 v[{d}:{d+3}], {va}, s[30:31] sc1")
            budget()
            a("s_waitcnt vmcnt(0)")
            a(f"v_xor_b32 v96, s33, v{d+1}"); a(f"v_bitop3_b32 v96, v{d+3}, s33, v96 bitop3:0xbe"); a("v_cmp_ne_u32 vcc, 0, v96")
            a(f"s_cbranch_vccnz L_h1_t{i}")
            a("s_branch L_h1_done")
    a("L_st_far:")
    a("global_store_dwordx4 v35, v[80:83], s[30:31] sc1")
    a("s_branch L_st_done")

    nq = [0]
    def needq():
        nq[0] += 1; k = nq[0]
        a("s_cmp_eq_u32 s58, 1"); a(f"s_cbranch_scc0 L_nq_skip{k}")
        a(f"L_nq{k}:")
        a("global_load_dwordx4 v[56:59], v30, s[30:31] sc1")
        budget()
        a("s_waitcnt vmcnt(0)")
        tagcheck(["v57", "v59"], "v18", "v19", f"L_nq{k}")
        a("global_store_dwordx4 v30, v[56:59], s[30:31] sc1")
        a("s_mov_b32 s58, 0")
        a(f"L_nq_skip{k}:")
    a("L_Q:")
    a("v_and_b32 v14, 15, v0"); a("v_lshrrev_b32 v15, 4, v0")
    a("s_lshl_b32 s50, s6, 10"); a("s_lshl_b32 s51, s4, 7"); a("s_add_u32 s50, s50, s51"); a("s_lshl_b32 s50, s50, 4"); a(f"s_add_u32 s50, s50, {W_QG}")
    a("v_add_u32 v25, s50, v9")
    a("v_lshlrev_b32 v26, 3, v0"); a(f"v_add_u32 v26, {QI}, v26")
    a("v_mov_b32 v43, s33")
    a("s_lshl_b32 s50, s49, 8"); a(f"s_add_u32 s50, s50, {W_QG}"); a("v_lshlrev_b32 v16, 14, v15"); a("v_lshl_add_u32 v16, v14, 4, v16"); a("v_add_u32 v30, s50, v16")
    a("s_cmp_eq_u32 s35, 1"); a(f"s_cselect_b32 s58, {1 if qlocal else 0}, 0")
    a(f"s_mov_b32 s55, {q_rounds}")
    if probe:
        a("s_cmp_lg_u32 s5, 0"); a("s_cbranch_scc1 L_nopr"); a("s_lshl_b32 s50, s4, 2"); a("v_mov_b32 v16, s50"); a("v_mov_b32 v17, s44")
        a("s_mov_b64 exec, 1"); a("global_store_dword v16, v17, s[28:29]"); a("s_mov_b64 exec, -1"); a("L_nopr:")
    if dyn:
        a("v_and_b32 v16, 7, v0"); a("v_lshlrev_b32 v16, 7, v16"); a(f"v_add_u32 v31, {W_GT}, v16")
        a("s_cmp_lg_u32 s5, 0"); a("s_cbranch_scc1 L_nogt")
        a("s_lshl_b32 s50, s4, 7"); a(f"s_add_u32 s50, s50, {W_GT}"); a("v_mov_b32 v16, s50"); a("v_mov_b32 v32, s44"); a("v_mov_b32 v33, s33")
        a("s_mov_b64 exec, 1"); a("global_store_dwordx2 v16, v[32:33], s[30:31] sc1"); a("s_mov_b64 exec, -1")
        a("L_nogt:")
    spin_ge("v16", "v10", C_FILL, qpoll_fill, sleep=1)
    stamp(1)
    if dyn: a("global_load_dwordx2 v[34:35], v31, s[30:31] sc1")
    def qhook():
        a("s_sub_u32 s55, s55, 1"); a("s_cbranch_scc0 L_q_nohook"); needq(); a("L_q_nohook:")
    mpoll([(48, "v25", 0), (52, "v25", 1024)], "q", 16, sleep=qsleep, hook=qhook)
    a("ds_write2_b32 v26, v48, v50 offset0:0 offset1:1")
    a("ds_write2_b32 v26, v52, v54 offset0:128 offset1:129")
    a("v_mov_b32 v16, 1"); a(f"ds_write_b32 v10, v16 offset:{C_QRDY}")
    stamp(2)
    if dyn:
        a("v_sub_u32 v34, s44, v34"); a("v_cmp_eq_u32 vcc, s33, v35"); a("v_cndmask_b32 v34, 0, v34, vcc"); a("v_max_i32 v34, 0, v34")
        for m in ("quad_perm:[1,0,3,2]", "quad_perm:[2,3,0,1]", "row_half_mirror"): a(f"v_max_i32_dpp v34, v34, v34 {m} {DPPF}")
        a("v_min_u32 v34, 200, v34"); a(f"v_mul_u32_u24 v34, {dynmul}, v34"); a("v_add_u32 v34, 512, v34"); a("v_lshrrev_b32 v34, 10, v34")
        a(f"ds_write_b32 v10, v34 offset:{C_FP+4}"); a("v_mov_b32 v36, v34")
    a("v_and_b32 v17, 1, v0"); a("v_lshlrev_b32 v16, 4, v17")
    a("v_add_u32 v18, s6, v15"); a("v_and_b32 v18, 3, v18"); a("v_lshlrev_b32 v18, 13, v18")
    a("v_lshrrev_b32 v19, 1, v14"); a("v_lshl_add_u32 v18, v19, 7, v18"); a("v_add_u32 v18, v18, v16")
    a("s_lshl_b32 s50, s4, 10"); a(f"s_add_u32 s50, s50, {W_MLG}"); a("v_add_u32 v25, s50, v18")
    a("s_lshl_b32 s51, s6, 13"); a("s_add_u32 s50, s50, s51"); a("s_lshl_b32 s51, s7, 7"); a("s_add_u32 s50, s50, s51"); a("v_add_u32 v24, s50, v16")
    a("v_add_u32 v27, v16, v10")
    a("v_lshl_add_u32 v28, v17, 2, v10")
    a("s_getreg_b32 s52, hwreg(HW_REG_XCC_ID, 0, 4)")
    a("s_xor_b32 s53, s52, s33"); a("v_mov_b32 v41, s53")
    spin_all4(44, "v10", C_PF, sleep=4)
    if dyn2: a("s_memrealtime s[84:85]")
    a(f"ds_read_b128 v[44:47], v27 offset:{C_MX}"); a(f"ds_read_b128 v[48:51], v27 offset:{C_LS}")
    a("s_waitcnt lgkmcnt(0)")
    a("v_max_f32 v40, v44, v45"); a("v_max3_f32 v40, v40, v46, v47")
    a("v_add_f32 v48, v48, v49"); a("v_add_f32 v50, v50, v51"); a("v_add_f32 v42, v48, v50")
    a("v_mov_b32 v39, v40")
    a("s_mov_b64 exec, 3")
    a("global_store_dwordx4 v24, v[40:43], s[30:31]")
    a("s_mov_b64 exec, -1")
    a(f"s_mov_b32 s55, {ml_rounds}")
    stamp(3)
    if dyn2:
        a("s_and_b32 s50, s5, 0x17"); a("s_cmp_lg_u32 s50, 0"); a("s_cbranch_scc1 L_nogt2")
        a("s_lshl_b32 s50, s4, 1"); a("s_lshr_b32 s51, s5, 3"); a("s_add_u32 s50, s50, s51"); a("s_lshl_b32 s50, s50, 7"); a(f"s_add_u32 s50, s50, {W_GT + 0x1000}")
        a("v_mov_b32 v16, s50"); a("v_mov_b32 v32, s84"); a("v_mov_b32 v33, s33")
        a("s_mov_b64 exec, 1"); a("global_store_dwordx2 v16, v[32:33], s[30:31] sc1"); a("s_mov_b64 exec, -1")
        a("L_nogt2:")
        a("v_lshlrev_b32 v16, 7, v14"); a(f"v_add_u32 v31, {W_GT + 0x1000}, v16")
        spin_ge("v16", "v10", C_FILL, dyn2fill, sleep=8)
        a("global_load_dwordx2 v[34:35], v31, s[30:31] sc1"); a("s_memrealtime s[86:87]")
        a("s_waitcnt vmcnt(0) lgkmcnt(0)")
        a("v_mov_b32 v37, s86"); a("v_cmp_eq_u32 vcc, s33, v35"); a("v_cndmask_b32 v34, v37, v34, vcc"); a("v_sub_u32 v34, v37, v34")
        a(f"v_add_u32_dpp v34, v34, v34 quad_perm:[1,0,3,2] {DPPF}")
        a("v_mov_b32 v35, v34")
        for m in ("quad_perm:[2,3,0,1]", "row_ror:4", "row_ror:8"): a(f"v_add_u32_dpp v35, v35, v35 {m} {DPPF}")
        a("s_lshl_b32 s50, s4, 1"); a("v_readlane_b32 s51, v34, s50"); a("v_readfirstlane_b32 s50, v35")
        a("s_lshl_b32 s51, s51, 3"); a("s_sub_i32 s50, s50, s51"); a(f"s_mul_i32 s50, s50, {dyn2mul}"); a("s_ashr_i32 s50, s50, 14")
        a("s_max_i32 s50, s50, -8"); a("s_min_i32 s50, s50, 12")
        a("v_add_u32 v36, s50, v36"); a(f"ds_write_b32 v10, v36 offset:{C_FP+4}")
    spin_ge("v16", "v10", C_FILL, ml_fill, sleep=8)
    def mlload():
        a("global_load_dwordx4 v[48:51], v25, s[30:31] sc1")
        a("s_waitcnt vmcnt(0)")
        a("v_xor_b32 v16, s33, v49"); a("v_lshrrev_b32 v17, 4, v16"); a("v_bitop3_b32 v17, v51, s33, v17 bitop3:0xbe")
        a("v_cmp_ne_u32 s[56:57], s52, v16"); a("v_cmp_ne_u32 s[60:61], 0, v17")
        a("s_andn2_b64 s[56:57], s[56:57], s[60:61]")
    def mlpub():
        a("s_mov_b64 exec, 3")
        a("global_store_dwordx4 v24, v[40:43], s[30:31] sc1")
        a("s_mov_b64 exec, -1")
    a("s_branch L_ml_first")
    a("L_ml_retry:")
    budget()
    a("s_cmp_eq_u32 s55, 1000"); a("s_cbranch_scc1 L_ml_again")
    a("s_and_b32 s59, s56, 0xffff"); a("s_cbranch_scc1 L_ml_pub")
    a("s_sub_u32 s55, s55, 1"); a("s_cbranch_scc0 L_ml_again")
    a("L_ml_pub:")
    mlpub(); needq()
    a("s_movk_i32 s55, 1000")
    a("L_ml_again:")
    a("s_sleep 4")
    a("L_ml_first:")
    mlload()
    a("s_and_b32 s59, s60, 0xffff"); a("s_cbranch_scc1 L_ml_retry")
    a("s_and_b32 s59, s56, 0xffff"); a(f"s_cselect_b32 s54, 0, {0 if forcesc1 else 1}"); a("s_cbranch_scc0 L_ml_ok")
    mlpub()
    a("L_ml_ok:")
    a(f"s_mov_b32 s50, {hex(f2u(CEXP))}")
    a("v_and_b32 v48, 0xffff0000, v48")
    a("v_mov_b32 v44, v48")
    for m in ("quad_perm:[2,3,0,1]", "row_ror:4", "row_ror:8"): a(f"v_max_f32_dpp v44, v44, v44 {m} {DPPF}")
    a("v_sub_f32 v45, v48, v44"); a("v_sub_f32 v46, v39, v44")
    a("v_mul_f32 v45, s50, v45"); a("v_mul_f32 v46, s50, v46")
    a("v_exp_f32 v45, v45"); a("v_exp_f32 v46, v46")
    a("v_mul_f32 v45, v45, v50")
    for m in ("quad_perm:[2,3,0,1]", "row_ror:4", "row_ror:8"): a(f"v_add_f32_dpp v45, v45, v45 {m} {DPPF}")
    a("v_rcp_f32 v45, v45")
    a("v_mov_b32 v17, s54")
    a("v_mul_f32 v46, v46, v45")
    a("v_mov_b32 v16, 1")
    a("s_mov_b64 exec, 3")
    a(f"ds_write_b32 v28, v46 offset:{C_FAC}")
    a(f"ds_write_b32 v10, v17 offset:{C_LOC}")
    a(f"ds_write_b32 v10, v16 offset:{C_FACF}")
    a("s_mov_b64 exec, -1")
    stamp(4)
    a("s_cmp_eq_u32 s35, 4"); a("s_cselect_b32 s59, 1, s58"); a("s_cmp_eq_u32 s59, 0"); a("s_cbranch_scc1 L_q_exit")
    a(f"s_mov_b32 s55, {all_rounds}"); a("v_mov_b32 v20, 1")
    a("L_all:")
    a("s_cmp_lg_u64 s[56:57], 0"); a("s_cbranch_scc1 L_all_no")
    a("s_cmp_eq_u64 s[60:61], 0"); a("s_cbranch_scc1 L_all_yes")
    a("s_sub_u32 s55, s55, 1"); a("s_cbranch_scc1 L_all_no")
    a("s_sleep 8")
    mlload()
    a("s_branch L_all")
    a("L_all_no:")
    needq()
    a("v_mov_b32 v20, 2")
    a("L_all_yes:")
    a(f"ds_write_b32 v10, v20 offset:{C_ALL}")
    a("L_q_exit:")
    stamp(5)
    dump_stamps(7)
    a("s_endpgm")

    a("L_F:")
    a("s_cmp_eq_u32 s35, 4"); a("s_cbranch_scc0 L_end")
    a("v_and_b32 v14, 15, v0"); a("v_lshrrev_b32 v15, 4, v0")
    tile_tr_addr("v20", None, F2B)
    for tau in range(1, 4): a(f"v_xor_b32 v{20+tau}, {32*tau}, v20")
    a("s_mov_b32 s50, s5"); a("s_mov_b32 s51, s4")
    a("s_lshl_b32 s52, s50, 12"); a(f"s_add_u32 s52, s52, {W_GU}"); a("v_add_u32 v25, s52, v9")
    a("s_mul_i32 s52, s50, 28"); a("s_add_u32 s52, s52, s51"); a("s_lshl_b32 s52, s52, 9"); a(f"s_add_u32 s52, s52, {W_OG}")
    a("v_and_b32 v17, 3, v14"); a("v_lshrrev_b32 v18, 2, v14"); a("v_lshlrev_b32 v18, 6, v18"); a("v_lshl_add_u32 v18, v15, 4, v18")
    a(f"s_movk_i32 s51, {7*512}"); a("v_mad_u32_u24 v16, v17, s51, v18"); a("v_add_u32 v24, s52, v16")
    if warm & 4:
        a(f"global_load_dword v30, v24, s[30:31] {warmfl}"); a(f"global_load_dword v31, v24, s[30:31] offset:256 {warmfl}")
    if gufull:
        a("v_bfe_u32 v16, v0, 2, 2"); a("v_lshlrev_b32 v16, 8, v16"); a("v_lshl_add_u32 v16, v15, 5, v16"); a("v_lshl_add_u32 v26, v17, 3, v16"); a(f"v_add_u32 v26, {HA}, v26")
    else:
        a("v_lshlrev_b32 v26, 3, v0"); a(f"v_add_u32 v26, {HA}, v26")
    a("v_lshlrev_b32 v16, 8, v17"); a("v_lshl_add_u32 v27, v15, 4, v16"); a(f"v_add_u32 v27, {HA}, v27")
    a("s_mov_b32 s44, 0xf0f0f0f0"); a("s_mov_b32 s45, 0xf0f0f0f0"); a("s_mov_b32 s46, 0xff00ff00"); a("s_mov_b32 s47, 0xff00ff00")
    spin_ge("v16", "v10", C_FILL, 1, sleep=2)
    for s in range(4):
        for tau in range(4):
            r = 128 + (s * 4 + tau) * 4
            a(f"ds_read_b64_tr_b16 v[{r}:{r+1}], v{20+tau} offset:{4096*s}")
            a(f"ds_read_b64_tr_b16 v[{r+2}:{r+3}], v{20+tau} offset:{4096*s+512}")
    a(f"v_mov_b32 v16, {BIG}"); a("s_waitcnt lgkmcnt(0)"); a(f"ds_write_b32 v10, v16 offset:{C_FP}")
    stamp(1)
    if noffn: a("s_endpgm")
    if gu_fill is None: spin_ge("v16", "v10", C_QRDY, 1, sleep=4)
    else: spin_ge("v16", "v10", C_FILL, gu_fill, sleep=8)
    a("L_h_retry:")
    for i in range(4): a(f"global_load_dwordx4 v[{64+4*i}:{67+4*i}], v25, s[30:31] offset:{1024*i} sc1")
    budget()
    a("s_waitcnt vmcnt(0)")
    if not nogupoll: tagcheck([f"v{65+2*i}" for i in range(8)], "v16", "v17", "L_h_retry")
    stamp(2)
    for k in range(4):
        a(f"v_lshlrev_b32 v{84+2*k}, 16, v{64+2*k}"); a(f"v_and_b32 v{85+2*k}, 0xffff0000, v{64+2*k}")
        a(f"v_lshlrev_b32 v{92+2*k}, 16, v{72+2*k}"); a(f"v_and_b32 v{93+2*k}, 0xffff0000, v{72+2*k}")
    a(f"s_mov_b32 s50, {hex(f2u(-LOG2E))}")
    for i in range(8): a(f"v_mul_f32 v{100+i}, s50, v{84+i}")
    for i in range(8): a(f"v_exp_f32 v{100+i}, v{100+i}")
    for i in range(8): a(f"v_add_f32 v{100+i}, 1.0, v{100+i}")
    for i in range(8): a(f"v_rcp_f32 v{100+i}, v{100+i}")
    for i in range(8): a(f"v_mul_f32 v{100+i}, v{100+i}, v{84+i}")
    for i in range(8): rbf(f"v{100+i}", f"v{100+i}")
    for i in range(8): a(f"v_mul_f32 v{100+i}, v{100+i}, v{92+i}")
    for k in range(4): a(f"v_cvt_pk_bf16_f32 v{108+k}, v{100+2*k}, v{101+2*k}")
    a("ds_write_b64 v26, v[108:109]"); a(f"ds_write_b64 v26, v[110:111] offset:{128 if gufull else 512}")
    for s in range(4): a(f"ds_read_b128 v[{64+4*s}:{67+4*s}], v27 offset:{64*s}")
    a("s_waitcnt lgkmcnt(0)")
    for s in range(4):
        for tau in range(4):
            r = 128 + (s * 4 + tau) * 4
            c = "0" if s == 0 else f"v[{84+4*tau}:{87+4*tau}]"
            a(f"v_mfma_f32_16x16x32_bf16 v[{84+4*tau}:{87+4*tau}], v[{r}:{r+3}], v[{64+4*s}:{67+4*s}], {c}")
    for k in (41, 43, 45, 47): a(f"v_mov_b32 v{k}, s33")
    for r in range(4):
        a(f"v_cndmask_b32 v16, v{84+r}, v{88+r}, s[44:45]"); a(f"v_cndmask_b32 v17, v{92+r}, v{96+r}, s[44:45]")
        a(f"v_cndmask_b32 v{40+2*r}, v16, v17, s[46:47]")
    if oglocal:
        spin_ge("v16", "v10", C_ALL, 1, sleep=2)
        a("v_cmp_eq_u32 vcc, 1, v16"); a("s_cbranch_vccz L_og_far")
        a("global_store_dwordx4 v24, v[40:43], s[30:31]")
        a("global_store_dwordx4 v24, v[44:47], s[30:31] offset:256")
        a("s_branch L_og_done")
        a("L_og_far:")
    a("global_store_dwordx4 v24, v[40:43], s[30:31] sc1")
    a("global_store_dwordx4 v24, v[44:47], s[30:31] offset:256 sc1")
    a("L_og_done:")
    stamp(3)
    dump_stamps(4)
    a("s_endpgm")

    a("L_R:")
    if prefetch_code:
        a("s_getpc_b64 s[48:49]")
        a("L_pc:")
        a(f"s_sub_u32 s48, s48, L_pc-{KNAME}_kernel"); a("s_subb_u32 s49, s49, 0")
        a("s_lshl_b32 s50, s5, 10"); a(f"s_cmp_lt_u32 s50, L_fail-{KNAME}_kernel-1024"); a("s_cbranch_scc0 L_nopf")
        a("v_add_u32 v16, s50, v9")
        a("global_load_dwordx4 v[20:23], v16, s[48:49]")
        a("L_nopf:")
    a("s_cmp_lg_u32 s2, 255"); a("s_cbranch_scc1 L_r_exit")
    for k in range(4): a(f"v_add_u32 v{28+k}, {W_H2 + k*28*1024}, v9")
    spin_ge("v16", "v10", C_FILL, 33, sleep=16)
    if not notail and not noew: mpoll([(48 + 4 * k, f"v{28+k}", 0) for k in range(4)], "ew", 16, sleep=h2sleep)
    a("s_mov_b64 exec, 1")
    a("v_mov_b32 v16, 0"); a("v_mov_b32 v17, s33")
    a(f"global_store_dword v16, v17, s[30:31] {efl}")
    a("s_branch L_r_exit")
    a("L_red:")
    a("s_cmp_eq_u32 s4, 7"); a("s_cbranch_scc1 L_r_exit")
    a("s_mov_b32 s51, s6"); a("s_lshl_b32 s52, s4, 2"); a("s_add_u32 s52, s52, s3"); a("s_mul_i32 s50, s51, 28"); a("s_add_u32 s50, s50, s52")
    a("s_mul_i32 s53, s51, 448"); a("s_lshl_b32 s54, s52, 4"); a("s_add_u32 s53, s53, s54")
    a("v_lshrrev_b32 v16, 5, v0"); a("v_and_b32 v17, 7, v0"); a("v_lshl_add_u32 v18, v16, 3, v17")
    a("v_add_u32 v19, s53, v18"); a("v_lshlrev_b32 v24, 1, v19")
    a("s_lshr_b32 s53, s52, 2"); a("s_mul_i32 s54, s51, 7"); a("s_add_u32 s53, s53, s54"); a("s_lshl_b32 s53, s53, 9")
    a("s_and_b32 s54, s52, 3"); a("s_lshl_b32 s54, s54, 6"); a("s_add_u32 s53, s53, s54"); a(f"s_add_u32 s53, s53, {W_OG}")
    a("v_bfe_u32 v19, v18, 1, 1"); a("v_lshlrev_b32 v19, 8, v19"); a("v_lshrrev_b32 v20, 2, v18"); a("v_lshl_add_u32 v19, v20, 4, v19")
    a("v_and_b32 v20, 1, v18"); a("v_lshl_add_u32 v19, v20, 3, v19"); a("v_add_u32 v19, s53, v19")
    a("v_bfe_u32 v21, v0, 3, 2"); a(f"s_movk_i32 s54, {28*512}")
    a("v_mad_u32_u24 v25, v21, s54, v19")
    a(f"v_add_u32 v27, {4*28*512}, v25"); a(f"v_add_u32 v28, {8*28*512}, v25")
    a("v_min_u32 v22, 1, v21"); a("v_add_u32 v22, 12, v22"); a("v_mad_u32_u24 v29, v22, s54, v19")
    a("v_cmp_gt_u32 s[44:45], 2, v21")
    a("s_lshl_b32 s56, s50, 10"); a(f"s_add_u32 s56, s56, {W_H2}"); a("v_add_u32 v26, s56, v9")
    a("global_load_ushort v30, v24, s[8:9]")
    if touch_out: a("global_load_ushort v31, v24, s[26:27]")
    a("s_branch L_og_first")
    a("L_og_retry:")
    budget()
    a("s_waitcnt vmcnt(0)")
    a("L_og_first:")
    for k, va in enumerate(("v25", "v27", "v28", "v29")): a(f"global_load_dwordx2 v[{32+2*k}:{33+2*k}], {va}, s[30:31] sc1")
    def gate():
        a("s_waitcnt vmcnt(1)")
        if not noogpoll: tagcheck(["v33", "v35", "v37", "v39"], "v16", "v17", "L_og_retry")
        a("v_cndmask_b32 v38, 0, v38, s[44:45]"); a("v_add_f32 v32, v32, v34"); a("v_add_f32 v36, v36, v38"); a("v_add_f32 v32, v32, v36")
        a(f"v_add_f32_dpp v32, v32, v32 row_ror:8 {DPPF}")
        swapred("v_add_f32", "v32", "v33", 16)
        rbf("v32", "v32")
        a(f"v_mul_f32 v33, {hex(f2u(-LOG2E))}, v32"); a("v_exp_f32 v33, v33"); a("v_add_f32 v33, 1.0, v33"); a("v_rcp_f32 v33, v33")
        a("v_mul_f32 v32, v32, v33"); rbf("v32", "v32")
        a("v_lshlrev_b32 v30, 16, v30")
        stamp(11)
    mpoll([(48, "v26", 0)], "h2", 16, sleep=h2sleep, pre=gate)
    stamp(12)
    a("v_permlane32_swap_b32 v48, v50"); a("v_add_f32 v48, v48, v50")
    swapred("v_add_f32", "v48", "v50", 16)
    a(f"v_add_f32_dpp v48, v48, v48 row_ror:8 {DPPF}")
    rbf("v48", "v48")
    a("v_mul_f32 v48, v48, v32"); rbf("v48", "v48")
    a("v_add_f32 v48, v48, v30"); a("v_cvt_pk_bf16_f32 v48, v48, v48")
    a("s_mov_b32 exec_lo, 0xff"); a("s_mov_b32 exec_hi, 0xff")
    a(f"global_store_short v24, v48, s[26:27] {outfl}")
    if probe:
        a("s_or_b32 s50, s6, s3"); a("s_cmp_lg_u32 s50, 0"); a("s_cbranch_scc1 L_r_exit")
        a("s_memrealtime s[44:45]"); a("s_lshl_b32 s50, s4, 2"); a("s_add_u32 s50, s50, 32"); a("v_mov_b32 v16, s50"); a("s_waitcnt lgkmcnt(0)"); a("v_mov_b32 v17, s44")
        a("s_mov_b64 exec, 1"); a("global_store_dword v16, v17, s[28:29]")
    a("L_r_exit:")
    stamp(13)
    dump_stamps(14)
    a("L_end:")
    a("s_endpgm")
    a("L_fail:")
    a("s_mov_b64 exec, 1")
    a("s_lshl_b32 s60, s3, 2"); a("s_or_b32 s61, s2, 0xbad00000")
    a("v_mov_b32 v16, s60"); a("v_mov_b32 v17, s61")
    a("global_store_dword v16, v17, s[28:29]")
    a("s_endpgm")
    a.raw('.section .rodata,"a"'); a.raw(".p2align 6"); a.raw(f".amdhsa_kernel {KNAME}_kernel")
    a.raw("  .amdhsa_next_free_vgpr 256"); a.raw("  .amdhsa_next_free_sgpr 96"); a.raw("  .amdhsa_accum_offset 256")
    a.raw("  .amdhsa_group_segment_fixed_size 0"); a.raw("  .amdhsa_kernarg_size 96"); a.raw("  .amdhsa_user_sgpr_count 2")
    a.raw("  .amdhsa_user_sgpr_kernarg_segment_ptr 1"); a.raw("  .amdhsa_system_sgpr_workgroup_id_x 1"); a.raw(".end_amdhsa_kernel")
    return a.text()

STAMPS = {'C': 11, 'L': 4, 'Q': 7, 'F': 4, 'R': 6}
if __name__ == "__main__":
    import ast
    kw = {}
    for x in sys.argv[2:]:
        k, v = x.split("=", 1)
        try: kw[k] = ast.literal_eval(v)
        except Exception: kw[k] = v
    open(sys.argv[1], "w").write(gen(**kw))
```

```python
import sys, struct
from asmlib import Asm
KNAME = "recurrent_scan__gqa_block_cached__glu_gated_swiglu__decode"

SLOT = 16384; NS = 9
BIGW = 6 * SLOT; WOB = 5 * SLOT; F2B = 8 * SLOT
CTRL = BIGW + 57344; XN = CTRL + 256; QI = XN + 3584; PB = QI + 1024; HA = PB + 2048; LDS_END = HA + 1024; OI = XN
assert LDS_END <= 163840
C_CP = 0; C_FP = 16; C_FILL = 32; C_XNF = 48; C_QRDY = 64; C_MXF = 80; C_PF = 96; C_FACF = 112
C_MX = 128; C_LS = 160; C_FAC = 192; C_LOC = 200; C_ALL = 204; C_OF = 224
W_QG = 0x1000; W_GU = 0x20000; W_OG = 0x40000; W_MLG = 0x80000; W_H1 = 0x100000; W_H2 = 0x200000; W_DIAG = 0x400000
BIG = 1000
CEXP = 0.09016844005556021
LOG2E = 1.4426950408889634
def f2u(f): return struct.unpack("<I", struct.pack("<f", f))[0]

HEADER = """;
; Hand-offs between workgroups are 16-byte {value, tag, value, tag} granules in d_ws; tag = hash of a word of d_ws that the launch
"""

def gen(diag=False, win=18, w0=28, wdelta=6, wboost=30, endboost=2, lv0=2, lvF=4, lv7=8, lvH=12, lvlate=3, NB=5, nA=7, nB=7,
        wo_start=19, wo_per=6, qpoll_fill=3, ml_fill=24, gu_fill=28, q_rounds=6, ml_rounds=4, all_rounds=4, forcesc1=False, spec=True):
    a = Asm()
    C = a.comment
    hdr = open("cdna_kernels/" + KNAME + ".s.ref").read().split("; Override launch")[0]
    a.raw(hdr.rstrip())
    a.raw(f"; @launch grid=(256,1,1) block=(448,1,1) lds={LDS_END}")
    a.raw(HEADER.rstrip())
    a.raw('.amdgcn_target "amdgcn-amd-amdhsa--gfx950"')
    a.raw(".text"); a.raw(f".globl {KNAME}_kernel"); a.raw(".p2align 12")
    a.raw(".p2align 8"); a.raw(f".type {KNAME}_kernel,@function"); a.raw(f"{KNAME}_kernel:")
    def stamp(i):
        if diag:
            a("s_memrealtime s[64:65]"); a("s_waitcnt lgkmcnt(0)"); a(f"v_writelane_b32 v247, s64, {2*i}"); a(f"v_writelane_b32 v247, s65, {2*i+1}")
    def dump_stamps():
        if diag:
            a("s_mov_b32 exec_lo, -1"); a("s_mov_b32 exec_hi, 0")
            a("s_lshl_b32 s60, s2, 3"); a("s_add_u32 s60, s60, s3"); a("s_lshl_b32 s60, s60, 7"); a(f"s_add_u32 s60, s60, {W_DIAG}")
            a("v_lshl_add_u32 v246, v0, 2, s60")
            a("global_store_dword v246, v247, s[30:31]")
    lbl = [0]
    def newlabel(p):
        lbl[0] += 1; return f"L_{p}_{lbl[0]}"
    def budget():
        a("s_sub_u32 s62, s62, 1"); a("s_cbranch_scc1 L_fail")
    def spin_tail(L, Ld, sleep):
        a(f"s_cbranch_vccnz {Ld}")
        if sleep: a(f"s_sleep {sleep}")
        a("s_sub_u32 s62, s62, 1"); a(f"s_cbranch_scc0 {L}"); a("s_branch L_fail"); a(f"{Ld}:")
    def spin_ge(vtmp, off, val, sleep=0):
        L = newlabel("spin"); Ld = newlabel("spind")
        a(f"{L}:"); a(f"ds_read_b32 {vtmp}, v10 offset:{off}"); a("s_waitcnt lgkmcnt(0)")
        a(f"v_cmp_le_u32 vcc, {val}, {vtmp}"); spin_tail(L, Ld, sleep)
    def spin_all4(vt, off, sleep=0):
        L = newlabel("spin4"); Ld = newlabel("spin4d")
        a(f"{L}:"); a(f"ds_read_b128 v[{vt}:{vt+3}], v10 offset:{off}"); a("s_waitcnt lgkmcnt(0)")
        a(f"v_min_u32 v{vt}, v{vt}, v{vt+1}"); a(f"v_min3_u32 v{vt}, v{vt}, v{vt+2}, v{vt+3}")
        a(f"v_cmp_ne_u32 vcc, 0, v{vt}"); spin_tail(L, Ld, sleep)
    def tagcheck(tags, vacc, vacc2, retry):
        h = (len(tags) + 1) // 2
        t1, t2 = tags[:h], tags[h:]
        a(f"v_xor_b32 {vacc}, s33, {t1[0]}")
        if t2: a(f"v_xor_b32 {vacc2}, s33, {t2[0]}")
        for i in range(1, h):
            a(f"v_bitop3_b32 {vacc}, {t1[i]}, s33, {vacc} bitop3:0xbe")
            if i < len(t2): a(f"v_bitop3_b32 {vacc2}, {t2[i]}, s33, {vacc2} bitop3:0xbe")
        if t2: a(f"v_or_b32 {vacc}, {vacc}, {vacc2}")
        a(f"v_cmp_ne_u32 vcc, 0, {vacc}")
        a(f"s_cbranch_vccnz {retry}")
    def mpoll(loads, name, vt, pre=None, sleep=0, hook=None, sm=72):
        n = len(loads)
        for (d, va, off) in loads: a(f"global_load_dwordx4 v[{d}:{d+3}], {va}, s[30:31] offset:{off} sc1")
        if pre: pre()
        a(f"s_branch L_{name}_chk")
        a(f"L_{name}_retry:")
        if hook: hook()
        if sleep: a(f"s_sleep {sleep}")
        for i, (d, va, off) in enumerate(loads):
            a(f"s_mov_b64 exec, s[{sm+2*i}:{sm+2*i+1}]")
            if n > 1: a(f"s_cbranch_execz L_{name}_sk{i}")
            a(f"global_load_dwordx4 v[{d}:{d+3}], {va}, s[30:31] offset:{off} sc1")
            if n > 1: a(f"L_{name}_sk{i}:")
        a("s_mov_b64 exec, -1")
        budget()
        a(f"L_{name}_chk:")
        a("s_waitcnt vmcnt(0)")
        for i, (d, va, off) in enumerate(loads): a(f"v_xor_b32 v{vt+i}, s33, v{d+1}")
        for i, (d, va, off) in enumerate(loads): a(f"v_bitop3_b32 v{vt+i}, v{d+3}, s33, v{vt+i} bitop3:0xbe")
        for i, (d, va, off) in enumerate(loads): a(f"v_cmp_ne_u32 s[{sm+2*i}:{sm+2*i+1}], 0, v{vt+i}")
        if n == 1: a(f"s_cmp_lg_u64 s[{sm}:{sm+1}], 0")
        else:
            a(f"s_or_b64 vcc, s[{sm}:{sm+1}], s[{sm+2}:{sm+3}]")
            for i in range(2, n): a(f"s_or_b64 vcc, vcc, s[{sm+2*i}:{sm+2*i+1}]")
        a(f"s_cbranch_scc1 L_{name}_retry")
    def rbf(dst, src):
        a(f"v_cvt_pk_bf16_f32 {dst}, {src}, {src}"); a(f"v_and_b32 {dst}, 0xffff0000, {dst}")
    DPPF = "row_mask:0xf bank_mask:0xf"
    def red16(op, v):
        for m in ("quad_perm:[1,0,3,2]", "quad_perm:[2,3,0,1]", "row_half_mirror", "row_mirror"): a(f"{op}_dpp {v}, {v}, {v} {m} {DPPF}")
    def swapred(op, v, t, which):
        a(f"v_mov_b32 {t}, {v}"); a(f"v_permlane{which}_swap_b32 {v}, {t}"); a(f"{op} {v}, {v}, {t}")
    def noproj(label):
        a("s_sub_u32 s50, s35, 1"); a("s_cmp_ge_u32 s50, 3"); a(f"s_cbranch_scc1 {label}")

    if diag: a("s_memrealtime s[66:67]")
    a("s_cmp_ge_u32 s2, 256")
    a("s_cbranch_scc1 L_end")
    a("s_load_dwordx16 s[8:23], s[0:1], 0")
    a("s_load_dwordx8 s[24:31], s[0:1], 64")
    a("v_lshrrev_b32 v1, 6, v0")
    a("v_and_b32 v0, 63, v0")
    a("v_readfirstlane_b32 s3, v1                ; wave")
    C("s4 = g, s5 = r = id>>3, s6 = b, s7 = j ; duty s35: 0 none, 1 q tile, 2 gate tile, 3 up tile, 4 down-projection tile ; s49 = tile")
    a("s_and_b32 s4, s2, 7"); a("s_lshr_b32 s5, s2, 3"); a("s_and_b32 s6, s5, 3"); a("s_lshr_b32 s7, s5, 2")
    assert 5 * nA + 3 * nB == 56
    a(f"s_mul_i32 s48, s4, {nA}"); a(f"s_mul_i32 s49, s4, {nB}"); a(f"s_add_u32 s49, s49, {4*nA - 4*nB}")
    a("s_cmp_lt_u32 s4, 4"); a("s_cselect_b32 s48, s48, s49"); a(f"s_cselect_b32 s34, {24-nA}, {24-nB}")
    a("s_cmp_eq_u32 s4, 7"); a(f"s_cselect_b32 s34, {24-nA}, s34"); a("s_cselect_b32 s55, 0, 14")
    a("s_cmp_lt_u32 s5, s55"); a("s_cselect_b32 s35, 4, 0")
    a("s_add_u32 s48, s48, s5"); a("s_sub_u32 s48, s48, s34"); a("s_sub_u32 s49, s48, 28")
    a("s_cmp_lt_u32 s48, 28"); a("s_cselect_b32 s49, s48, s49"); a("s_cselect_b32 s48, 2, 3")
    a("s_cmp_ge_u32 s5, s34"); a("s_cselect_b32 s35, s48, s35")
    a("s_lshl_b32 s48, s4, 3"); a("s_add_u32 s48, s48, s5"); a("s_sub_u32 s48, s48, 24")
    a("s_movk_i32 s57, 3584"); a("s_mov_b32 s38, 1605632")
    a("s_cmp_ge_u32 s5, 24"); a("s_cselect_b32 s35, 1, s35"); a("s_cselect_b32 s49, s48, s49"); a("s_cselect_b32 s57, 8192, s57"); a("s_cselect_b32 s38, 3670016, s38")
    a("s_mov_b32 s39, 0x20000")
    C("weight tile: start offset s48, row stride s57, LDS destination s60, pairs of 8-row loads s61")
    a("s_mul_i32 s55, s5, 896"); a("s_add_u32 s55, s55, s4")
    a("s_cmp_eq_u32 s35, 4"); a("s_cselect_b32 s48, s55, s49"); a("s_cselect_b32 s57, 896, s57"); a("s_cselect_b32 s61, 8, 28")
    a(f"s_cselect_b32 s60, {(F2B-BIGW)//1024}, 0"); a("s_lshl_b32 s48, s48, 7"); a("s_lshl_b32 s60, s60, 10"); a(f"s_add_u32 s60, s60, {BIGW}")
    a("s_cmp_eq_u32 s35, 0"); a("s_cselect_b32 s61, 0, s61")
    a("s_lshl_b32 s56, s57, 3")
    a("s_lshl_b32 s52, s6, 3"); a("s_add_u32 s52, s52, s4"); a("s_lshl_b32 s52, s52, 21"); a("s_lshl_b32 s53, s7, 18"); a("s_add_u32 s54, s52, s53")
    a("s_mov_b32 s42, 0x4000000"); a("s_mov_b32 s43, 0x20000")
    a("v_lshlrev_b32 v9, 4, v0")
    a(f"v_mov_b32 v10, {CTRL}")
    C("per-lane source offsets (16-byte chunks permuted inside a row so that the LDS reads are conflict free): v24/v25 tiles, v16..v23 K")
    a("v_lshrrev_b32 v2, 3, v0"); a("v_and_b32 v3, 7, v0"); a("v_and_b32 v8, 2, v2"); a("v_xor_b32 v3, v3, v8")
    a("v_lshlrev_b32 v3, 4, v3")
    a("v_mad_u32_u24 v24, v2, s57, v3"); a("v_xor_b32 v25, 64, v3"); a("v_mad_u32_u24 v25, v2, s57, v25")
    a("v_lshrrev_b32 v28, 5, v0"); a("v_and_b32 v29, 31, v0"); a("v_lshlrev_b32 v30, 9, v28"); a("v_xor_b32 v15, v29, v28")
    for p in range(8):
        if p: a(f"v_xor_b32 v{16+p}, {2*p}, v15"); a(f"v_lshl_add_u32 v{16+p}, v{16+p}, 4, v30")
        else: a("v_lshl_add_u32 v16, v15, 4, v30")
    a("s_mov_b32 s62, 0x100000")
    a("s_cmp_eq_u32 s3, 4")
    a("s_waitcnt lgkmcnt(0)")
    if diag: a("v_writelane_b32 v247, s66, 0"); a("v_writelane_b32 v247, s67, 1")
    a("s_cbranch_scc0 L_others")

    C("---------------- L: loader ----------------")
    if diag == 3: a("s_memrealtime s[84:85]")
    a("s_cmp_eq_u32 s35, 2"); a("s_cselect_b32 s36, s20, s22"); a("s_cselect_b32 s37, s21, s23")
    a("s_cmp_eq_u32 s35, 1"); a("s_cselect_b32 s36, s14, s36"); a("s_cselect_b32 s37, s15, s37")
    a("s_cmp_eq_u32 s35, 4"); a("s_cselect_b32 s36, s24, s36"); a("s_cselect_b32 s37, s25, s37")
    a("s_mov_b32 m0, s60"); a("s_mov_b32 s40, s10"); a("s_mov_b32 s41, s11")
    a("s_setprio 3")
    a("s_mov_b32 s58, 1")
    a("s_cmp_eq_u32 s61, 0"); a("s_cbranch_scc1 L_ld_kv")
    if diag == 3: a("s_memrealtime s[86:87]")
    a("L_tile:")
    for k in range(2):
        a(f"s_waitcnt vmcnt({w0-1})")
        a(f"buffer_load_dwordx4 v{24+k}, s[36:39], s48 offen nt lds")
        a("s_add_u32 m0, m0, 1024"); a("s_add_u32 s48, s48, s56")
    a("s_sub_u32 s61, s61, 1")
    a(f"s_cmp_lg_u32 s61, {28 - min(w0, 24)//2}"); a("s_cbranch_scc1 L_tile_nb"); a("s_barrier"); a("s_movk_i32 s58, 100"); a("L_tile_nb:")
    a("s_cmp_lg_u32 s61, 0"); a("s_cbranch_scc1 L_tile")
    a("L_ld_kv:")
    if diag == 3: a("s_memrealtime s[88:89]")
    C("s50 item (0..15 K, 16..31 V), s51 LDS slot, s52 source offset, s63 ring end, s53 ring distance")
    a("s_mov_b32 s52, s54"); a("s_mov_b32 s50, 0"); a("s_mov_b32 s51, 0"); a(f"s_mov_b32 s63, {NS*SLOT}"); a("s_mov_b32 s53, 5")
    C("loads in flight = base + s46/4: workgroups with more bytes to fetch (and the dies that are dispatched last) get a wider window")
    a("s_cmp_eq_u32 s35, 4"); a(f"s_cselect_b32 s46, {lvF}, {lv0}")
    a("s_sub_u32 s55, s35, 1"); a("s_cmp_lt_u32 s55, 3"); a(f"s_cselect_b32 s46, {lvH}, s46"); a("s_cmp_eq_u32 s7, 7"); a(f"s_cselect_b32 s46, {lv7}, s46")
    if lvlate: a("s_cmp_ge_u32 s4, 4"); a(f"s_cselect_b32 s55, {lvlate}, 0"); a("s_add_u32 s46, s46, s55")
    a("s_mov_b32 s47, 0")
    NWO = -(-64 // wo_per)
    assert wo_start >= 19 and wo_start + NWO <= 30 and wo_per % 2 == 0 and 17 <= win and win + wdelta + NB - 1 <= 32
    def item_check(c):
        a(f"L_check{c}:")
        a("s_waitcnt lgkmcnt(0)")
        a("v_min3_u32 v40, v40, v41, v42"); a("v_min3_u32 v40, v40, v43, v44")
        a("s_sub_u32 s56, s50, s53")
        a("v_readfirstlane_b32 s55, v40")
        a("s_cmp_gt_u32 s55, s56")
        a(f"s_cbranch_scc0 L_slow{c}")
        if c == "P":
            a(f"s_cmp_ge_u32 s50, {32-endboost}"); a("s_cbranch_scc1 L_goPb")
            a("L_levelP:")
        a("s_and_b32 s47, s47, 3"); a("s_add_u32 s47, s47, s46")
        for k in range(NB - 1, 0, -1):
            a(f"s_cmp_ge_u32 s47, {4*k}"); a(f"s_cbranch_scc1 L_go{c}{k}")
    def item_body(c, w, nwo):
        a(f"L_go{c}:")
        if diag == 2:
            a("s_memrealtime s[70:71]"); a("s_waitcnt lgkmcnt(0)"); a("s_mov_b32 m0, s50"); a("v_writelane_b32 v60, s70, m0")
        if nwo:
            a("s_mov_b32 m0, s60")
            for k in range(nwo):
                a(f"s_waitcnt vmcnt({w-1})")
                a(f"buffer_load_dwordx4 v{24+(k&1)}, s[36:39], s48 offen nt lds")
                a("s_add_u32 m0, m0, 1024"); a(f"s_add_u32 s48, s48, {8*896}")
            a("s_mov_b32 s60, m0")
        nsig = max(0, w - 17 - nwo)
        for grp in range(4):
            if grp == 0: a("s_mov_b32 m0, s51")
            else:
                a("s_add_u32 m0, m0, 4096"); a("s_add_u32 s52, s52, 4096")
            if grp == 3:
                a(f"ds_read_b128 v[40:43], v10 offset:{C_CP}"); a(f"ds_read_b32 v44, v10 offset:{C_FP}")
            for q in range(4):
                n = grp * 4 + q
                a(f"s_waitcnt vmcnt({w-1})")
                if n == nsig:
                    a("v_mov_b32 v46, s50"); a(f"ds_write_b32 v10, v46 offset:{C_FILL}")
                a(f"buffer_load_dwordx4 v{16+(n&7)}, s[40:43], s52 offen offset:{1024*q} nt lds")
        a("s_add_u32 s52, s52, 4096")
        a(f"s_add_u32 s51, s51, {SLOT}"); a("s_cmp_eq_u32 s51, s63"); a("s_cselect_b32 s51, 0, s51")
        a("s_add_u32 s50, s50, 1")
    def slow(c):
        a(f"L_slow{c}:")
        budget()
        a(f"ds_read_b128 v[40:43], v10 offset:{C_CP}"); a(f"ds_read_b32 v44, v10 offset:{C_FP}")
        a(f"s_branch L_check{c}")
    a("L_item:")
    a("s_cmp_lg_u32 s50, s58"); a("s_cbranch_scc1 L_nobar"); a("s_barrier"); a("L_nobar:")
    a("s_cmp_lt_u32 s50, 2"); a("s_cbranch_scc1 L_goP")
    a("s_cmp_lt_u32 s50, 5"); a("s_cbranch_scc1 L_levelP")
    item_check("P")
    item_body("P", win, 0)
    a("L_afterP:")
    a("s_cmp_eq_u32 s50, 16"); a("s_cbranch_scc1 L_tov")
    a(f"s_cmp_eq_u32 s50, {wo_start}"); a("s_cbranch_scc1 L_towo")
    a("L_item_next:")
    a("s_cmp_lt_u32 s50, 32"); a("s_cbranch_scc1 L_item")
    stamp(1)
    a("v_mov_b32 v46, 32"); a("v_mov_b32 v47, 33")
    a("s_waitcnt vmcnt(16)")
    a(f"ds_write_b32 v10, v46 offset:{C_FILL}")
    a("s_waitcnt vmcnt(0)")
    a(f"ds_write_b32 v10, v47 offset:{C_FILL}")
    stamp(3); stamp(2)
    if diag == 3:
        for k in range(6): a(f"v_writelane_b32 v247, s{84+k}, {8+k}")
    if diag:
        a("s_lshl_b32 s60, s2, 8"); a(f"s_add_u32 s60, s60, {W_DIAG + 0x80000}"); a("v_lshl_add_u32 v61, v0, 2, s60")
        a("global_store_dword v61, v60, s[30:31]")
    dump_stamps()
    a("s_endpgm")

    C("---------------- all other waves: tag, x, LDS control words ----------------")
    a("L_others:")
    a("s_load_dword s32, s[30:31], 0")
    a("s_cmp_ge_u32 s3, 4"); a("s_cbranch_scc1 L_nox")
    noproj("L_nox")
    a("s_mul_i32 s50, s3, 896")
    a("v_add_u32 v11, s50, v9")
    for i in range(4): a(f"v_mov_b32 v{4+i}, 0")
    a("s_mov_b32 exec_hi, 0x00ffffff")
    a("global_load_dwordx4 v[4:7], v11, s[8:9]")
    a("s_mov_b32 exec_hi, -1")
    a("L_nox:")
    a("s_sub_u32 s50, s35, 1"); a("s_cmp_ge_u32 s50, 3"); a("s_cselect_b32 s51, 1, 0"); a("s_cselect_b32 s52, 4, 1")
    a("v_mov_b32 v12, s52"); a("v_mad_u32_u24 v12, v0, s51, v12")
    a("v_cmp_gt_u32 vcc, 4, v0")
    a("s_cmp_eq_u32 s35, 4"); a(f"s_cselect_b32 s50, 3, {BIG}")
    a("v_cndmask_b32 v12, 0, v12, vcc")
    a("v_mov_b32 v13, s50")
    a("v_cmp_eq_u32 vcc, 4, v0")
    a("v_lshl_add_u32 v14, v0, 2, v10")
    a("v_cndmask_b32 v12, v12, v13, vcc")
    a("ds_write_b32 v14, v12")
    a("s_waitcnt lgkmcnt(0)")
    a("s_mul_i32 s33, s32, 0x9E3779B1"); a("s_add_u32 s33, s33, 0x7F4A7C15")
    a("s_barrier")
    a("v_and_b32 v14, 15, v0"); a("v_lshrrev_b32 v15, 4, v0")
    a("s_cmp_lt_u32 s3, 4"); a("s_cbranch_scc1 L_C")
    a("s_cmp_eq_u32 s3, 5"); a("s_cbranch_scc1 L_Q")
    a("s_branch L_F")

    C("---------------- L: out-of-line pieces ----------------")
    slow("P")
    a("L_tov:")
    a("s_mov_b32 s40, s12"); a("s_mov_b32 s41, s13"); a("s_mov_b32 s52, s54")
    a("s_mov_b32 s51, 0"); a(f"s_mov_b32 s63, {5*SLOT}"); a("s_mov_b32 s53, 1")
    a("v_lshlrev_b32 v15, 1, v28"); a("v_xor_b32 v15, v15, v29")
    for p in range(8):
        f = 4 * (p & 1) + 8 * ((p >> 2) & 1)
        a(f"v_xor_b32 v{16+p}, {f}, v15"); a(f"v_lshl_add_u32 v{16+p}, v{16+p}, 4, v30")
    a("s_mov_b32 s36, s16"); a("s_mov_b32 s37, s17"); a("s_mov_b32 s38, 3670016")
    a(f"s_mul_i32 s48, s4, {512*896}"); a("s_lshl_b32 s55, s7, 7"); a("s_add_u32 s48, s48, s55")
    a("s_movk_i32 s57, 896"); a(f"s_mov_b32 s60, {WOB}")
    a("v_mad_u32_u24 v24, v2, s57, v3"); a("v_xor_b32 v25, 64, v3"); a("v_mad_u32_u24 v25, v2, s57, v25")
    a("s_branch L_item")
    a("L_towo:")
    a("s_cmp_eq_u32 s7, 7"); a("s_cbranch_scc1 L_item")
    a("L_itemW:")
    item_check("W")
    item_body("W", win + wdelta, wo_per)
    a("L_afterW:")
    a(f"s_cmp_lt_u32 s50, {wo_start + NWO}"); a("s_cbranch_scc1 L_itemW")
    a("s_branch L_item_next")
    slow("W")
    item_body("Pb", wboost, 0); a("s_branch L_afterP")
    for k in range(1, NB):
        item_body(f"P{k}", win + k, 0); a("s_branch L_afterP")
        item_body(f"W{k}", win + wdelta + k, wo_per); a("s_branch L_afterW")

    def tile_tr_addr(dst, tau, base):
        a("v_lshrrev_b32 v16, 2, v14"); a("v_lshl_add_u32 v16, v15, 3, v16"); a("v_lshlrev_b32 v16, 7, v16")
        a("v_and_b32 v17, 1, v14"); a("v_lshl_add_u32 v16, v17, 3, v16")
        a("v_and_b32 v17, 1, v15"); a("v_lshrrev_b32 v18, 3, v14"); a("v_lshl_add_u32 v17, v17, 1, v18"); a("v_lshlrev_b32 v17, 1, v17")
        a("v_bfe_u32 v18, v14, 1, 1"); a("v_xor_b32 v17, v17, v18")
        if tau is not None:
            a(f"s_lshl_b32 s50, {tau}, 1"); a("v_xor_b32 v17, s50, v17")
        a(f"v_lshl_add_u32 {dst}, v17, 4, v16"); a(f"v_add_u32 {dst}, {base}, {dst}")
    C("---------------- C: layernorm (one batch row per wave) and the projection tile ----------------")
    a("L_C:")
    a("s_lshl_b32 s50, s3, 2"); a("v_add_u32 v12, s50, v10")
    a("v_mov_b32 v13, 1")
    a("v_mov_b32 v81, s33"); a("v_mov_b32 v83, s33")
    noproj("L_C_noproj")
    tile_tr_addr("v38", "s3", BIGW)
    a("v_and_b32 v17, 3, v14"); a("s_movk_i32 s50, 896"); a("v_mul_u32_u24 v16, s50, v17"); a("v_lshl_add_u32 v39, v15, 4, v16"); a(f"v_add_u32 v39, {XN}, v39")
    a("s_lshl_b32 s50, s49, 4"); a("s_lshl_b32 s52, s3, 2"); a("s_add_u32 s50, s50, s52"); a(f"s_add_u32 s50, s50, {W_QG//16}")
    a("s_lshr_b32 s51, s49, 1"); a("s_lshl_b32 s51, s51, 1"); a("s_add_u32 s51, s51, s35"); a("s_sub_u32 s51, s51, 2"); a("s_lshl_b32 s51, s51, 3")
    a("s_and_b32 s52, s49, 1"); a("s_lshl_b32 s52, s52, 2"); a("s_add_u32 s51, s51, s52"); a("s_add_u32 s51, s51, s3"); a("s_lshl_b32 s51, s51, 4"); a(f"s_add_u32 s51, s51, {W_GU//16}")
    a("s_cmp_eq_u32 s35, 1"); a("s_cselect_b32 s50, s50, s51"); a("s_cselect_b32 s51, 1024, 4")
    a("v_mad_u32_u24 v16, v14, s51, v15"); a("v_add_u32 v16, s50, v16"); a("v_lshlrev_b32 v37, 4, v16")
    a("s_waitcnt vmcnt(0)")
    stamp(1)
    for i in range(4):
        a(f"v_lshlrev_b32 v{16+2*i}, 16, v{4+i}"); a(f"v_and_b32 v{17+2*i}, 0xffff0000, v{4+i}")
    a("v_add_f32 v24, v16, v17"); a("v_add_f32 v25, v18, v19"); a("v_add_f32 v26, v20, v21"); a("v_add_f32 v27, v22, v23")
    a("v_add_f32 v24, v24, v25"); a("v_add_f32 v26, v26, v27"); a("v_add_f32 v24, v24, v26")
    red16("v_add_f32", "v24"); swapred("v_add_f32", "v24", "v25", 16); swapred("v_add_f32", "v24", "v25", 32)
    a(f"v_mul_f32 v24, {hex(f2u(1.0/448))}, v24")
    a("v_mov_b32 v26, 0")
    a("s_mov_b32 exec_hi, 0x00ffffff")
    for i in range(8): a(f"v_sub_f32 v{28+i}, v{16+i}, v24")
    for i in range(8): a(f"v_fmac_f32 v26, v{28+i}, v{28+i}")
    a("s_mov_b32 exec_hi, -1")
    rbf("v25", "v24")
    red16("v_add_f32", "v26"); swapred("v_add_f32", "v26", "v27", 16); swapred("v_add_f32", "v26", "v27", 32)
    a(f"v_mul_f32 v26, {hex(f2u(1.0/448))}, v26")
    rbf("v26", "v26")
    a(f"v_add_f32 v26, {hex(f2u(1e-5))}, v26")
    rbf("v26", "v26")
    a("v_sqrt_f32 v26, v26")
    for i in range(8): a(f"v_sub_f32 v{28+i}, v{16+i}, v25")
    rbf("v26", "v26")
    a("v_rcp_f32 v26, v26")
    for i in range(4): a(f"v_cvt_pk_bf16_f32 v{16+i}, v{28+2*i}, v{29+2*i}")
    for i in range(4):
        a(f"v_lshlrev_b32 v{28+2*i}, 16, v{16+i}"); a(f"v_and_b32 v{29+2*i}, 0xffff0000, v{16+i}")
    for i in range(8): a(f"v_mul_f32 v{28+i}, v{28+i}, v26")
    for i in range(4): a(f"v_cvt_pk_bf16_f32 v{16+i}, v{28+2*i}, v{29+2*i}")
    a(f"v_add_u32 v11, {XN}, v11")
    a("s_mov_b32 exec_hi, 0x00ffffff")
    a("ds_write_b128 v11, v[16:19]")
    a("s_mov_b32 exec_hi, -1")
    a(f"ds_write_b32 v12, v13 offset:{C_XNF}")
    spin_all4(40, C_XNF)
    for s in range(14): a(f"ds_read_b128 v[{84+4*s}:{87+4*s}], v39 offset:{64*s}")
    stamp(2)
    spin_ge("v16", C_FILL, 1)
    for s in range(14):
        a(f"ds_read_b64_tr_b16 v[{140+4*s}:{141+4*s}], v38 offset:{4096*s}")
        a(f"ds_read_b64_tr_b16 v[{142+4*s}:{143+4*s}], v38 offset:{4096*s+512}")
    for s in range(14):
        n = 26 - 2 * s
        if n <= 15 and (s % 2 == 0 or s == 13): a(f"s_waitcnt lgkmcnt({max(0, n-2) if s != 13 else 0})")
        elif s == 0: a("s_waitcnt lgkmcnt(14)")
        c = "0" if s == 0 else "v[48:51]"
        a(f"v_mfma_f32_16x16x32_bf16 v[48:51], v[{140+4*s}:{143+4*s}], v[{84+4*s}:{87+4*s}], {c}")
    a("s_add_u32 s50, s3, 4"); a("v_mov_b32 v16, s50"); a(f"ds_write_b32 v12, v16 offset:{C_CP}")
    a("s_mov_b32 s50, 0x000f000f")
    a("v_cvt_pk_bf16_f32 v80, v48, v49"); a("v_cvt_pk_bf16_f32 v82, v50, v51")
    a("s_mov_b32 exec_lo, s50"); a("s_mov_b32 exec_hi, s50")
    a("s_cmp_eq_u32 s35, 1"); a("s_cbranch_scc1 L_pub_q")
    a("global_store_dwordx4 v37, v[80:83], s[30:31] sc1")
    a("s_branch L_pub_done")
    a("L_pub_q:")
    a("global_store_dwordx4 v37, v[80:83], s[30:31]")
    a("L_pub_done:")
    a("s_mov_b64 exec, -1")
    a("L_C_noproj:")
    stamp(3)
    C("addresses: v20..23 K reads, v24..27 V reads, v28 q, v29 p read, v30 p write, v31..33 control, v34 wo, v35/v248..254 partials, v36/v38 o image, v37 result")
    a("v_xor_b32 v16, v15, v14")
    a("v_lshlrev_b32 v17, 9, v14")
    for s in range(4):
        if s: a(f"v_xor_b32 v{20+s}, {4*s}, v16"); a(f"v_lshl_add_u32 v{20+s}, v{20+s}, 4, v17")
        else: a("v_lshl_add_u32 v20, v16, 4, v17")
    a("v_lshrrev_b32 v16, 2, v14")
    a("v_lshl_add_u32 v17, v15, 3, v16")
    a("v_lshlrev_b32 v17, 9, v17")
    a("v_and_b32 v18, 1, v14"); a("v_lshl_add_u32 v17, v18, 3, v17")
    a("v_and_b32 v18, 1, v15"); a("v_lshl_add_u32 v18, v18, 2, v16"); a("v_lshlrev_b32 v18, 1, v18")
    a("v_bfe_u32 v19, v14, 1, 1")
    a("s_lshl_b32 s50, s3, 3"); a("v_add_u32 v19, s50, v19")
    a("v_xor_b32 v18, v18, v19")
    for tt in range(4):
        if tt: a(f"v_xor_b32 v{24+tt}, {2*tt}, v18"); a(f"v_lshl_add_u32 v{24+tt}, v{24+tt}, 4, v17")
        else: a("v_lshl_add_u32 v24, v18, 4, v17")
    a("v_and_b32 v16, 1, v0")
    a("v_lshlrev_b32 v17, 4, v15")
    a("v_lshl_add_u32 v28, v16, 9, v17"); a(f"v_add_u32 v28, {QI}, v28")
    a("v_lshl_add_u32 v29, v16, 10, v17"); a(f"v_add_u32 v29, {PB}, v29")
    a("v_lshrrev_b32 v16, 5, v0"); a("v_and_b32 v17, 31, v0"); a("s_lshl_b32 s50, s3, 5"); a("v_add_u32 v17, s50, v17")
    a("v_lshlrev_b32 v17, 1, v17"); a("v_lshl_add_u32 v30, v16, 10, v17"); a(f"v_add_u32 v30, {PB}, v30")
    a("v_lshl_add_u32 v31, v16, 4, v10")
    a("v_lshl_add_u32 v33, v16, 2, v10")
    a("s_lshl_b32 s50, s3, 2"); a("v_add_u32 v32, s50, v31")
    tile_tr_addr("v34", "s3", WOB)
    a("s_lshl_b32 s50, s6, 3"); a("s_add_u32 s50, s50, s4"); a("s_lshl_b32 s50, s50, 15"); a("s_lshl_b32 s51, s3, 10"); a("s_add_u32 s50, s50, s51"); a(f"s_add_u32 s50, s50, {W_H1}")
    a("v_add_u32 v16, s50, v9")
    a("s_lshl_b32 s51, s7, 12"); a("v_add_u32 v35, s51, v16")
    for i in range(1, 8):
        a(f"s_add_u32 s51, s7, {i}"); a("s_and_b32 s51, s51, 7"); a("s_lshl_b32 s51, s51, 12"); a(f"v_add_u32 v{247+i}, s51, v16")
    a("v_lshrrev_b32 v16, 5, v0"); a("v_lshlrev_b32 v16, 8, v16"); a("v_and_b32 v17, 1, v15"); a("v_lshl_add_u32 v16, v17, 5, v16"); a("v_add_u32 v16, v16, v14")
    a("s_lshl_b32 s50, s3, 6"); a("v_add_u32 v16, s50, v16"); a("v_lshlrev_b32 v16, 1, v16"); a(f"v_add_u32 v38, {OI}, v16")
    a("v_lshlrev_b32 v36, 4, v15"); a(f"v_add_u32 v36, {OI}, v36")
    a("s_mul_i32 s50, s6, 28"); a("s_lshl_b32 s51, s7, 2"); a("s_add_u32 s50, s50, s51"); a("s_add_u32 s50, s50, s3"); a("s_lshl_b32 s50, s50, 3"); a("s_add_u32 s50, s50, s4")
    a("s_lshl_b32 s50, s50, 7"); a(f"s_add_u32 s50, s50, {W_H2}"); a("v_add_u32 v37, s50, v9")
    a("s_mov_b32 s44, 0xffff0000"); a("s_mov_b32 s45, 0xffff0000"); a("s_mov_b32 s46, 0"); a("s_mov_b32 s47, -1")
    C("---------------- C: scores of every fourth 32-key item ----------------")
    spin_ge("v16", C_QRDY, 1, sleep=1)
    stamp(4)
    qreg = lambda s: 64 + 4 * s if s < 4 else 84 + 4 * (s - 4)
    for s in range(8): a(f"ds_read_b128 v[{qreg(s)}:{qreg(s)+3}], v28 offset:{64*s}")
    a("s_mov_b32 s50, s3")
    a("L_kitem:")
    a("s_add_u32 s51, s50, 2")
    a("s_sub_u32 s52, s50, 9"); a("s_cmp_ge_u32 s50, 9"); a("s_cselect_b32 s52, s52, s50")
    a("s_lshl_b32 s52, s52, 14")
    for s in range(4): a(f"v_add_u32 v{40+s}, s52, v{20+s}")
    spin_ge("v16", C_FILL, "s51", sleep=1)
    for s in range(8):
        for tl in range(2):
            a(f"ds_read_b128 v[{100+8*s+4*tl}:{103+8*s+4*tl}], v{40+(s&3)} offset:{(s>>2)*256 + tl*8192}")
    a("s_add_u32 s51, s50, 4"); a("s_min_u32 s51, s51, 16"); a("s_add_u32 s51, s51, 4")
    a("v_mov_b32 v16, s51")
    a(f"ds_write_b32 v12, v16 offset:{C_CP}")
    a("v_mov_b32 v63, v62"); a("v_mov_b32 v62, v61"); a("v_mov_b32 v61, v60")
    for s in range(8):
        if s % 2 == 0: a(f"s_waitcnt lgkmcnt({13 - 2*s})")
        for tl in range(2):
            c = "0" if s == 0 else f"v[{48+4*tl}:{51+4*tl}]"
            a(f"v_mfma_f32_16x16x32_bf16 v[{48+4*tl}:{51+4*tl}], v[{qreg(s)}:{qreg(s)+3}], v[{100+8*s+4*tl}:{103+8*s+4*tl}], {c}")
    a("v_cndmask_b32 v16, v48, v52, s[44:45]"); a("v_cndmask_b32 v17, v49, v53, s[44:45]"); a("v_cndmask_b32 v16, v16, v17, s[46:47]")
    rbf("v60", "v16")
    a("s_add_u32 s50, s50, 4"); a("s_cmp_lt_u32 s50, 16"); a("s_cbranch_scc1 L_kitem")
    stamp(5)
    C("---------------- C: softmax of the 512 keys against their own maximum ----------------")
    a("v_max_f32 v16, v60, v61"); a("v_max3_f32 v16, v16, v62, v63")
    red16("v_max_f32", "v16"); swapred("v_max_f32", "v16", "v17", 16)
    a(f"ds_write_b32 v32, v16 offset:{C_MX}")
    a(f"ds_write_b32 v12, v13 offset:{C_MXF}")
    spin_all4(40, C_MXF)
    a(f"ds_read_b128 v[40:43], v31 offset:{C_MX}")
    a("s_waitcnt lgkmcnt(0)")
    a("v_max_f32 v16, v40, v41"); a("v_max3_f32 v16, v16, v42, v43")
    a(f"s_mov_b32 s50, {hex(f2u(CEXP))}")
    for i in range(4): a(f"v_sub_f32 v{60+i}, v{60+i}, v16")
    for i in range(4): a(f"v_mul_f32 v{60+i}, s50, v{60+i}")
    for i in range(4): a(f"v_exp_f32 v{60+i}, v{60+i}")
    a("v_add_f32 v17, v60, v61"); a("v_add_f32 v18, v62, v63"); a("v_add_f32 v17, v17, v18")
    a("v_cvt_pk_bf16_f32 v40, v63, v62"); a("v_cvt_pk_bf16_f32 v41, v61, v60")
    a("ds_write_b16 v30, v40 offset:0"); a("ds_write_b16_d16_hi v30, v40 offset:256")
    a("ds_write_b16 v30, v41 offset:512"); a("ds_write_b16_d16_hi v30, v41 offset:768")
    red16("v_add_f32", "v17"); swapred("v_add_f32", "v17", "v18", 16)
    a(f"ds_write_b32 v32, v17 offset:{C_LS}")
    a(f"ds_write_b32 v12, v13 offset:{C_PF}")
    for i in range(16): a(f"v_mov_b32 v{64+i}, 0")
    spin_all4(40, C_PF)
    stamp(6)
    C("---------------- C: p @ V, 64 head dimensions per wave ----------------")
    a("s_mov_b32 s50, 0"); a("s_mov_b32 s52, 0")
    a("L_vitem:")
    a("ds_read_b128 v[44:47], v29")
    a("v_add_u32 v29, 64, v29")
    for tt in range(4): a(f"v_add_u32 v{40+tt}, s52, v{24+tt}")
    a("s_add_u32 s51, s50, 18")
    spin_ge("v16", C_FILL, "s51")
    for tt in range(4):
        a(f"ds_read_b64_tr_b16 v[{96+4*tt}:{97+4*tt}], v{40+tt}")
        a(f"ds_read_b64_tr_b16 v[{98+4*tt}:{99+4*tt}], v{40+tt} offset:2048")
    a("s_add_u32 s51, s50, 21"); a("v_mov_b32 v16, s51")
    a(f"ds_write_b32 v12, v16 offset:{C_CP}")
    a(f"s_add_u32 s52, s52, {SLOT}"); a(f"s_cmp_eq_u32 s52, {5*SLOT}"); a("s_cselect_b32 s52, 0, s52")
    for tt in range(4):
        a(f"s_waitcnt lgkmcnt({7-2*tt})")
        a(f"v_mfma_f32_16x16x32_bf16 v[{64+4*tt}:{67+4*tt}], v[44:47], v[{96+4*tt}:{99+4*tt}], v[{64+4*tt}:{67+4*tt}]")
    a("s_add_u32 s50, s50, 1"); a("s_cmp_lt_u32 s50, 14"); a("s_cbranch_scc1 L_vitem")
    if not spec: a("s_cmp_eq_u32 s50, 16"); a("s_cbranch_scc1 L_vdone")
    H1L = [(120 + 4 * i, f"v{248+i}") for i in range(7)]
    a("s_cmp_eq_u32 s50, 15"); a("s_cbranch_scc1 L_first")
    C("after item 13: softmax scale of this split, same-die flag, wo operands")
    spin_ge("v16", C_FACF, 1)
    a(f"ds_read_b32 v39, v33 offset:{C_FAC}"); a(f"ds_read_b32 v16, v10 offset:{C_LOC}")
    for s in range(16):
        r = 150 + 4 * s
        a(f"ds_read_b64_tr_b16 v[{r}:{r+1}], v34 offset:{4096*s}")
        a(f"ds_read_b64_tr_b16 v[{r+2}:{r+3}], v34 offset:{4096*s+512}")
    a("s_waitcnt lgkmcnt(0)"); a("v_readfirstlane_b32 s57, v16")
    a("s_branch L_vitem")
    C("after item 14: first look at the partials of the other seven splits")
    a("L_first:")
    if spec:
        a("s_cmp_eq_u32 s7, 7"); a("s_cbranch_scc1 L_last")
        for (d, va) in H1L: a(f"global_load_dwordx4 v[{d}:{d+3}], {va}, s[30:31] sc1")
        C("last item: its operand reads follow the progress word in LDS order, so they are good whenever the word is")
        a("L_last:")
        a("ds_read_b128 v[44:47], v29")
        for tt in range(4): a(f"v_add_u32 v{40+tt}, s52, v{24+tt}")
        a("L_last_spin:")
        a(f"ds_read_b32 v16, v10 offset:{C_FILL}")
        for tt in range(4):
            a(f"ds_read_b64_tr_b16 v[{96+4*tt}:{97+4*tt}], v{40+tt}")
            a(f"ds_read_b64_tr_b16 v[{98+4*tt}:{99+4*tt}], v{40+tt} offset:2048")
        budget()
        a("s_waitcnt lgkmcnt(6)")
        a("v_cmp_gt_u32 vcc, 33, v16"); a("s_cbranch_vccnz L_last_spin")
        for tt in range(4):
            if tt: a(f"s_waitcnt lgkmcnt({6-2*tt})")
            a(f"v_mfma_f32_16x16x32_bf16 v[{64+4*tt}:{67+4*tt}], v[44:47], v[{96+4*tt}:{99+4*tt}], v[{64+4*tt}:{67+4*tt}]")
    else:
        a("s_cmp_eq_u32 s7, 7"); a("s_cbranch_scc1 L_vitem")
        for (d, va) in H1L: a(f"global_load_dwordx4 v[{d}:{d+3}], {va}, s[30:31] sc1")
        a("s_branch L_vitem")
        a("L_vdone:")
        a("s_nop 2")
    stamp(7)
    a("v_cndmask_b32 v16, v64, v72, s[44:45]"); a("v_cndmask_b32 v17, v65, v73, s[44:45]")
    a("v_cndmask_b32 v18, v68, v76, s[44:45]"); a("v_cndmask_b32 v19, v69, v77, s[44:45]")
    a("v_cndmask_b32 v16, v16, v17, s[46:47]"); a("v_cndmask_b32 v18, v18, v19, s[46:47]")
    a("s_cmp_eq_u32 s57, 1")
    a("v_mul_f32 v80, v16, v39"); a("v_mul_f32 v82, v18, v39")
    a("s_cbranch_scc0 L_st_far")
    a("global_store_dwordx4 v35, v[80:83], s[30:31]")
    a("L_st_done:")
    stamp(8)
    a("s_cmp_eq_u32 s7, 7"); a("s_cbranch_scc1 L_red")
    a("s_waitcnt vmcnt(1)")
    a("L_h1_chk:")
    for i, (d, va) in enumerate(H1L): a(f"v_cmp_ne_u32 s[{68+2*i}:{69+2*i}], s33, v{d+3}")
    a("v_xor_b32 v96, s33, v121"); a("v_xor_b32 v97, s33, v125")
    a("s_or_b64 vcc, s[68:69], s[70:71]"); a("s_or_b64 s[82:83], s[72:73], s[74:75]"); a("s_or_b64 s[84:85], s[76:77], s[78:79]")
    a("v_bitop3_b32 v96, v129, s33, v96 bitop3:0xbe"); a("v_bitop3_b32 v97, v133, s33, v97 bitop3:0xbe")
    a("s_or_b64 vcc, vcc, s[80:81]"); a("s_or_b64 s[82:83], s[82:83], s[84:85]"); a("s_or_b64 vcc, vcc, s[82:83]")
    a("s_cbranch_scc1 L_h1_more")
    a("L_h1_ver:")
    a("v_bitop3_b32 v96, v137, s33, v96 bitop3:0xbe"); a("v_bitop3_b32 v97, v141, s33, v97 bitop3:0xbe")
    a("v_bitop3_b32 v96, v145, s33, v96 bitop3:0xbe"); a("v_or_b32 v96, v96, v97"); a("v_cmp_ne_u32 vcc, 0, v96")
    a("s_cbranch_vccnz L_h1_all")
    stamp(9)
    C("o (512 values, bf16) -> LDS ; o @ wo[512 x 16 columns] per wave")
    a("v_add_f32 v56, v80, v120"); a("v_add_f32 v57, v82, v122")
    a("v_add_f32 v124, v124, v128"); a("v_add_f32 v126, v126, v130")
    a("v_add_f32 v132, v132, v136"); a("v_add_f32 v134, v134, v138")
    a("v_add_f32 v140, v140, v144"); a("v_add_f32 v142, v142, v146")
    a("v_add_f32 v56, v56, v124"); a("v_add_f32 v57, v57, v126")
    a("v_add_f32 v132, v132, v140"); a("v_add_f32 v134, v134, v142")
    a("v_add_f32 v56, v56, v132"); a("v_add_f32 v57, v57, v134")
    a("v_cvt_pk_bf16_f32 v16, v56, v57")
    a("ds_write_b16 v38, v16"); a("ds_write_b16_d16_hi v38, v16 offset:32")
    a(f"ds_write_b32 v12, v13 offset:{C_OF}")
    if spec:
        a("L_o_spin:")
        a(f"ds_read_b128 v[40:43], v10 offset:{C_OF}")
        for s in range(8): a(f"ds_read_b128 v[{84+4*s}:{87+4*s}], v36 offset:{64*s}")
        budget()
        a("s_waitcnt lgkmcnt(8)")
        a("v_min_u32 v40, v40, v41"); a("v_min3_u32 v40, v40, v42, v43"); a("v_cmp_eq_u32 vcc, 0, v40"); a("s_cbranch_vccnz L_o_spin")
        for s in range(8, 16): a(f"ds_read_b128 v[{84+4*s}:{87+4*s}], v36 offset:{64*s}")
    else:
        spin_all4(40, C_OF)
        for s in range(16): a(f"ds_read_b128 v[{84+4*s}:{87+4*s}], v36 offset:{64*s}")
    for s in range(16):
        if s % 4 == 0: a(f"s_waitcnt lgkmcnt({12 - s})")
        acc = 48 + 4 * (s & 1)
        c = "0" if s < 2 else f"v[{acc}:{acc+3}]"
        a(f"v_mfma_f32_16x16x32_bf16 v[{acc}:{acc+3}], v[{84+4*s}:{87+4*s}], v[{150+4*s}:{153+4*s}], {c}")
    a("v_add_f32 v80, v48, v52")
    a(f"v_mov_b32_dpp v82, v80 row_ror:8 {DPPF}")
    a("s_mov_b64 exec, 0xff")
    a("global_store_dwordx4 v37, v[80:83], s[30:31] sc1")
    stamp(10)
    dump_stamps()
    a("s_endpgm")
    a("L_h1_all:")
    for i in range(7): a(f"s_mov_b64 s[{68+2*i}:{69+2*i}], -1")
    a("L_h1_more:")
    a("s_mov_b32 s56, 0")
    for i in range(7):
        a(f"s_cmp_lg_u64 s[{68+2*i}:{69+2*i}], 0"); a("s_addc_u32 s56, s56, s56")
    a("s_sub_u32 s55, s56, 1"); a("s_and_b32 s55, s55, s56"); a("s_cbranch_scc0 L_h1_one")
    for i, (d, va) in enumerate(H1L):
        a(f"s_mov_b64 exec, s[{68+2*i}:{69+2*i}]")
        a(f"global_load_dwordx4 v[{d}:{d+3}], {va}, s[30:31] sc1")
    a("s_mov_b64 exec, -1")
    budget()
    a("s_waitcnt vmcnt(0)")
    a("s_branch L_h1_chk")
    a("L_h1_one:")
    for i in range(6):
        a(f"s_bitcmp1_b32 s56, {6-i}"); a(f"s_cbranch_scc1 L_h1_t{i}")
    for i in (6, 0, 1, 2, 3, 4, 5):
        d, va = H1L[i]
        a(f"L_h1_t{i}:")
        a(f"global_load_dwordx4 v[{d}:{d+3}], {va}, s[30:31] sc1")
        budget()
        a("s_waitcnt vmcnt(0)")
        a(f"v_cmp_ne_u32 vcc, s33, v{d+3}")
        a("v_xor_b32 v96, s33, v121"); a("v_xor_b32 v97, s33, v125")
        a(f"s_cbranch_vccnz L_h1_t{i}")
        a("v_bitop3_b32 v96, v129, s33, v96 bitop3:0xbe"); a("v_bitop3_b32 v97, v133, s33, v97 bitop3:0xbe")
        a("s_branch L_h1_ver")
    a("L_st_far:")
    a("global_store_dwordx4 v35, v[80:83], s[30:31] sc1")
    a("s_branch L_st_done")

    C("---------------- C of j = 7, g < 7: final reduction of 16 columns (batch b, tile 4g + wave) ----------------")
    a("L_red:")
    a("s_cmp_eq_u32 s4, 7"); a("s_cbranch_scc1 L_exit")
    a("s_lshl_b32 s52, s4, 2"); a("s_add_u32 s52, s52, s3"); a("s_mul_i32 s50, s6, 28"); a("s_add_u32 s50, s50, s52")
    a("s_mul_i32 s53, s6, 448"); a("s_lshl_b32 s54, s52, 4"); a("s_add_u32 s53, s53, s54")
    a("v_lshrrev_b32 v16, 5, v0"); a("v_and_b32 v17, 7, v0"); a("v_lshl_add_u32 v18, v16, 3, v17")
    a("v_add_u32 v19, s53, v18"); a("v_lshlrev_b32 v24, 1, v19")
    a("s_mul_i32 s54, s6, 7"); a("s_add_u32 s53, s4, s54"); a("s_lshl_b32 s53, s53, 9")
    a("s_lshl_b32 s54, s3, 6"); a("s_add_u32 s53, s53, s54"); a(f"s_add_u32 s53, s53, {W_OG}")
    a("v_bfe_u32 v19, v18, 1, 1"); a("v_lshlrev_b32 v19, 8, v19"); a("v_lshrrev_b32 v20, 2, v18"); a("v_lshl_add_u32 v19, v20, 4, v19")
    a("v_and_b32 v20, 1, v18"); a("v_lshl_add_u32 v19, v20, 3, v19"); a("v_add_u32 v19, s53, v19")
    a("v_bfe_u32 v21, v0, 3, 2"); a(f"s_movk_i32 s54, {28*512}")
    a("v_mad_u32_u24 v25, v21, s54, v19")
    a(f"v_add_u32 v27, {4*28*512}, v25"); a(f"v_add_u32 v28, {8*28*512}, v25")
    a("v_min_u32 v22, 1, v21"); a("v_add_u32 v22, 12, v22"); a("v_mad_u32_u24 v29, v22, s54, v19")
    a("v_cmp_gt_u32 s[44:45], 2, v21")
    a("s_lshl_b32 s56, s50, 10"); a(f"s_add_u32 s56, s56, {W_H2}"); a("v_add_u32 v26, s56, v9")
    a("global_load_ushort v30, v24, s[8:9]")
    a("s_branch L_og_first")
    a("L_og_retry:")
    budget()
    a("s_waitcnt vmcnt(0)")
    a("L_og_first:")
    for k, va in enumerate(("v25", "v27", "v28", "v29")): a(f"global_load_dwordx2 v[{32+2*k}:{33+2*k}], {va}, s[30:31] sc1")
    def gate():
        a("s_waitcnt vmcnt(1)")
        tagcheck(["v33", "v35", "v37", "v39"], "v16", "v17", "L_og_retry")
        a("v_cndmask_b32 v38, 0, v38, s[44:45]"); a("v_add_f32 v32, v32, v34"); a("v_add_f32 v36, v36, v38"); a("v_add_f32 v32, v32, v36")
        a(f"v_add_f32_dpp v32, v32, v32 row_ror:8 {DPPF}")
        swapred("v_add_f32", "v32", "v33", 16)
        rbf("v32", "v32")
        a(f"v_mul_f32 v33, {hex(f2u(-LOG2E))}, v32"); a("v_exp_f32 v33, v33"); a("v_add_f32 v33, 1.0, v33"); a("v_rcp_f32 v33, v33")
        a("v_mul_f32 v32, v32, v33"); rbf("v32", "v32")
        a("v_lshlrev_b32 v30, 16, v30")
        stamp(11)
    mpoll([(48, "v26", 0)], "h2", 16, pre=gate)
    stamp(12)
    a("v_permlane32_swap_b32 v48, v50"); a("v_add_f32 v48, v48, v50")
    swapred("v_add_f32", "v48", "v50", 16)
    a(f"v_add_f32_dpp v48, v48, v48 row_ror:8 {DPPF}")
    rbf("v48", "v48")
    a("v_mul_f32 v48, v48, v32"); rbf("v48", "v48")
    a("v_add_f32 v48, v48, v30"); a("v_cvt_pk_bf16_f32 v48, v48, v48")
    a("s_mov_b32 exec_lo, 0xff"); a("s_mov_b32 exec_hi, 0xff")
    a("global_store_short v24, v48, s[26:27]")
    a("L_exit:")
    stamp(13)
    dump_stamps()
    a("s_endpgm")

    nq = [0]
    def needq():
        nq[0] += 1; k = nq[0]
        a("s_cmp_eq_u32 s58, 1"); a(f"s_cbranch_scc0 L_nq_skip{k}")
        a(f"L_nq{k}:")
        a("global_load_dwordx4 v[56:59], v30, s[30:31] sc1")
        budget()
        a("s_waitcnt vmcnt(0)")
        tagcheck(["v57", "v59"], "v18", "v19", f"L_nq{k}")
        a("global_store_dwordx4 v30, v[56:59], s[30:31] sc1")
        a("s_mov_b32 s58, 0")
        a(f"L_nq_skip{k}:")
    C("---------------- Q: q gather ; s58 = 1 while this workgroup's q tile has not been written through ----------------")
    a("L_Q:")
    a("s_lshl_b32 s50, s6, 10"); a("s_lshl_b32 s51, s4, 7"); a("s_add_u32 s50, s50, s51"); a("s_lshl_b32 s50, s50, 4"); a(f"s_add_u32 s50, s50, {W_QG}")
    a("v_add_u32 v25, s50, v9")
    a("v_lshlrev_b32 v26, 3, v0"); a(f"v_add_u32 v26, {QI}, v26")
    a("v_mov_b32 v43, s33")
    a("s_lshl_b32 s50, s49, 8"); a(f"s_add_u32 s50, s50, {W_QG}"); a("v_lshlrev_b32 v16, 14, v15"); a("v_lshl_add_u32 v16, v14, 4, v16"); a("v_add_u32 v30, s50, v16")
    a("s_cmp_eq_u32 s35, 1"); a("s_cselect_b32 s58, 1, 0")
    a(f"s_mov_b32 s55, {q_rounds}")
    spin_ge("v16", C_FILL, qpoll_fill, sleep=1)
    stamp(1)
    def qhook():
        a("s_sub_u32 s55, s55, 1"); a("s_cbranch_scc0 L_q_nohook"); needq(); a("L_q_nohook:")
    mpoll([(48, "v25", 0), (52, "v25", 1024)], "q", 16, sleep=4, hook=qhook)
    a("ds_write2_b32 v26, v48, v50 offset0:0 offset1:1")
    a("ds_write2_b32 v26, v52, v54 offset0:128 offset1:129")
    a("v_mov_b32 v16, 1"); a(f"ds_write_b32 v10, v16 offset:{C_QRDY}")
    stamp(2)
    C("(max, sum, die id) entries: one line per workgroup ; 16-lane row k of the gather looks at group ((b+k)&3, g)")
    a("v_and_b32 v17, 1, v0"); a("v_lshlrev_b32 v16, 4, v17")
    a("v_add_u32 v18, s6, v15"); a("v_and_b32 v18, 3, v18"); a("v_lshlrev_b32 v18, 13, v18")
    a("v_lshrrev_b32 v19, 1, v14"); a("v_lshl_add_u32 v18, v19, 7, v18"); a("v_add_u32 v18, v18, v16")
    a("s_lshl_b32 s50, s4, 10"); a(f"s_add_u32 s50, s50, {W_MLG}"); a("v_add_u32 v25, s50, v18")
    a("s_lshl_b32 s51, s6, 13"); a("s_add_u32 s50, s50, s51"); a("s_lshl_b32 s51, s7, 7"); a("s_add_u32 s50, s50, s51"); a("v_add_u32 v24, s50, v16")
    a("v_add_u32 v27, v16, v10")
    a("v_lshl_add_u32 v28, v17, 2, v10")
    a("s_getreg_b32 s52, hwreg(HW_REG_XCC_ID, 0, 4)")
    a("s_xor_b32 s53, s52, s33"); a("v_mov_b32 v41, s53")
    spin_all4(44, C_PF, sleep=4)
    a(f"ds_read_b128 v[44:47], v27 offset:{C_MX}"); a(f"ds_read_b128 v[48:51], v27 offset:{C_LS}")
    a("s_waitcnt lgkmcnt(0)")
    a("v_max_f32 v40, v44, v45"); a("v_max3_f32 v40, v40, v46, v47")
    a("v_add_f32 v48, v48, v49"); a("v_add_f32 v50, v50, v51"); a("v_add_f32 v42, v48, v50")
    a("s_mov_b64 exec, 3")
    a("global_store_dwordx4 v24, v[40:43], s[30:31]")
    a("s_mov_b64 exec, -1")
    a(f"s_mov_b32 s55, {ml_rounds}")
    stamp(3)
    spin_ge("v16", C_FILL, ml_fill, sleep=8)
    def mlload():
        a("global_load_dwordx4 v[48:51], v25, s[30:31] sc1")
        a("s_waitcnt vmcnt(0)")
        a("v_xor_b32 v16, s33, v49"); a("v_lshrrev_b32 v17, 4, v16"); a("v_bitop3_b32 v17, v51, s33, v17 bitop3:0xbe")
        a("v_cmp_ne_u32 s[56:57], s52, v16"); a("v_cmp_ne_u32 s[60:61], 0, v17")
        a("s_andn2_b64 s[56:57], s[56:57], s[60:61]")
    def mlpub():
        a("s_mov_b64 exec, 3"); a("global_store_dwordx4 v24, v[40:43], s[30:31] sc1"); a("s_mov_b64 exec, -1")
    a("s_branch L_ml_first")
    a("L_ml_retry:")
    budget()
    C("own group incomplete: after a few rounds, or on a foreign die id, write through what was published so far")
    a("s_cmp_eq_u32 s55, 1000"); a("s_cbranch_scc1 L_ml_again")
    a("s_and_b32 s59, s56, 0xffff"); a("s_cbranch_scc1 L_ml_pub")
    a("s_sub_u32 s55, s55, 1"); a("s_cbranch_scc0 L_ml_again")
    a("L_ml_pub:")
    mlpub(); needq()
    a("s_movk_i32 s55, 1000")
    a("L_ml_again:")
    a("s_sleep 4")
    a("L_ml_first:")
    mlload()
    a("s_and_b32 s59, s60, 0xffff"); a("s_cbranch_scc1 L_ml_retry")
    a("s_and_b32 s59, s56, 0xffff"); a(f"s_cselect_b32 s54, 0, {0 if forcesc1 else 1}"); a("s_cbranch_scc0 L_ml_ok")
    mlpub()
    a("L_ml_ok:")
    C("scale of this split = exp(own max - group max) / group sum")
    a(f"s_mov_b32 s50, {hex(f2u(CEXP))}")
    a("v_mov_b32 v44, v48")
    for m in ("quad_perm:[2,3,0,1]", "row_ror:4", "row_ror:8"): a(f"v_max_f32_dpp v44, v44, v44 {m} {DPPF}")
    a("v_sub_f32 v45, v48, v44"); a("v_sub_f32 v46, v40, v44")
    a("v_mul_f32 v45, s50, v45"); a("v_mul_f32 v46, s50, v46")
    a("v_exp_f32 v45, v45"); a("v_exp_f32 v46, v46")
    a("v_mul_f32 v45, v45, v50")
    for m in ("quad_perm:[2,3,0,1]", "row_ror:4", "row_ror:8"): a(f"v_add_f32_dpp v45, v45, v45 {m} {DPPF}")
    a("v_rcp_f32 v45, v45")
    a("v_mov_b32 v17, s54")
    a("v_mul_f32 v46, v46, v45")
    a("v_mov_b32 v20, 1")
    a("s_mov_b64 exec, 3")
    a(f"ds_write_b32 v28, v46 offset:{C_FAC}")
    a(f"ds_write_b32 v10, v17 offset:{C_LOC}")
    a(f"ds_write_b32 v10, v20 offset:{C_FACF}")
    a("s_mov_b64 exec, -1")
    stamp(4)
    C("are all 32 workgroups of this g on this die?  decides the q write-through and the FFN partial stores")
    a("s_cmp_eq_u32 s35, 4"); a("s_cselect_b32 s59, 1, s58"); a("s_cmp_eq_u32 s59, 0"); a("s_cbranch_scc1 L_q_exit")
    a(f"s_mov_b32 s55, {all_rounds}")
    a("L_all:")
    a("s_cmp_lg_u64 s[56:57], 0"); a("s_cbranch_scc1 L_all_no")
    a("s_cmp_eq_u64 s[60:61], 0"); a("s_cbranch_scc1 L_all_yes")
    a("s_sub_u32 s55, s55, 1"); a("s_cbranch_scc1 L_all_no")
    a("s_sleep 8")
    mlload()
    a("s_branch L_all")
    a("L_all_no:")
    needq()
    a("v_mov_b32 v20, 2")
    a("L_all_yes:")
    a(f"ds_write_b32 v10, v20 offset:{C_ALL}")
    a("L_q_exit:")
    stamp(5)
    dump_stamps()
    a("s_endpgm")

    C("---------------- F: h = silu(gate) * up for 128 rows, h @ w2[128 x 64] ----------------")
    a("L_F:")
    a("s_cmp_eq_u32 s2, 255"); a("s_cbranch_scc1 L_E")
    a("s_cmp_eq_u32 s35, 4"); a("s_cbranch_scc0 L_end")
    tile_tr_addr("v20", None, F2B)
    for tau in range(1, 4): a(f"v_xor_b32 v{20+tau}, {32*tau}, v20")
    a("s_lshl_b32 s52, s5, 12"); a(f"s_add_u32 s52, s52, {W_GU}"); a("v_add_u32 v25, s52, v9")
    a("s_mul_i32 s52, s5, 28"); a("s_add_u32 s52, s52, s4"); a("s_lshl_b32 s52, s52, 9"); a(f"s_add_u32 s52, s52, {W_OG}")
    a("v_and_b32 v17, 3, v14"); a("v_lshrrev_b32 v18, 2, v14"); a("v_lshlrev_b32 v18, 6, v18"); a("v_lshl_add_u32 v18, v15, 4, v18")
    a(f"s_movk_i32 s51, {7*512}"); a("v_mad_u32_u24 v16, v17, s51, v18"); a("v_add_u32 v24, s52, v16")
    a("v_bfe_u32 v16, v0, 2, 2"); a("v_lshlrev_b32 v16, 8, v16"); a("v_lshl_add_u32 v16, v15, 5, v16"); a("v_lshl_add_u32 v26, v17, 3, v16"); a(f"v_add_u32 v26, {HA}, v26")
    a("v_lshlrev_b32 v16, 8, v17"); a("v_lshl_add_u32 v27, v15, 4, v16"); a(f"v_add_u32 v27, {HA}, v27")
    a("s_mov_b32 s44, 0xf0f0f0f0"); a("s_mov_b32 s45, 0xf0f0f0f0"); a("s_mov_b32 s46, 0xff00ff00"); a("s_mov_b32 s47, 0xff00ff00")
    spin_ge("v16", C_FILL, 1, sleep=2)
    for s in range(4):
        for tau in range(4):
            r = 128 + (s * 4 + tau) * 4
            a(f"ds_read_b64_tr_b16 v[{r}:{r+1}], v{20+tau} offset:{4096*s}")
            a(f"ds_read_b64_tr_b16 v[{r+2}:{r+3}], v{20+tau} offset:{4096*s+512}")
    a(f"v_mov_b32 v16, {BIG}"); a("s_waitcnt lgkmcnt(0)"); a(f"ds_write_b32 v10, v16 offset:{C_FP}")
    stamp(1)
    spin_ge("v16", C_FILL, gu_fill, sleep=8)
    a("L_h_retry:")
    for i in range(4): a(f"global_load_dwordx4 v[{64+4*i}:{67+4*i}], v25, s[30:31] offset:{1024*i} sc1")
    budget()
    a("s_waitcnt vmcnt(0)")
    tagcheck([f"v{65+2*i}" for i in range(8)], "v16", "v17", "L_h_retry")
    stamp(2)
    for k in range(4):
        a(f"v_lshlrev_b32 v{84+2*k}, 16, v{64+2*k}"); a(f"v_and_b32 v{85+2*k}, 0xffff0000, v{64+2*k}")
        a(f"v_lshlrev_b32 v{92+2*k}, 16, v{72+2*k}"); a(f"v_and_b32 v{93+2*k}, 0xffff0000, v{72+2*k}")
    a(f"s_mov_b32 s50, {hex(f2u(-LOG2E))}")
    for i in range(8): a(f"v_mul_f32 v{100+i}, s50, v{84+i}")
    for i in range(8): a(f"v_exp_f32 v{100+i}, v{100+i}")
    for i in range(8): a(f"v_add_f32 v{100+i}, 1.0, v{100+i}")
    for i in range(8): a(f"v_rcp_f32 v{100+i}, v{100+i}")
    for i in range(8): a(f"v_mul_f32 v{100+i}, v{100+i}, v{84+i}")
    for i in range(8): rbf(f"v{100+i}", f"v{100+i}")
    for i in range(8): a(f"v_mul_f32 v{100+i}, v{100+i}, v{92+i}")
    for k in range(4): a(f"v_cvt_pk_bf16_f32 v{108+k}, v{100+2*k}, v{101+2*k}")
    a("ds_write_b64 v26, v[108:109]"); a("ds_write_b64 v26, v[110:111] offset:128")
    for s in range(4): a(f"ds_read_b128 v[{64+4*s}:{67+4*s}], v27 offset:{64*s}")
    a("s_waitcnt lgkmcnt(0)")
    for s in range(4):
        for tau in range(4):
            r = 128 + (s * 4 + tau) * 4
            c = "0" if s == 0 else f"v[{84+4*tau}:{87+4*tau}]"
            a(f"v_mfma_f32_16x16x32_bf16 v[{84+4*tau}:{87+4*tau}], v[{r}:{r+3}], v[{64+4*s}:{67+4*s}], {c}")
    for k in (41, 43, 45, 47): a(f"v_mov_b32 v{k}, s33")
    for r in range(4):
        a(f"v_cndmask_b32 v16, v{84+r}, v{88+r}, s[44:45]"); a(f"v_cndmask_b32 v17, v{92+r}, v{96+r}, s[44:45]")
        a(f"v_cndmask_b32 v{40+2*r}, v16, v17, s[46:47]")
    spin_ge("v16", C_ALL, 1, sleep=2)
    a("v_cmp_eq_u32 vcc, 1, v16"); a("s_cbranch_vccz L_og_far")
    a("global_store_dwordx4 v24, v[40:43], s[30:31]")
    a("global_store_dwordx4 v24, v[44:47], s[30:31] offset:256")
    a("s_branch L_exit")
    a("L_og_far:")
    a("global_store_dwordx4 v24, v[40:43], s[30:31] sc1")
    a("global_store_dwordx4 v24, v[44:47], s[30:31] offset:256 sc1")
    a("s_branch L_exit")
    C("---------------- wave 6 of workgroup 255: one result row per batch complete => every workgroup has read the tag word; renew it ----------------")
    a("L_E:")
    for k in range(4): a(f"v_add_u32 v{28+k}, {W_H2 + k*28*1024}, v9")
    spin_ge("v16", C_FILL, 33, sleep=16)
    mpoll([(48 + 4 * k, f"v{28+k}", 0) for k in range(4)], "ew", 16)
    a("s_mov_b64 exec, 1")
    a("v_mov_b32 v16, 0"); a("v_mov_b32 v17, s33")
    a("global_store_dword v16, v17, s[30:31]")
    a("s_branch L_exit")
    a("L_end:")
    a("s_endpgm")
    C("a poll bound ran out")
    a("L_fail:")
    a("s_mov_b64 exec, 1")
    a("s_lshl_b32 s60, s3, 2"); a("s_or_b32 s61, s2, 0xbad00000")
    a("v_mov_b32 v16, s60"); a("v_mov_b32 v17, s61")
    a("global_store_dword v16, v17, s[28:29]")
    a("s_endpgm")
    a.raw('.section .rodata,"a"'); a.raw(".p2align 6"); a.raw(f".amdhsa_kernel {KNAME}_kernel")
    a.raw("  .amdhsa_next_free_vgpr 256"); a.raw("  .amdhsa_next_free_sgpr 96"); a.raw("  .amdhsa_accum_offset 256")
    a.raw("  .amdhsa_group_segment_fixed_size 0"); a.raw("  .amdhsa_kernarg_size 96"); a.raw("  .amdhsa_user_sgpr_count 2")
    a.raw("  .amdhsa_user_sgpr_kernarg_segment_ptr 1"); a.raw("  .amdhsa_system_sgpr_workgroup_id_x 1"); a.raw(".end_amdhsa_kernel")
    return a.text()

STAMPS = {'C': 11, 'L': 4, 'Q': 7, 'F': 4, 'R': 6}
if __name__ == "__main__":
    import ast
    kw = {}
    for x in sys.argv[2:]:
        k, v = x.split("=", 1)
        try: kw[k] = ast.literal_eval(v)
        except Exception: kw[k] = v
    open(sys.argv[1], "w").write(gen(**kw))
```

```python
import sys, struct
from asmlib import Asm
KNAME = "recurrent_scan__gqa_block_cached__glu_gated_swiglu__decode"

SLOT = 16384; NS = 9
BIGW = 6 * SLOT; WOB = 5 * SLOT; F2B = 8 * SLOT
CTRL = BIGW + 57344; XN = CTRL + 256; QI = XN + 3584; PB = QI + 1024; HA = PB + 2048; LDS_END = HA + 1024; OI = XN
assert LDS_END <= 163840
C_CP = 0; C_FP = 16; C_FILL = 32; C_XNF = 48; C_QRDY = 64; C_MXF = 80; C_PF = 96; C_FACF = 112
C_MX = 128; C_LS = 160; C_FAC = 192; C_LOC = 200; C_ALL = 204; C_OF = 224
W_QG = 0x1000; W_GU = 0x20000; W_OG = 0x40000; W_MLG = 0x80000; W_H1 = 0x100000; W_H2 = 0x200000; W_DIAG = 0x400000
BIG = 1000
CEXP = 0.09016844005556021
LOG2E = 1.4426950408889634
def f2u(f): return struct.unpack("<I", struct.pack("<f", f))[0]

HEADER = """;
; Hand-offs between workgroups are 16-byte {value, tag, value, tag} granules in d_ws; tag = hash of a word of d_ws that the launch
; rewrites once every workgroup has read it.  Stores stay in the die's L2 only when the die ids carried by the (max, sum) entries
; prove that all readers sit on the same die; otherwise (or after a few empty polls) they are written through.
"""

def gen(diag=False, win=18, w0=28, wdelta=6, wboost=30, endboost=2, lv0=2, lvF=4, lv7=8, lvH=12, lvlate=3, NB=5, nA=7, nB=7,
        wo_start=19, wo_per=6, qpoll_fill=3, ml_fill=24, gu_fill=28, q_rounds=6, ml_rounds=4, all_rounds=4, forcesc1=False, spec=True, tlb=0, wstart=26, nstart=2, pf='sc1', pfh1='sc1', pfh2='sc1', xf=''):
    a = Asm()
    C = a.comment
    hdr = open("cdna_kernels/" + KNAME + ".s.ref").read().split("; Override launch")[0]
    a.raw(hdr.rstrip())
    a.raw(f"; @launch grid=(256,1,1) block=(448,1,1) lds={LDS_END}")
    a.raw(HEADER.rstrip())
    a.raw('.amdgcn_target "amdgcn-amd-amdhsa--gfx950"')
    a.raw(".text"); a.raw(f".globl {KNAME}_kernel"); a.raw(".p2align 12")
    a.raw(".p2align 8"); a.raw(f".type {KNAME}_kernel,@function"); a.raw(f"{KNAME}_kernel:")
    def stamp(i):
        if diag:
            a("s_memrealtime s[64:65]"); a("s_waitcnt lgkmcnt(0)"); a(f"v_writelane_b32 v247, s64, {2*i}"); a(f"v_writelane_b32 v247, s65, {2*i+1}")
    def dump_stamps():
        if diag:
            a("s_mov_b32 exec_lo, -1"); a("s_mov_b32 exec_hi, 0")
            a("s_lshl_b32 s60, s2, 3"); a("s_add_u32 s60, s60, s3"); a("s_lshl_b32 s60, s60, 7"); a(f"s_add_u32 s60, s60, {W_DIAG}")
            a("v_lshl_add_u32 v246, v0, 2, s60")
            a("global_store_dword v246, v247, s[30:31]")
    lbl = [0]
    def newlabel(p):
        lbl[0] += 1; return f"L_{p}_{lbl[0]}"
    def budget():
        a("s_sub_u32 s62, s62, 1"); a("s_cbranch_scc1 L_fail")
    def spin_tail(L, Ld, sleep):
        a(f"s_cbranch_vccnz {Ld}")
        if sleep: a(f"s_sleep {sleep}")
        a("s_sub_u32 s62, s62, 1"); a(f"s_cbranch_scc0 {L}"); a("s_branch L_fail"); a(f"{Ld}:")
    def spin_ge(vtmp, off, val, sleep=0):
        L = newlabel("spin"); Ld = newlabel("spind")
        a(f"{L}:"); a(f"ds_read_b32 {vtmp}, v10 offset:{off}"); a("s_waitcnt lgkmcnt(0)")
        a(f"v_cmp_le_u32 vcc, {val}, {vtmp}"); spin_tail(L, Ld, sleep)
    def spin_all4(vt, off, sleep=0):
        L = newlabel("spin4"); Ld = newlabel("spin4d")
        a(f"{L}:"); a(f"ds_read_b128 v[{vt}:{vt+3}], v10 offset:{off}"); a("s_waitcnt lgkmcnt(0)")
        a(f"v_min_u32 v{vt}, v{vt}, v{vt+1}"); a(f"v_min3_u32 v{vt}, v{vt}, v{vt+2}, v{vt+3}")
        a(f"v_cmp_ne_u32 vcc, 0, v{vt}"); spin_tail(L, Ld, sleep)
    def tagcheck(tags, vacc, vacc2, retry):
        h = (len(tags) + 1) // 2
        t1, t2 = tags[:h], tags[h:]
        a(f"v_xor_b32 {vacc}, s33, {t1[0]}")
        if t2: a(f"v_xor_b32 {vacc2}, s33, {t2[0]}")
        for i in range(1, h):
            a(f"v_bitop3_b32 {vacc}, {t1[i]}, s33, {vacc} bitop3:0xbe")
            if i < len(t2): a(f"v_bitop3_b32 {vacc2}, {t2[i]}, s33, {vacc2} bitop3:0xbe")
        if t2: a(f"v_or_b32 {vacc}, {vacc}, {vacc2}")
        a(f"v_cmp_ne_u32 vcc, 0, {vacc}")
        a(f"s_cbranch_vccnz {retry}")
    def mpoll(loads, name, vt, pre=None, sleep=0, hook=None, sm=72):
        fl = pfh2 if name in ('h2', 'ew') else pf
        n = len(loads)
        for (d, va, off) in loads: a(f"global_load_dwordx4 v[{d}:{d+3}], {va}, s[30:31] offset:{off} {fl}")
        if pre: pre()
        a(f"s_branch L_{name}_chk")
        a(f"L_{name}_retry:")
        if hook: hook()
        if sleep: a(f"s_sleep {sleep}")
        for i, (d, va, off) in enumerate(loads):
            a(f"s_mov_b64 exec, s[{sm+2*i}:{sm+2*i+1}]")
            if n > 1: a(f"s_cbranch_execz L_{name}_sk{i}")
            a(f"global_load_dwordx4 v[{d}:{d+3}], {va}, s[30:31] offset:{off} {fl}")
            if n > 1: a(f"L_{name}_sk{i}:")
        a("s_mov_b64 exec, -1")
        budget()
        a(f"L_{name}_chk:")
        a("s_waitcnt vmcnt(0)")
        for i, (d, va, off) in enumerate(loads): a(f"v_xor_b32 v{vt+i}, s33, v{d+1}")
        for i, (d, va, off) in enumerate(loads): a(f"v_bitop3_b32 v{vt+i}, v{d+3}, s33, v{vt+i} bitop3:0xbe")
        for i, (d, va, off) in enumerate(loads): a(f"v_cmp_ne_u32 s[{sm+2*i}:{sm+2*i+1}], 0, v{vt+i}")
        if n == 1: a(f"s_cmp_lg_u64 s[{sm}:{sm+1}], 0")
        else:
            a(f"s_or_b64 vcc, s[{sm}:{sm+1}], s[{sm+2}:{sm+3}]")
            for i in range(2, n): a(f"s_or_b64 vcc, vcc, s[{sm+2*i}:{sm+2*i+1}]")
        a(f"s_cbranch_scc1 L_{name}_retry")
    def rbf(dst, src):
        a(f"v_cvt_pk_bf16_f32 {dst}, {src}, {src}"); a(f"v_and_b32 {dst}, 0xffff0000, {dst}")
    DPPF = "row_mask:0xf bank_mask:0xf"
    def red16(op, v):
        for m in ("quad_perm:[1,0,3,2]", "quad_perm:[2,3,0,1]", "row_half_mirror", "row_mirror"): a(f"{op}_dpp {v}, {v}, {v} {m} {DPPF}")
    def swapred(op, v, t, which):
        a(f"v_mov_b32 {t}, {v}"); a(f"v_permlane{which}_swap_b32 {v}, {t}"); a(f"{op} {v}, {v}, {t}")
    def noproj(label):
        a("s_sub_u32 s50, s35, 1"); a("s_cmp_ge_u32 s50, 3"); a(f"s_cbranch_scc1 {label}")

    if diag: a("s_memrealtime s[66:67]")
    a("s_cmp_ge_u32 s2, 256")
    a("s_cbranch_scc1 L_end")
    a("s_load_dwordx16 s[8:23], s[0:1], 0")
    a("s_load_dwordx8 s[24:31], s[0:1], 64")
    a("v_lshrrev_b32 v1, 6, v0")
    a("v_and_b32 v0, 63, v0")
    a("v_readfirstlane_b32 s3, v1                ; wave")
    C("s4 = g, s5 = r = id>>3, s6 = b, s7 = j ; duty s35: 0 none, 1 q tile, 2 gate tile, 3 up tile, 4 down-projection tile ; s49 = tile")
    a("s_and_b32 s4, s2, 7"); a("s_lshr_b32 s5, s2, 3"); a("s_and_b32 s6, s5, 3"); a("s_lshr_b32 s7, s5, 2")
    assert 5 * nA + 3 * nB == 56
    a(f"s_mul_i32 s48, s4, {nA}"); a(f"s_mul_i32 s49, s4, {nB}"); a(f"s_add_u32 s49, s49, {4*nA - 4*nB}")
    a("s_cmp_lt_u32 s4, 4"); a("s_cselect_b32 s48, s48, s49"); a(f"s_cselect_b32 s34, {24-nA}, {24-nB}")
    a("s_cmp_eq_u32 s4, 7"); a(f"s_cselect_b32 s34, {24-nA}, s34"); a("s_cselect_b32 s55, 0, 14")
    a("s_cmp_lt_u32 s5, s55"); a("s_cselect_b32 s35, 4, 0")
    a("s_add_u32 s48, s48, s5"); a("s_sub_u32 s48, s48, s34"); a("s_sub_u32 s49, s48, 28")
    a("s_cmp_lt_u32 s48, 28"); a("s_cselect_b32 s49, s48, s49"); a("s_cselect_b32 s48, 2, 3")
    a("s_cmp_ge_u32 s5, s34"); a("s_cselect_b32 s35, s48, s35")
    a("s_lshl_b32 s48, s4, 3"); a("s_add_u32 s48, s48, s5"); a("s_sub_u32 s48, s48, 24")
    a("s_movk_i32 s57, 3584"); a("s_mov_b32 s38, 1605632")
    a("s_cmp_ge_u32 s5, 24"); a("s_cselect_b32 s35, 1, s35"); a("s_cselect_b32 s49, s48, s49"); a("s_cselect_b32 s57, 8192, s57"); a("s_cselect_b32 s38, 3670016, s38")
    a("s_mov_b32 s39, 0x20000")
    C("weight tile: start offset s48, row stride s57, LDS destination s60, pairs of 8-row loads s61")
    a("s_mul_i32 s55, s5, 896"); a("s_add_u32 s55, s55, s4")
    a("s_cmp_eq_u32 s35, 4"); a("s_cselect_b32 s48, s55, s49"); a("s_cselect_b32 s57, 896, s57"); a("s_cselect_b32 s61, 8, 28")
    a(f"s_cselect_b32 s60, {(F2B-BIGW)//1024}, 0"); a("s_lshl_b32 s48, s48, 7"); a("s_lshl_b32 s60, s60, 10"); a(f"s_add_u32 s60, s60, {BIGW}")
    a("s_cmp_eq_u32 s35, 0"); a("s_cselect_b32 s61, 0, s61")
    a("s_lshl_b32 s56, s57, 3")
    a("s_lshl_b32 s52, s6, 3"); a("s_add_u32 s52, s52, s4"); a("s_lshl_b32 s52, s52, 21"); a("s_lshl_b32 s53, s7, 18"); a("s_add_u32 s54, s52, s53")
    a("s_mov_b32 s42, 0x4000000"); a("s_mov_b32 s43, 0x20000")
    a("v_lshlrev_b32 v9, 4, v0")
    a(f"v_mov_b32 v10, {CTRL}")
    C("per-lane source offsets (16-byte chunks permuted inside a row so that the LDS reads are conflict free): v24/v25 tiles, v16..v23 K")
    a("v_lshrrev_b32 v2, 3, v0"); a("v_and_b32 v3, 7, v0"); a("v_and_b32 v8, 2, v2"); a("v_xor_b32 v3, v3, v8")
    a("v_lshlrev_b32 v3, 4, v3")
    a("v_mad_u32_u24 v24, v2, s57, v3"); a("v_xor_b32 v25, 64, v3"); a("v_mad_u32_u24 v25, v2, s57, v25")
    a("v_lshrrev_b32 v28, 5, v0"); a("v_and_b32 v29, 31, v0"); a("v_lshlrev_b32 v30, 9, v28"); a("v_xor_b32 v15, v29, v28")
    for p in range(8):
        if p: a(f"v_xor_b32 v{16+p}, {2*p}, v15"); a(f"v_lshl_add_u32 v{16+p}, v{16+p}, 4, v30")
        else: a("v_lshl_add_u32 v16, v15, 4, v30")
    a("s_mov_b32 s62, 0x100000")
    a("s_cmp_eq_u32 s3, 4")
    a("s_waitcnt lgkmcnt(0)")
    if diag: a("v_writelane_b32 v247, s66, 0"); a("v_writelane_b32 v247, s67, 1")
    a("s_cbranch_scc0 L_others")

    C("---------------- L: loader ----------------")
    if diag == 3: a("s_memrealtime s[84:85]")
    a("s_cmp_eq_u32 s35, 2"); a("s_cselect_b32 s36, s20, s22"); a("s_cselect_b32 s37, s21, s23")
    a("s_cmp_eq_u32 s35, 1"); a("s_cselect_b32 s36, s14, s36"); a("s_cselect_b32 s37, s15, s37")
    a("s_cmp_eq_u32 s35, 4"); a("s_cselect_b32 s36, s24, s36"); a("s_cselect_b32 s37, s25, s37")
    a("s_mov_b32 m0, s60"); a("s_mov_b32 s40, s10"); a("s_mov_b32 s41, s11")
    a("s_setprio 3")
    a("s_mov_b32 s58, 1")
    a("s_cmp_eq_u32 s61, 0"); a("s_cbranch_scc1 L_ld_kv")
    if diag == 3: a("s_memrealtime s[86:87]")
    a("L_tile:")
    for k in range(2):
        a(f"s_waitcnt vmcnt({w0-1})")
        a(f"buffer_load_dwordx4 v{24+k}, s[36:39], s48 offen nt lds")
        a("s_add_u32 m0, m0, 1024"); a("s_add_u32 s48, s48, s56")
    a("s_sub_u32 s61, s61, 1")
    a(f"s_cmp_lg_u32 s61, {28 - min(w0, 24)//2}"); a("s_cbranch_scc1 L_tile_nb"); a("s_barrier"); a("s_movk_i32 s58, 100"); a("L_tile_nb:")
    a("s_cmp_lg_u32 s61, 0"); a("s_cbranch_scc1 L_tile")
    a("L_ld_kv:")
    if diag == 3: a("s_memrealtime s[88:89]")
    C("s50 item (0..15 K, 16..31 V), s51 LDS slot, s52 source offset, s63 ring end, s53 ring distance")
    a("s_mov_b32 s52, s54"); a("s_mov_b32 s50, 0"); a("s_mov_b32 s51, 0"); a(f"s_mov_b32 s63, {NS*SLOT}"); a("s_mov_b32 s53, 5")
    C("loads in flight = base + s46/4: workgroups with more bytes to fetch (and the dies that are dispatched last) get a wider window")
    a("s_cmp_eq_u32 s35, 4"); a(f"s_cselect_b32 s46, {lvF}, {lv0}")
    a("s_sub_u32 s55, s35, 1"); a("s_cmp_lt_u32 s55, 3"); a(f"s_cselect_b32 s46, {lvH}, s46"); a("s_cmp_eq_u32 s7, 7"); a(f"s_cselect_b32 s46, {lv7}, s46")
    if lvlate: a("s_getreg_b32 s55, hwreg(HW_REG_XCC_ID, 0, 4)"); a("s_cmp_ge_u32 s55, 4"); a(f"s_cselect_b32 s55, {lvlate}, 0"); a("s_add_u32 s46, s46, s55")
    a("s_mov_b32 s47, 0")
    NWO = -(-64 // wo_per)
    assert wo_start >= 19 and wo_start + NWO <= 30 and wo_per % 2 == 0 and 17 <= win and win + wdelta + NB - 1 <= 32
    def item_check(c):
        a(f"L_check{c}:")
        a("s_waitcnt lgkmcnt(0)")
        a("v_min3_u32 v40, v40, v41, v42"); a("v_min3_u32 v40, v40, v43, v44")
        a("s_sub_u32 s56, s50, s53")
        a("v_readfirstlane_b32 s55, v40")
        a("s_cmp_gt_u32 s55, s56")
        a(f"s_cbranch_scc0 L_slow{c}")
        if c == "P":
            a(f"s_cmp_ge_u32 s50, {32-endboost}"); a("s_cbranch_scc1 L_goPb")
            a("L_levelP:")
        a("s_and_b32 s47, s47, 3"); a("s_add_u32 s47, s47, s46")
        for k in range(NB - 1, 0, -1):
            a(f"s_cmp_ge_u32 s47, {4*k}"); a(f"s_cbranch_scc1 L_go{c}{k}")
    def item_body(c, w, nwo):
        a(f"L_go{c}:")
        if diag == 2:
            a("s_memrealtime s[70:71]"); a("s_waitcnt lgkmcnt(0)"); a("s_mov_b32 m0, s50"); a("v_writelane_b32 v60, s70, m0")
        if nwo:
            a("s_mov_b32 m0, s60")
            for k in range(nwo):
                a(f"s_waitcnt vmcnt({w-1})")
                a(f"buffer_load_dwordx4 v{24+(k&1)}, s[36:39], s48 offen nt lds")
                a("s_add_u32 m0, m0, 1024"); a(f"s_add_u32 s48, s48, {8*896}")
            a("s_mov_b32 s60, m0")
        nsig = max(0, w - 17 - nwo)
        for grp in range(4):
            if grp == 0: a("s_mov_b32 m0, s51")
            else:
                a("s_add_u32 m0, m0, 4096"); a("s_add_u32 s52, s52, 4096")
            if grp == 3:
                a(f"ds_read_b128 v[40:43], v10 offset:{C_CP}"); a(f"ds_read_b32 v44, v10 offset:{C_FP}")
            for q in range(4):
                n = grp * 4 + q
                a(f"s_waitcnt vmcnt({w-1})")
                if n == nsig:
                    a("v_mov_b32 v46, s50"); a(f"ds_write_b32 v10, v46 offset:{C_FILL}")
                a(f"buffer_load_dwordx4 v{16+(n&7)}, s[40:43], s52 offen offset:{1024*q} nt lds")
        a("s_add_u32 s52, s52, 4096")
        a(f"s_add_u32 s51, s51, {SLOT}"); a("s_cmp_eq_u32 s51, s63"); a("s_cselect_b32 s51, 0, s51")
        a("s_add_u32 s50, s50, 1")
    def slow(c):
        a(f"L_slow{c}:")
        budget()
        a(f"ds_read_b128 v[40:43], v10 offset:{C_CP}"); a(f"ds_read_b32 v44, v10 offset:{C_FP}")
        a(f"s_branch L_check{c}")
    a("L_item:")
    a("s_cmp_lg_u32 s50, s58"); a("s_cbranch_scc1 L_nobar"); a("s_barrier"); a("L_nobar:")
    if wstart:
        a(f"s_cmp_ge_u32 s50, {nstart}"); a("s_cbranch_scc1 L_notstart")
        item_body("S", wstart, 0)
        a("s_branch L_item")
        a("L_notstart:")
    else:
        a("s_cmp_lt_u32 s50, 2"); a("s_cbranch_scc1 L_goP")
    a("s_cmp_lt_u32 s50, 5"); a("s_cbranch_scc1 L_levelP")
    item_check("P")
    item_body("P", win, 0)
    a("L_afterP:")
    a("s_cmp_eq_u32 s50, 16"); a("s_cbranch_scc1 L_tov")
    a(f"s_cmp_eq_u32 s50, {wo_start}"); a("s_cbranch_scc1 L_towo")
    a("L_item_next:")
    a("s_cmp_lt_u32 s50, 32"); a("s_cbranch_scc1 L_item")
    stamp(1)
    a("v_mov_b32 v46, 32"); a("v_mov_b32 v47, 33")
    a("s_waitcnt vmcnt(16)")
    a(f"ds_write_b32 v10, v46 offset:{C_FILL}")
    a("s_waitcnt vmcnt(0)")
    a(f"ds_write_b32 v10, v47 offset:{C_FILL}")
    stamp(3); stamp(2)
    if diag == 3:
        for k in range(6): a(f"v_writelane_b32 v247, s{84+k}, {8+k}")
    if diag:
        a("s_lshl_b32 s60, s2, 8"); a(f"s_add_u32 s60, s60, {W_DIAG + 0x80000}"); a("v_lshl_add_u32 v61, v0, 2, s60")
        a("global_store_dword v61, v60, s[30:31]")
    dump_stamps()
    a("s_endpgm")

    C("---------------- all other waves: tag, x, LDS control words ----------------")
    a("L_others:")
    a("s_load_dword s32, s[30:31], 0")
    a("s_cmp_ge_u32 s3, 4"); a("s_cbranch_scc1 L_nox")
    noproj("L_nox")
    a("s_mul_i32 s50, s3, 896")
    a("v_add_u32 v11, s50, v9")
    for i in range(4): a(f"v_mov_b32 v{4+i}, 0")
    a("s_mov_b32 exec_hi, 0x00ffffff")
    a(f"global_load_dwordx4 v[4:7], v11, s[8:9] {xf}")
    a("s_mov_b32 exec_hi, -1")
    a("L_nox:")
    a("s_sub_u32 s50, s35, 1"); a("s_cmp_ge_u32 s50, 3"); a("s_cselect_b32 s51, 1, 0"); a("s_cselect_b32 s52, 4, 1")
    a("v_mov_b32 v12, s52"); a("v_mad_u32_u24 v12, v0, s51, v12")
    a("v_cmp_gt_u32 vcc, 4, v0")
    a("s_cmp_eq_u32 s35, 4"); a(f"s_cselect_b32 s50, 3, {BIG}")
    a("v_cndmask_b32 v12, 0, v12, vcc")
    a("v_mov_b32 v13, s50")
    a("v_cmp_eq_u32 vcc, 4, v0")
    a("v_lshl_add_u32 v14, v0, 2, v10")
    a("v_cndmask_b32 v12, v12, v13, vcc")
    a("ds_write_b32 v14, v12")
    a("s_waitcnt lgkmcnt(0)")
    a("s_mul_i32 s33, s32, 0x9E3779B1"); a("s_add_u32 s33, s33, 0x7F4A7C15")
    a("s_barrier")
    a("v_and_b32 v14, 15, v0"); a("v_lshrrev_b32 v15, 4, v0")
    a("s_cmp_lt_u32 s3, 4"); a("s_cbranch_scc1 L_C")
    a("s_cmp_eq_u32 s3, 5"); a("s_cbranch_scc1 L_Q")
    a("s_branch L_F")

    C("---------------- L: out-of-line pieces ----------------")
    slow("P")
    a("L_tov:")
    a("s_mov_b32 s40, s12"); a("s_mov_b32 s41, s13"); a("s_mov_b32 s52, s54")
    a("s_mov_b32 s51, 0"); a(f"s_mov_b32 s63, {5*SLOT}"); a("s_mov_b32 s53, 1")
    a("v_lshlrev_b32 v15, 1, v28"); a("v_xor_b32 v15, v15, v29")
    for p in range(8):
        f = 4 * (p & 1) + 8 * ((p >> 2) & 1)
        a(f"v_xor_b32 v{16+p}, {f}, v15"); a(f"v_lshl_add_u32 v{16+p}, v{16+p}, 4, v30")
    a("s_mov_b32 s36, s16"); a("s_mov_b32 s37, s17"); a("s_mov_b32 s38, 3670016")
    a(f"s_mul_i32 s48, s4, {512*896}"); a("s_lshl_b32 s55, s7, 7"); a("s_add_u32 s48, s48, s55")
    a("s_movk_i32 s57, 896"); a(f"s_mov_b32 s60, {WOB}")
    a("v_mad_u32_u24 v24, v2, s57, v3"); a("v_xor_b32 v25, 64, v3"); a("v_mad_u32_u24 v25, v2, s57, v25")
    a("s_branch L_item")
    a("L_towo:")
    a("s_cmp_eq_u32 s7, 7"); a("s_cbranch_scc1 L_item")
    a("L_itemW:")
    item_check("W")
    item_body("W", win + wdelta, wo_per)
    a("L_afterW:")
    a(f"s_cmp_lt_u32 s50, {wo_start + NWO}"); a("s_cbranch_scc1 L_itemW")
    a("s_branch L_item_next")
    slow("W")
    item_body("Pb", wboost, 0); a("s_branch L_afterP")
    for k in range(1, NB):
        item_body(f"P{k}", win + k, 0); a("s_branch L_afterP")
        item_body(f"W{k}", win + wdelta + k, wo_per); a("s_branch L_afterW")

    def tile_tr_addr(dst, tau, base):
        a("v_lshrrev_b32 v16, 2, v14"); a("v_lshl_add_u32 v16, v15, 3, v16"); a("v_lshlrev_b32 v16, 7, v16")
        a("v_and_b32 v17, 1, v14"); a("v_lshl_add_u32 v16, v17, 3, v16")
        a("v_and_b32 v17, 1, v15"); a("v_lshrrev_b32 v18, 3, v14"); a("v_lshl_add_u32 v17, v17, 1, v18"); a("v_lshlrev_b32 v17, 1, v17")
        a("v_bfe_u32 v18, v14, 1, 1"); a("v_xor_b32 v17, v17, v18")
        if tau is not None:
            a(f"s_lshl_b32 s50, {tau}, 1"); a("v_xor_b32 v17, s50, v17")
        a(f"v_lshl_add_u32 {dst}, v17, 4, v16"); a(f"v_add_u32 {dst}, {base}, {dst}")
    C("---------------- C: layernorm (one batch row per wave) and the projection tile ----------------")
    a("L_C:")
    a("s_lshl_b32 s50, s3, 2"); a("v_add_u32 v12, s50, v10")
    a("v_mov_b32 v13, 1")
    a("v_mov_b32 v81, s33"); a("v_mov_b32 v83, s33")
    noproj("L_C_noproj")
    tile_tr_addr("v38", "s3", BIGW)
    a("v_and_b32 v17, 3, v14"); a("s_movk_i32 s50, 896"); a("v_mul_u32_u24 v16, s50, v17"); a("v_lshl_add_u32 v39, v15, 4, v16"); a(f"v_add_u32 v39, {XN}, v39")
    a("s_lshl_b32 s50, s49, 4"); a("s_lshl_b32 s52, s3, 2"); a("s_add_u32 s50, s50, s52"); a(f"s_add_u32 s50, s50, {W_QG//16}")
    a("s_lshr_b32 s51, s49, 1"); a("s_lshl_b32 s51, s51, 1"); a("s_add_u32 s51, s51, s35"); a("s_sub_u32 s51, s51, 2"); a("s_lshl_b32 s51, s51, 3")
    a("s_and_b32 s52, s49, 1"); a("s_lshl_b32 s52, s52, 2"); a("s_add_u32 s51, s51, s52"); a("s_add_u32 s51, s51, s3"); a("s_lshl_b32 s51, s51, 4"); a(f"s_add_u32 s51, s51, {W_GU//16}")
    a("s_cmp_eq_u32 s35, 1"); a("s_cselect_b32 s50, s50, s51"); a("s_cselect_b32 s51, 1024, 4")
    a("v_mad_u32_u24 v16, v14, s51, v15"); a("v_add_u32 v16, s50, v16"); a("v_lshlrev_b32 v37, 4, v16")
    a("s_waitcnt vmcnt(0)")
    stamp(1)
    for i in range(4):
        a(f"v_lshlrev_b32 v{16+2*i}, 16, v{4+i}"); a(f"v_and_b32 v{17+2*i}, 0xffff0000, v{4+i}")
    a("v_add_f32 v24, v16, v17"); a("v_add_f32 v25, v18, v19"); a("v_add_f32 v26, v20, v21"); a("v_add_f32 v27, v22, v23")
    a("v_add_f32 v24, v24, v25"); a("v_add_f32 v26, v26, v27"); a("v_add_f32 v24, v24, v26")
    red16("v_add_f32", "v24"); swapred("v_add_f32", "v24", "v25", 16); swapred("v_add_f32", "v24", "v25", 32)
    a(f"v_mul_f32 v24, {hex(f2u(1.0/448))}, v24")
    a("v_mov_b32 v26, 0")
    a("s_mov_b32 exec_hi, 0x00ffffff")
    for i in range(8): a(f"v_sub_f32 v{28+i}, v{16+i}, v24")
    for i in range(8): a(f"v_fmac_f32 v26, v{28+i}, v{28+i}")
    a("s_mov_b32 exec_hi, -1")
    rbf("v25", "v24")
    red16("v_add_f32", "v26"); swapred("v_add_f32", "v26", "v27", 16); swapred("v_add_f32", "v26", "v27", 32)
    a(f"v_mul_f32 v26, {hex(f2u(1.0/448))}, v26")
    rbf("v26", "v26")
    a(f"v_add_f32 v26, {hex(f2u(1e-5))}, v26")
    rbf("v26", "v26")
    a("v_sqrt_f32 v26, v26")
    for i in range(8): a(f"v_sub_f32 v{28+i}, v{16+i}, v25")
    rbf("v26", "v26")
    a("v_rcp_f32 v26, v26")
    for i in range(4): a(f"v_cvt_pk_bf16_f32 v{16+i}, v{28+2*i}, v{29+2*i}")
    for i in range(4):
        a(f"v_lshlrev_b32 v{28+2*i}, 16, v{16+i}"); a(f"v_and_b32 v{29+2*i}, 0xffff0000, v{16+i}")
    for i in range(8): a(f"v_mul_f32 v{28+i}, v{28+i}, v26")
    for i in range(4): a(f"v_cvt_pk_bf16_f32 v{16+i}, v{28+2*i}, v{29+2*i}")
    a(f"v_add_u32 v11, {XN}, v11")
    a("s_mov_b32 exec_hi, 0x00ffffff")
    a("ds_write_b128 v11, v[16:19]")
    a("s_mov_b32 exec_hi, -1")
    a(f"ds_write_b32 v12, v13 offset:{C_XNF}")
    spin_all4(40, C_XNF)
    for s in range(14): a(f"ds_read_b128 v[{84+4*s}:{87+4*s}], v39 offset:{64*s}")
    stamp(2)
    spin_ge("v16", C_FILL, 1)
    for s in range(14):
        a(f"ds_read_b64_tr_b16 v[{140+4*s}:{141+4*s}], v38 offset:{4096*s}")
        a(f"ds_read_b64_tr_b16 v[{142+4*s}:{143+4*s}], v38 offset:{4096*s+512}")
    for s in range(14):
        n = 26 - 2 * s
        if n <= 15 and (s % 2 == 0 or s == 13): a(f"s_waitcnt lgkmcnt({max(0, n-2) if s != 13 else 0})")
        elif s == 0: a("s_waitcnt lgkmcnt(14)")
        c = "0" if s == 0 else "v[48:51]"
        a(f"v_mfma_f32_16x16x32_bf16 v[48:51], v[{140+4*s}:{143+4*s}], v[{84+4*s}:{87+4*s}], {c}")
    a("s_add_u32 s50, s3, 4"); a("v_mov_b32 v16, s50"); a(f"ds_write_b32 v12, v16 offset:{C_CP}")
    a("s_mov_b32 s50, 0x000f000f")
    a("v_cvt_pk_bf16_f32 v80, v48, v49"); a("v_cvt_pk_bf16_f32 v82, v50, v51")
    a("s_mov_b32 exec_lo, s50"); a("s_mov_b32 exec_hi, s50")
    a("s_cmp_eq_u32 s35, 1"); a("s_cbranch_scc1 L_pub_q")
    a("global_store_dwordx4 v37, v[80:83], s[30:31] sc1")
    a("s_branch L_pub_done")
    a("L_pub_q:")
    a("global_store_dwordx4 v37, v[80:83], s[30:31]")
    a("L_pub_done:")
    a("s_mov_b64 exec, -1")
    a("L_C_noproj:")
    stamp(3)
    C("addresses: v20..23 K reads, v24..27 V reads, v28 q, v29 p read, v30 p write, v31..33 control, v34 wo, v35/v248..254 partials, v36/v38 o image, v37 result")
    a("v_xor_b32 v16, v15, v14")
    a("v_lshlrev_b32 v17, 9, v14")
    for s in range(4):
        if s: a(f"v_xor_b32 v{20+s}, {4*s}, v16"); a(f"v_lshl_add_u32 v{20+s}, v{20+s}, 4, v17")
        else: a("v_lshl_add_u32 v20, v16, 4, v17")
    a("v_lshrrev_b32 v16, 2, v14")
    a("v_lshl_add_u32 v17, v15, 3, v16")
    a("v_lshlrev_b32 v17, 9, v17")
    a("v_and_b32 v18, 1, v14"); a("v_lshl_add_u32 v17, v18, 3, v17")
    a("v_and_b32 v18, 1, v15"); a("v_lshl_add_u32 v18, v18, 2, v16"); a("v_lshlrev_b32 v18, 1, v18")
    a("v_bfe_u32 v19, v14, 1, 1")
    a("s_lshl_b32 s50, s3, 3"); a("v_add_u32 v19, s50, v19")
    a("v_xor_b32 v18, v18, v19")
    for tt in range(4):
        if tt: a(f"v_xor_b32 v{24+tt}, {2*tt}, v18"); a(f"v_lshl_add_u32 v{24+tt}, v{24+tt}, 4, v17")
        else: a("v_lshl_add_u32 v24, v18, 4, v17")
    a("v_and_b32 v16, 1, v0")
    a("v_lshlrev_b32 v17, 4, v15")
    a("v_lshl_add_u32 v28, v16, 9, v17"); a(f"v_add_u32 v28, {QI}, v28")
    a("v_lshl_add_u32 v29, v16, 10, v17"); a(f"v_add_u32 v29, {PB}, v29")
    a("v_lshrrev_b32 v16, 5, v0"); a("v_and_b32 v17, 31, v0"); a("s_lshl_b32 s50, s3, 5"); a("v_add_u32 v17, s50, v17")
    a("v_lshlrev_b32 v17, 1, v17"); a("v_lshl_add_u32 v30, v16, 10, v17"); a(f"v_add_u32 v30, {PB}, v30")
    a("v_lshl_add_u32 v31, v16, 4, v10")
    a("v_lshl_add_u32 v33, v16, 2, v10")
    a("s_lshl_b32 s50, s3, 2"); a("v_add_u32 v32, s50, v31")
    tile_tr_addr("v34", "s3", WOB)
    a("s_lshl_b32 s50, s6, 3"); a("s_add_u32 s50, s50, s4"); a("s_lshl_b32 s50, s50, 15"); a("s_lshl_b32 s51, s3, 10"); a("s_add_u32 s50, s50, s51"); a(f"s_add_u32 s50, s50, {W_H1}")
    a("v_add_u32 v16, s50, v9")
    a("s_lshl_b32 s51, s7, 12"); a("v_add_u32 v35, s51, v16")
    for i in range(1, 8):
        a(f"s_add_u32 s51, s7, {i}"); a("s_and_b32 s51, s51, 7"); a("s_lshl_b32 s51, s51, 12"); a(f"v_add_u32 v{247+i}, s51, v16")
    a("v_lshrrev_b32 v16, 5, v0"); a("v_lshlrev_b32 v16, 8, v16"); a("v_and_b32 v17, 1, v15"); a("v_lshl_add_u32 v16, v17, 5, v16"); a("v_add_u32 v16, v16, v14")
    a("s_lshl_b32 s50, s3, 6"); a("v_add_u32 v16, s50, v16"); a("v_lshlrev_b32 v16, 1, v16"); a(f"v_add_u32 v38, {OI}, v16")
    a("v_lshlrev_b32 v36, 4, v15"); a(f"v_add_u32 v36, {OI}, v36")
    a("s_mul_i32 s50, s6, 28"); a("s_lshl_b32 s51, s7, 2"); a("s_add_u32 s50, s50, s51"); a("s_add_u32 s50, s50, s3"); a("s_lshl_b32 s50, s50, 3"); a("s_add_u32 s50, s50, s4")
    a("s_lshl_b32 s50, s50, 7"); a(f"s_add_u32 s50, s50, {W_H2}"); a("v_add_u32 v37, s50, v9")
    a("s_mov_b32 s44, 0xffff0000"); a("s_mov_b32 s45, 0xffff0000"); a("s_mov_b32 s46, 0"); a("s_mov_b32 s47, -1")
    C("---------------- C: scores of every fourth 32-key item ----------------")
    spin_ge("v16", C_QRDY, 1, sleep=1)
    stamp(4)
    qreg = lambda s: 64 + 4 * s if s < 4 else 84 + 4 * (s - 4)
    for s in range(8): a(f"ds_read_b128 v[{qreg(s)}:{qreg(s)+3}], v28 offset:{64*s}")
    a("s_mov_b32 s50, s3")
    a("L_kitem:")
    a("s_add_u32 s51, s50, 2")
    a("s_sub_u32 s52, s50, 9"); a("s_cmp_ge_u32 s50, 9"); a("s_cselect_b32 s52, s52, s50")
    a("s_lshl_b32 s52, s52, 14")
    for s in range(4): a(f"v_add_u32 v{40+s}, s52, v{20+s}")
    spin_ge("v16", C_FILL, "s51", sleep=1)
    for s in range(8):
        for tl in range(2):
            a(f"ds_read_b128 v[{100+8*s+4*tl}:{103+8*s+4*tl}], v{40+(s&3)} offset:{(s>>2)*256 + tl*8192}")
    a("s_add_u32 s51, s50, 4"); a("s_min_u32 s51, s51, 16"); a("s_add_u32 s51, s51, 4")
    a("v_mov_b32 v16, s51")
    a(f"ds_write_b32 v12, v16 offset:{C_CP}")
    a("v_mov_b32 v63, v62"); a("v_mov_b32 v62, v61"); a("v_mov_b32 v61, v60")
    for s in range(8):
        if s % 2 == 0: a(f"s_waitcnt lgkmcnt({13 - 2*s})")
        for tl in range(2):
            c = "0" if s == 0 else f"v[{48+4*tl}:{51+4*tl}]"
            a(f"v_mfma_f32_16x16x32_bf16 v[{48+4*tl}:{51+4*tl}], v[{qreg(s)}:{qreg(s)+3}], v[{100+8*s+4*tl}:{103+8*s+4*tl}], {c}")
    a("v_cndmask_b32 v16, v48, v52, s[44:45]"); a("v_cndmask_b32 v17, v49, v53, s[44:45]"); a("v_cndmask_b32 v16, v16, v17, s[46:47]")
    rbf("v60", "v16")
    a("s_add_u32 s50, s50, 4"); a("s_cmp_lt_u32 s50, 16"); a("s_cbranch_scc1 L_kitem")
    stamp(5)
    C("---------------- C: softmax of the 512 keys against their own maximum ----------------")
    a("v_max_f32 v16, v60, v61"); a("v_max3_f32 v16, v16, v62, v63")
    red16("v_max_f32", "v16"); swapred("v_max_f32", "v16", "v17", 16)
    a(f"ds_write_b32 v32, v16 offset:{C_MX}")
    a(f"ds_write_b32 v12, v13 offset:{C_MXF}")
    spin_all4(40, C_MXF)
    a(f"ds_read_b128 v[40:43], v31 offset:{C_MX}")
    a("s_waitcnt lgkmcnt(0)")
    a("v_max_f32 v16, v40, v41"); a("v_max3_f32 v16, v16, v42, v43")
    a(f"s_mov_b32 s50, {hex(f2u(CEXP))}")
    for i in range(4): a(f"v_sub_f32 v{60+i}, v{60+i}, v16")
    for i in range(4): a(f"v_mul_f32 v{60+i}, s50, v{60+i}")
    for i in range(4): a(f"v_exp_f32 v{60+i}, v{60+i}")
    a("v_add_f32 v17, v60, v61"); a("v_add_f32 v18, v62, v63"); a("v_add_f32 v17, v17, v18")
    a("v_cvt_pk_bf16_f32 v40, v63, v62"); a("v_cvt_pk_bf16_f32 v41, v61, v60")
    a("ds_write_b16 v30, v40 offset:0"); a("ds_write_b16_d16_hi v30, v40 offset:256")
    a("ds_write_b16 v30, v41 offset:512"); a("ds_write_b16_d16_hi v30, v41 offset:768")
    red16("v_add_f32", "v17"); swapred("v_add_f32", "v17", "v18", 16)
    a(f"ds_write_b32 v32, v17 offset:{C_LS}")
    a(f"ds_write_b32 v12, v13 offset:{C_PF}")
    for i in range(16): a(f"v_mov_b32 v{64+i}, 0")
    spin_all4(40, C_PF)
    stamp(6)
    C("---------------- C: p @ V, 64 head dimensions per wave ----------------")
    a("s_mov_b32 s50, 0"); a("s_mov_b32 s52, 0")
    a("L_vitem:")
    a("ds_read_b128 v[44:47], v29")
    a("v_add_u32 v29, 64, v29")
    for tt in range(4): a(f"v_add_u32 v{40+tt}, s52, v{24+tt}")
    a("s_add_u32 s51, s50, 18")
    spin_ge("v16", C_FILL, "s51")
    for tt in range(4):
        a(f"ds_read_b64_tr_b16 v[{96+4*tt}:{97+4*tt}], v{40+tt}")
        a(f"ds_read_b64_tr_b16 v[{98+4*tt}:{99+4*tt}], v{40+tt} offset:2048")
    a("s_add_u32 s51, s50, 21"); a("v_mov_b32 v16, s51")
    a(f"ds_write_b32 v12, v16 offset:{C_CP}")
    a(f"s_add_u32 s52, s52, {SLOT}"); a(f"s_cmp_eq_u32 s52, {5*SLOT}"); a("s_cselect_b32 s52, 0, s52")
    for tt in range(4):
        a(f"s_waitcnt lgkmcnt({7-2*tt})")
        a(f"v_mfma_f32_16x16x32_bf16 v[{64+4*tt}:{67+4*tt}], v[44:47], v[{96+4*tt}:{99+4*tt}], v[{64+4*tt}:{67+4*tt}]")
    a("s_add_u32 s50, s50, 1"); a("s_cmp_lt_u32 s50, 14"); a("s_cbranch_scc1 L_vitem")
    if not spec: a("s_cmp_eq_u32 s50, 16"); a("s_cbranch_scc1 L_vdone")
    H1L = [(120 + 4 * i, f"v{248+i}") for i in range(7)]
    a("s_cmp_eq_u32 s50, 15"); a("s_cbranch_scc1 L_first")
    C("after item 13: softmax scale of this split, same-die flag, wo operands")
    spin_ge("v16", C_FACF, 1)
    a(f"ds_read_b32 v39, v33 offset:{C_FAC}"); a(f"ds_read_b32 v16, v10 offset:{C_LOC}")
    for s in range(16):
        r = 150 + 4 * s
        a(f"ds_read_b64_tr_b16 v[{r}:{r+1}], v34 offset:{4096*s}")
        a(f"ds_read_b64_tr_b16 v[{r+2}:{r+3}], v34 offset:{4096*s+512}")
    a("s_waitcnt lgkmcnt(0)"); a("v_readfirstlane_b32 s57, v16")
    a("s_branch L_vitem")
    C("after item 14: first look at the partials of the other seven splits")
    a("L_first:")
    if spec:
        a("s_cmp_eq_u32 s7, 7"); a("s_cbranch_scc1 L_last")
        for (d, va) in H1L: a(f"global_load_dwordx4 v[{d}:{d+3}], {va}, s[30:31] {pfh1}")
        C("last item: its operand reads follow the progress word in LDS order, so they are good whenever the word is")
        a("L_last:")
        a("ds_read_b128 v[44:47], v29")
        for tt in range(4): a(f"v_add_u32 v{40+tt}, s52, v{24+tt}")
        a("L_last_spin:")
        a(f"ds_read_b32 v16, v10 offset:{C_FILL}")
        for tt in range(4):
            a(f"ds_read_b64_tr_b16 v[{96+4*tt}:{97+4*tt}], v{40+tt}")
            a(f"ds_read_b64_tr_b16 v[{98+4*tt}:{99+4*tt}], v{40+tt} offset:2048")
        budget()
        a("s_waitcnt lgkmcnt(6)")
        a("v_cmp_gt_u32 vcc, 33, v16"); a("s_cbranch_vccnz L_last_spin")
        for tt in range(4):
            if tt: a(f"s_waitcnt lgkmcnt({6-2*tt})")
            a(f"v_mfma_f32_16x16x32_bf16 v[{64+4*tt}:{67+4*tt}], v[44:47], v[{96+4*tt}:{99+4*tt}], v[{64+4*tt}:{67+4*tt}]")
    else:
        a("s_cmp_eq_u32 s7, 7"); a("s_cbranch_scc1 L_vitem")
        for (d, va) in H1L: a(f"global_load_dwordx4 v[{d}:{d+3}], {va}, s[30:31] {pfh1}")
        a("s_branch L_vitem")
        a("L_vdone:")
        a("s_nop 2")
    stamp(7)
    a("v_cndmask_b32 v16, v64, v72, s[44:45]"); a("v_cndmask_b32 v17, v65, v73, s[44:45]")
    a("v_cndmask_b32 v18, v68, v76, s[44:45]"); a("v_cndmask_b32 v19, v69, v77, s[44:45]")
    a("v_cndmask_b32 v16, v16, v17, s[46:47]"); a("v_cndmask_b32 v18, v18, v19, s[46:47]")
    a("s_cmp_eq_u32 s57, 1")
    a("v_mul_f32 v80, v16, v39"); a("v_mul_f32 v82, v18, v39")
    a("s_cbranch_scc0 L_st_far")
    a("global_store_dwordx4 v35, v[80:83], s[30:31]")
    a("L_st_done:")
    stamp(8)
    a("s_cmp_eq_u32 s7, 7"); a("s_cbranch_scc1 L_red")
    a("s_waitcnt vmcnt(1)")
    a("L_h1_chk:")
    for i, (d, va) in enumerate(H1L): a(f"v_cmp_ne_u32 s[{68+2*i}:{69+2*i}], s33, v{d+3}")
    a("v_xor_b32 v96, s33, v121"); a("v_xor_b32 v97, s33, v125")
    a("s_or_b64 vcc, s[68:69], s[70:71]"); a("s_or_b64 s[82:83], s[72:73], s[74:75]"); a("s_or_b64 s[84:85], s[76:77], s[78:79]")
    a("v_bitop3_b32 v96, v129, s33, v96 bitop3:0xbe"); a("v_bitop3_b32 v97, v133, s33, v97 bitop3:0xbe")
    a("s_or_b64 vcc, vcc, s[80:81]"); a("s_or_b64 s[82:83], s[82:83], s[84:85]"); a("s_or_b64 vcc, vcc, s[82:83]")
    a("s_cbranch_scc1 L_h1_more")
    a("L_h1_ver:")
    a("v_bitop3_b32 v96, v137, s33, v96 bitop3:0xbe"); a("v_bitop3_b32 v97, v141, s33, v97 bitop3:0xbe")
    a("v_bitop3_b32 v96, v145, s33, v96 bitop3:0xbe"); a("v_or_b32 v96, v96, v97"); a("v_cmp_ne_u32 vcc, 0, v96")
    a("s_cbranch_vccnz L_h1_all")
    stamp(9)
    C("o (512 values, bf16) -> LDS ; o @ wo[512 x 16 columns] per wave")
    a("v_add_f32 v56, v80, v120"); a("v_add_f32 v57, v82, v122")
    a("v_add_f32 v124, v124, v128"); a("v_add_f32 v126, v126, v130")
    a("v_add_f32 v132, v132, v136"); a("v_add_f32 v134, v134, v138")
    a("v_add_f32 v140, v140, v144"); a("v_add_f32 v142, v142, v146")
    a("v_add_f32 v56, v56, v124"); a("v_add_f32 v57, v57, v126")
    a("v_add_f32 v132, v132, v140"); a("v_add_f32 v134, v134, v142")
    a("v_add_f32 v56, v56, v132"); a("v_add_f32 v57, v57, v134")
    a("v_cvt_pk_bf16_f32 v16, v56, v57")
    a("ds_write_b16 v38, v16"); a("ds_write_b16_d16_hi v38, v16 offset:32")
    a(f"ds_write_b32 v12, v13 offset:{C_OF}")
    if spec:
        a("L_o_spin:")
        a(f"ds_read_b128 v[40:43], v10 offset:{C_OF}")
        for s in range(8): a(f"ds_read_b128 v[{84+4*s}:{87+4*s}], v36 offset:{64*s}")
        budget()
        a("s_waitcnt lgkmcnt(8)")
        a("v_min_u32 v40, v40, v41"); a("v_min3_u32 v40, v40, v42, v43"); a("v_cmp_eq_u32 vcc, 0, v40"); a("s_cbranch_vccnz L_o_spin")
        for s in range(8, 16): a(f"ds_read_b128 v[{84+4*s}:{87+4*s}], v36 offset:{64*s}")
    else:
        spin_all4(40, C_OF)
        for s in range(16): a(f"ds_read_b128 v[{84+4*s}:{87+4*s}], v36 offset:{64*s}")
    for s in range(16):
        if s % 4 == 0: a(f"s_waitcnt lgkmcnt({12 - s})")
        acc = 48 + 4 * (s & 1)
        c = "0" if s < 2 else f"v[{acc}:{acc+3}]"
        a(f"v_mfma_f32_16x16x32_bf16 v[{acc}:{acc+3}], v[{84+4*s}:{87+4*s}], v[{150+4*s}:{153+4*s}], {c}")
    a("v_add_f32 v80, v48, v52")
    a(f"v_mov_b32_dpp v82, v80 row_ror:8 {DPPF}")
    a("s_mov_b64 exec, 0xff")
    a("global_store_dwordx4 v37, v[80:83], s[30:31] sc1")
    stamp(10)
    dump_stamps()
    a("s_endpgm")
    a("L_h1_all:")
    for i in range(7): a(f"s_mov_b64 s[{68+2*i}:{69+2*i}], -1")
    a("L_h1_more:")
    a("s_mov_b32 s56, 0")
    for i in range(7):
        a(f"s_cmp_lg_u64 s[{68+2*i}:{69+2*i}], 0"); a("s_addc_u32 s56, s56, s56")
    a("s_sub_u32 s55, s56, 1"); a("s_and_b32 s55, s55, s56"); a("s_cbranch_scc0 L_h1_one")
    for i, (d, va) in enumerate(H1L):
        a(f"s_mov_b64 exec, s[{68+2*i}:{69+2*i}]")
        a(f"global_load_dwordx4 v[{d}:{d+3}], {va}, s[30:31] {pfh1}")
    a("s_mov_b64 exec, -1")
    budget()
    a("s_waitcnt vmcnt(0)")
    a("s_branch L_h1_chk")
    a("L_h1_one:")
    for i in range(6):
        a(f"s_bitcmp1_b32 s56, {6-i}"); a(f"s_cbranch_scc1 L_h1_t{i}")
    for i in (6, 0, 1, 2, 3, 4, 5):
        d, va = H1L[i]
        a(f"L_h1_t{i}:")
        a(f"global_load_dwordx4 v[{d}:{d+3}], {va}, s[30:31] {pfh1}")
        budget()
        a("s_waitcnt vmcnt(0)")
        a(f"v_cmp_ne_u32 vcc, s33, v{d+3}")
        a("v_xor_b32 v96, s33, v121"); a("v_xor_b32 v97, s33, v125")
        a(f"s_cbranch_vccnz L_h1_t{i}")
        a("v_bitop3_b32 v96, v129, s33, v96 bitop3:0xbe"); a("v_bitop3_b32 v97, v133, s33, v97 bitop3:0xbe")
        a("s_branch L_h1_ver")
    a("L_st_far:")
    a("global_store_dwordx4 v35, v[80:83], s[30:31] sc1")
    a("s_branch L_st_done")

    C("---------------- C of j = 7, g < 7: final reduction of 16 columns (batch b, tile 4g + wave) ----------------")
    a("L_red:")
    a("s_cmp_eq_u32 s4, 7"); a("s_cbranch_scc1 L_exit")
    a("s_lshl_b32 s52, s4, 2"); a("s_add_u32 s52, s52, s3"); a("s_mul_i32 s50, s6, 28"); a("s_add_u32 s50, s50, s52")
    a("s_mul_i32 s53, s6, 448"); a("s_lshl_b32 s54, s52, 4"); a("s_add_u32 s53, s53, s54")
    a("v_lshrrev_b32 v16, 5, v0"); a("v_and_b32 v17, 7, v0"); a("v_lshl_add_u32 v18, v16, 3, v17")
    a("v_add_u32 v19, s53, v18"); a("v_lshlrev_b32 v24, 1, v19")
    a("s_mul_i32 s54, s6, 7"); a("s_add_u32 s53, s4, s54"); a("s_lshl_b32 s53, s53, 9")
    a("s_lshl_b32 s54, s3, 6"); a("s_add_u32 s53, s53, s54"); a(f"s_add_u32 s53, s53, {W_OG}")
    a("v_bfe_u32 v19, v18, 1, 1"); a("v_lshlrev_b32 v19, 8, v19"); a("v_lshrrev_b32 v20, 2, v18"); a("v_lshl_add_u32 v19, v20, 4, v19")
    a("v_and_b32 v20, 1, v18"); a("v_lshl_add_u32 v19, v20, 3, v19"); a("v_add_u32 v19, s53, v19")
    a("v_bfe_u32 v21, v0, 3, 2"); a(f"s_movk_i32 s54, {28*512}")
    a("v_mad_u32_u24 v25, v21, s54, v19")
    a(f"v_add_u32 v27, {4*28*512}, v25"); a(f"v_add_u32 v28, {8*28*512}, v25")
    a("v_min_u32 v22, 1, v21"); a("v_add_u32 v22, 12, v22"); a("v_mad_u32_u24 v29, v22, s54, v19")
    a("v_cmp_gt_u32 s[44:45], 2, v21")
    a("s_lshl_b32 s56, s50, 10"); a(f"s_add_u32 s56, s56, {W_H2}"); a("v_add_u32 v26, s56, v9")
    a(f"global_load_ushort v30, v24, s[8:9] {xf}")
    a("s_branch L_og_first")
    a("L_og_retry:")
    budget()
    a("s_waitcnt vmcnt(0)")
    a("L_og_first:")
    for k, va in enumerate(("v25", "v27", "v28", "v29")): a(f"global_load_dwordx2 v[{32+2*k}:{33+2*k}], {va}, s[30:31] {pf}")
    def gate():
        a("s_waitcnt vmcnt(1)")
        tagcheck(["v33", "v35", "v37", "v39"], "v16", "v17", "L_og_retry")
        a("v_cndmask_b32 v38, 0, v38, s[44:45]"); a("v_add_f32 v32, v32, v34"); a("v_add_f32 v36, v36, v38"); a("v_add_f32 v32, v32, v36")
        a(f"v_add_f32_dpp v32, v32, v32 row_ror:8 {DPPF}")
        swapred("v_add_f32", "v32", "v33", 16)
        rbf("v32", "v32")
        a(f"v_mul_f32 v33, {hex(f2u(-LOG2E))}, v32"); a("v_exp_f32 v33, v33"); a("v_add_f32 v33, 1.0, v33"); a("v_rcp_f32 v33, v33")
        a("v_mul_f32 v32, v32, v33"); rbf("v32", "v32")
        a("v_lshlrev_b32 v30, 16, v30")
        stamp(11)
    mpoll([(48, "v26", 0)], "h2", 16, pre=gate)
    stamp(12)
    a("v_permlane32_swap_b32 v48, v50"); a("v_add_f32 v48, v48, v50")
    swapred("v_add_f32", "v48", "v50", 16)
    a(f"v_add_f32_dpp v48, v48, v48 row_ror:8 {DPPF}")
    rbf("v48", "v48")
    a("v_mul_f32 v48, v48, v32"); rbf("v48", "v48")
    a("v_add_f32 v48, v48, v30"); a("v_cvt_pk_bf16_f32 v48, v48, v48")
    a("s_mov_b32 exec_lo, 0xff"); a("s_mov_b32 exec_hi, 0xff")
    a("global_store_short v24, v48, s[26:27]")
    a("L_exit:")
    stamp(13)
    dump_stamps()
    a("s_endpgm")

    nq = [0]
    def needq():
        nq[0] += 1; k = nq[0]
        a("s_cmp_eq_u32 s58, 1"); a(f"s_cbranch_scc0 L_nq_skip{k}")
        a(f"L_nq{k}:")
        a(f"global_load_dwordx4 v[56:59], v30, s[30:31] {pf}")
        budget()
        a("s_waitcnt vmcnt(0)")
        tagcheck(["v57", "v59"], "v18", "v19", f"L_nq{k}")
        a("global_store_dwordx4 v30, v[56:59], s[30:31] sc1")
        a("s_mov_b32 s58, 0")
        a(f"L_nq_skip{k}:")
    C("---------------- Q: q gather ; s58 = 1 while this workgroup's q tile has not been written through ----------------")
    a("L_Q:")
    if tlb == 1:
        a("s_add_u32 s84, s12, s54"); a("s_addc_u32 s85, s13, 0"); a("s_load_dword s86, s[84:85], 0")
        a(f"s_mul_i32 s87, s4, {512*896}"); a("s_add_u32 s88, s16, s87"); a("s_addc_u32 s89, s17, 0"); a("s_load_dword s90, s[88:89], 0"); a(f"s_load_dword s91, s[88:89], {511*896}")
        a(f"s_add_u32 s88, s30, {W_H2}"); a("s_addc_u32 s89, s31, 0"); a("s_load_dword s92, s[88:89], 0"); a("s_load_dword s93, s[26:27], 0")
    if tlb == 2:
        a("v_mov_b32 v16, s54"); a(f"s_mul_i32 s87, s4, {512*896}"); a("v_mov_b32 v17, s87"); a(f"v_mov_b32 v18, {W_H2}")
        a("s_mov_b64 exec, 1")
        a("global_load_dword v32, v16, s[12:13] nt"); a("global_load_dword v33, v17, s[16:17] nt"); a("global_load_dword v34, v18, s[30:31] nt")
        a("s_mov_b64 exec, -1")
    a("s_lshl_b32 s50, s6, 10"); a("s_lshl_b32 s51, s4, 7"); a("s_add_u32 s50, s50, s51"); a("s_lshl_b32 s50, s50, 4"); a(f"s_add_u32 s50, s50, {W_QG}")
    a("v_add_u32 v25, s50, v9")
    a("v_lshlrev_b32 v26, 3, v0"); a(f"v_add_u32 v26, {QI}, v26")
    a("v_mov_b32 v43, s33")
    a("s_lshl_b32 s50, s49, 8"); a(f"s_add_u32 s50, s50, {W_QG}"); a("v_lshlrev_b32 v16, 14, v15"); a("v_lshl_add_u32 v16, v14, 4, v16"); a("v_add_u32 v30, s50, v16")
    a("s_cmp_eq_u32 s35, 1"); a("s_cselect_b32 s58, 1, 0")
    a(f"s_mov_b32 s55, {q_rounds}")
    spin_ge("v16", C_FILL, qpoll_fill, sleep=1)
    stamp(1)
    def qhook():
        a("s_sub_u32 s55, s55, 1"); a("s_cbranch_scc0 L_q_nohook"); needq(); a("L_q_nohook:")
    mpoll([(48, "v25", 0), (52, "v25", 1024)], "q", 16, sleep=4, hook=qhook)
    a("ds_write2_b32 v26, v48, v50 offset0:0 offset1:1")
    a("ds_write2_b32 v26, v52, v54 offset0:128 offset1:129")
    a("v_mov_b32 v16, 1"); a(f"ds_write_b32 v10, v16 offset:{C_QRDY}")
    stamp(2)
    C("(max, sum, die id) entries: one line per workgroup ; 16-lane row k of the gather looks at group ((b+k)&3, g)")
    a("v_and_b32 v17, 1, v0"); a("v_lshlrev_b32 v16, 4, v17")
    a("v_add_u32 v18, s6, v15"); a("v_and_b32 v18, 3, v18"); a("v_lshlrev_b32 v18, 13, v18")
    a("v_lshrrev_b32 v19, 1, v14"); a("v_lshl_add_u32 v18, v19, 7, v18"); a("v_add_u32 v18, v18, v16")
    a("s_lshl_b32 s50, s4, 10"); a(f"s_add_u32 s50, s50, {W_MLG}"); a("v_add_u32 v25, s50, v18")
    a("s_lshl_b32 s51, s6, 13"); a("s_add_u32 s50, s50, s51"); a("s_lshl_b32 s51, s7, 7"); a("s_add_u32 s50, s50, s51"); a("v_add_u32 v24, s50, v16")
    a("v_add_u32 v27, v16, v10")
    a("v_lshl_add_u32 v28, v17, 2, v10")
    a("s_getreg_b32 s52, hwreg(HW_REG_XCC_ID, 0, 4)")
    a("s_xor_b32 s53, s52, s33"); a("v_mov_b32 v41, s53")
    spin_all4(44, C_PF, sleep=4)
    a(f"ds_read_b128 v[44:47], v27 offset:{C_MX}"); a(f"ds_read_b128 v[48:51], v27 offset:{C_LS}")
    a("s_waitcnt lgkmcnt(0)")
    a("v_max_f32 v40, v44, v45"); a("v_max3_f32 v40, v40, v46, v47")
    a("v_add_f32 v48, v48, v49"); a("v_add_f32 v50, v50, v51"); a("v_add_f32 v42, v48, v50")
    a("s_mov_b64 exec, 3")
    a("global_store_dwordx4 v24, v[40:43], s[30:31]")
    a("s_mov_b64 exec, -1")
    a(f"s_mov_b32 s55, {ml_rounds}")
    stamp(3)
    spin_ge("v16", C_FILL, ml_fill, sleep=8)
    def mlload():
        a(f"global_load_dwordx4 v[48:51], v25, s[30:31] {pf}")
        a("s_waitcnt vmcnt(0)")
        a("v_xor_b32 v16, s33, v49"); a("v_lshrrev_b32 v17, 4, v16"); a("v_bitop3_b32 v17, v51, s33, v17 bitop3:0xbe")
        a("v_cmp_ne_u32 s[56:57], s52, v16"); a("v_cmp_ne_u32 s[60:61], 0, v17")
        a("s_andn2_b64 s[56:57], s[56:57], s[60:61]")
    def mlpub():
        a("s_mov_b64 exec, 3"); a("global_store_dwordx4 v24, v[40:43], s[30:31] sc1"); a("s_mov_b64 exec, -1")
    a("s_branch L_ml_first")
    a("L_ml_retry:")
    budget()
    C("own group incomplete: after a few rounds, or on a foreign die id, write through what was published so far")
    a("s_cmp_eq_u32 s55, 1000"); a("s_cbranch_scc1 L_ml_again")
    a("s_and_b32 s59, s56, 0xffff"); a("s_cbranch_scc1 L_ml_pub")
    a("s_sub_u32 s55, s55, 1"); a("s_cbranch_scc0 L_ml_again")
    a("L_ml_pub:")
    mlpub(); needq()
    a("s_movk_i32 s55, 1000")
    a("L_ml_again:")
    a("s_sleep 4")
    a("L_ml_first:")
    mlload()
    a("s_and_b32 s59, s60, 0xffff"); a("s_cbranch_scc1 L_ml_retry")
    a("s_and_b32 s59, s56, 0xffff"); a(f"s_cselect_b32 s54, 0, {0 if forcesc1 else 1}"); a("s_cbranch_scc0 L_ml_ok")
    mlpub()
    a("L_ml_ok:")
    C("scale of this split = exp(own max - group max) / group sum")
    a(f"s_mov_b32 s50, {hex(f2u(CEXP))}")
    a("v_mov_b32 v44, v48")
    for m in ("quad_perm:[2,3,0,1]", "row_ror:4", "row_ror:8"): a(f"v_max_f32_dpp v44, v44, v44 {m} {DPPF}")
    a("v_sub_f32 v45, v48, v44"); a("v_sub_f32 v46, v40, v44")
    a("v_mul_f32 v45, s50, v45"); a("v_mul_f32 v46, s50, v46")
    a("v_exp_f32 v45, v45"); a("v_exp_f32 v46, v46")
    a("v_mul_f32 v45, v45, v50")
    for m in ("quad_perm:[2,3,0,1]", "row_ror:4", "row_ror:8"): a(f"v_add_f32_dpp v45, v45, v45 {m} {DPPF}")
    a("v_rcp_f32 v45, v45")
    a("v_mov_b32 v17, s54")
    a("v_mul_f32 v46, v46, v45")
    a("v_mov_b32 v20, 1")
    a("s_mov_b64 exec, 3")
    a(f"ds_write_b32 v28, v46 offset:{C_FAC}")
    a(f"ds_write_b32 v10, v17 offset:{C_LOC}")
    a(f"ds_write_b32 v10, v20 offset:{C_FACF}")
    a("s_mov_b64 exec, -1")
    stamp(4)
    C("are all 32 workgroups of this g on this die?  decides the q write-through and the FFN partial stores")
    a("s_cmp_eq_u32 s35, 4"); a("s_cselect_b32 s59, 1, s58"); a("s_cmp_eq_u32 s59, 0"); a("s_cbranch_scc1 L_q_exit")
    a(f"s_mov_b32 s55, {all_rounds}")
    a("L_all:")
    a("s_cmp_lg_u64 s[56:57], 0"); a("s_cbranch_scc1 L_all_no")
    a("s_cmp_eq_u64 s[60:61], 0"); a("s_cbranch_scc1 L_all_yes")
    a("s_sub_u32 s55, s55, 1"); a("s_cbranch_scc1 L_all_no")
    a("s_sleep 8")
    mlload()
    a("s_branch L_all")
    a("L_all_no:")
    needq()
    a("v_mov_b32 v20, 2")
    a("L_all_yes:")
    a(f"ds_write_b32 v10, v20 offset:{C_ALL}")
    a("L_q_exit:")
    stamp(5)
    dump_stamps()
    a("s_endpgm")

    C("---------------- F: h = silu(gate) * up for 128 rows, h @ w2[128 x 64] ----------------")
    a("L_F:")
    a("s_cmp_eq_u32 s2, 255"); a("s_cbranch_scc1 L_E")
    a("s_cmp_eq_u32 s35, 4"); a("s_cbranch_scc0 L_end")
    tile_tr_addr("v20", None, F2B)
    for tau in range(1, 4): a(f"v_xor_b32 v{20+tau}, {32*tau}, v20")
    a("s_lshl_b32 s52, s5, 12"); a(f"s_add_u32 s52, s52, {W_GU}"); a("v_add_u32 v25, s52, v9")
    a("s_mul_i32 s52, s5, 28"); a("s_add_u32 s52, s52, s4"); a("s_lshl_b32 s52, s52, 9"); a(f"s_add_u32 s52, s52, {W_OG}")
    a("v_and_b32 v17, 3, v14"); a("v_lshrrev_b32 v18, 2, v14"); a("v_lshlrev_b32 v18, 6, v18"); a("v_lshl_add_u32 v18, v15, 4, v18")
    a(f"s_movk_i32 s51, {7*512}"); a("v_mad_u32_u24 v16, v17, s51, v18"); a("v_add_u32 v24, s52, v16")
    a("v_bfe_u32 v16, v0, 2, 2"); a("v_lshlrev_b32 v16, 8, v16"); a("v_lshl_add_u32 v16, v15, 5, v16"); a("v_lshl_add_u32 v26, v17, 3, v16"); a(f"v_add_u32 v26, {HA}, v26")
    a("v_lshlrev_b32 v16, 8, v17"); a("v_lshl_add_u32 v27, v15, 4, v16"); a(f"v_add_u32 v27, {HA}, v27")
    a("s_mov_b32 s44, 0xf0f0f0f0"); a("s_mov_b32 s45, 0xf0f0f0f0"); a("s_mov_b32 s46, 0xff00ff00"); a("s_mov_b32 s47, 0xff00ff00")
    spin_ge("v16", C_FILL, 1, sleep=2)
    for s in range(4):
        for tau in range(4):
            r = 128 + (s * 4 + tau) * 4
            a(f"ds_read_b64_tr_b16 v[{r}:{r+1}], v{20+tau} offset:{4096*s}")
            a(f"ds_read_b64_tr_b16 v[{r+2}:{r+3}], v{20+tau} offset:{4096*s+512}")
    a(f"v_mov_b32 v16, {BIG}"); a("s_waitcnt lgkmcnt(0)"); a(f"ds_write_b32 v10, v16 offset:{C_FP}")
    stamp(1)
    spin_ge("v16", C_FILL, gu_fill, sleep=8)
    a("L_h_retry:")
    for i in range(4): a(f"global_load_dwordx4 v[{64+4*i}:{67+4*i}], v25, s[30:31] offset:{1024*i} {pf}")
    budget()
    a("s_waitcnt vmcnt(0)")
    tagcheck([f"v{65+2*i}" for i in range(8)], "v16", "v17", "L_h_retry")
    stamp(2)
    for k in range(4):
        a(f"v_lshlrev_b32 v{84+2*k}, 16, v{64+2*k}"); a(f"v_and_b32 v{85+2*k}, 0xffff0000, v{64+2*k}")
        a(f"v_lshlrev_b32 v{92+2*k}, 16, v{72+2*k}"); a(f"v_and_b32 v{93+2*k}, 0xffff0000, v{72+2*k}")
    a(f"s_mov_b32 s50, {hex(f2u(-LOG2E))}")
    for i in range(8): a(f"v_mul_f32 v{100+i}, s50, v{84+i}")
    for i in range(8): a(f"v_exp_f32 v{100+i}, v{100+i}")
    for i in range(8): a(f"v_add_f32 v{100+i}, 1.0, v{100+i}")
    for i in range(8): a(f"v_rcp_f32 v{100+i}, v{100+i}")
    for i in range(8): a(f"v_mul_f32 v{100+i}, v{100+i}, v{84+i}")
    for i in range(8): rbf(f"v{100+i}", f"v{100+i}")
    for i in range(8): a(f"v_mul_f32 v{100+i}, v{100+i}, v{92+i}")
    for k in range(4): a(f"v_cvt_pk_bf16_f32 v{108+k}, v{100+2*k}, v{101+2*k}")
    a("ds_write_b64 v26, v[108:109]"); a("ds_write_b64 v26, v[110:111] offset:128")
    for s in range(4): a(f"ds_read_b128 v[{64+4*s}:{67+4*s}], v27 offset:{64*s}")
    a("s_waitcnt lgkmcnt(0)")
    for s in range(4):
        for tau in range(4):
            r = 128 + (s * 4 + tau) * 4
            c = "0" if s == 0 else f"v[{84+4*tau}:{87+4*tau}]"
            a(f"v_mfma_f32_16x16x32_bf16 v[{84+4*tau}:{87+4*tau}], v[{r}:{r+3}], v[{64+4*s}:{67+4*s}], {c}")
    for k in (41, 43, 45, 47): a(f"v_mov_b32 v{k}, s33")
    for r in range(4):
        a(f"v_cndmask_b32 v16, v{84+r}, v{88+r}, s[44:45]"); a(f"v_cndmask_b32 v17, v{92+r}, v{96+r}, s[44:45]")
        a(f"v_cndmask_b32 v{40+2*r}, v16, v17, s[46:47]")
    spin_ge("v16", C_ALL, 1, sleep=2)
    a("v_cmp_eq_u32 vcc, 1, v16"); a("s_cbranch_vccz L_og_far")
    a("global_store_dwordx4 v24, v[40:43], s[30:31]")
    a("global_store_dwordx4 v24, v[44:47], s[30:31] offset:256")
    a("s_branch L_exit")
    a("L_og_far:")
    a("global_store_dwordx4 v24, v[40:43], s[30:31] sc1")
    a("global_store_dwordx4 v24, v[44:47], s[30:31] offset:256 sc1")
    a("s_branch L_exit")
    C("---------------- wave 6 of workgroup 255: one result row per batch complete => every workgroup has read the tag word; renew it ----------------")
    a("L_E:")
    for k in range(4): a(f"v_add_u32 v{28+k}, {W_H2 + k*28*1024}, v9")
    spin_ge("v16", C_FILL, 33, sleep=16)
    mpoll([(48 + 4 * k, f"v{28+k}", 0) for k in range(4)], "ew", 16)
    a("s_mov_b64 exec, 1")
    a("v_mov_b32 v16, 0"); a("v_mov_b32 v17, s33")
    a("global_store_dword v16, v17, s[30:31]")
    a("s_branch L_exit")
    a("L_end:")
    a("s_endpgm")
    C("a poll bound ran out")
    a("L_fail:")
    a("s_mov_b64 exec, 1")
    a("s_lshl_b32 s60, s3, 2"); a("s_or_b32 s61, s2, 0xbad00000")
    a("v_mov_b32 v16, s60"); a("v_mov_b32 v17, s61")
    a("global_store_dword v16, v17, s[28:29]")
    a("s_endpgm")
    a.raw('.section .rodata,"a"'); a.raw(".p2align 6"); a.raw(f".amdhsa_kernel {KNAME}_kernel")
    a.raw("  .amdhsa_next_free_vgpr 256"); a.raw("  .amdhsa_next_free_sgpr 96"); a.raw("  .amdhsa_accum_offset 256")
    a.raw("  .amdhsa_group_segment_fixed_size 0"); a.raw("  .amdhsa_kernarg_size 96"); a.raw("  .amdhsa_user_sgpr_count 2")
    a.raw("  .amdhsa_user_sgpr_kernarg_segment_ptr 1"); a.raw("  .amdhsa_system_sgpr_workgroup_id_x 1"); a.raw(".end_amdhsa_kernel")
    return a.text()

STAMPS = {'C': 11, 'L': 4, 'Q': 7, 'F': 4, 'R': 6}
if __name__ == "__main__":
    import ast
    kw = {}
    for x in sys.argv[2:]:
        k, v = x.split("=", 1)
        try: kw[k] = ast.literal_eval(v)
        except Exception: kw[k] = v
    open(sys.argv[1], "w").write(gen(**kw))
```

```python
import sys, struct
from asmlib import Asm
KNAME = "recurrent_scan__gqa_block_cached__glu_gated_swiglu__decode"

SLOT = 16384; NS = 9
BIGW = 6 * SLOT; WOB = 5 * SLOT; F2B = 8 * SLOT
CTRL = BIGW + 57344; XN = CTRL + 256; QI = XN + 3584; PB = QI + 1024; HA = PB + 2048; LDS_END = HA + 1024; OI = XN
assert LDS_END <= 163840
C_CP = 0; C_FP = 16; C_FILL = 32; C_XNF = 48; C_QRDY = 64; C_MXF = 80; C_PF = 96; C_FACF = 112
C_MX = 128; C_LS = 160; C_FAC = 192; C_LOC = 200; C_ALL = 204; C_P2 = 208; C_OF = 224
W_QG = 0x1000; W_GU = 0x20000; W_OG = 0x40000; W_MLG = 0x80000; W_H1 = 0x100000; W_H2 = 0x200000; W_DIAG = 0x400000
BIG = 1000
CEXP = 0.09016844005556021
LOG2E = 1.4426950408889634
def f2u(f): return struct.unpack("<I", struct.pack("<f", f))[0]

HEADER = """;
; Hand-offs between workgroups are 16-byte {value, tag, value, tag} granules in d_ws; tag = hash of a word of d_ws that the launch
; rewrites once every workgroup has read it.  Stores stay in the die's L2 only when the die ids carried by the (max, sum) entries
; prove that all readers sit on the same die; otherwise (or after a few empty polls) they are written through.
"""

def gen(diag=False, win=18, w0=28, wdelta=6, wboost=30, endboost=2, lv0=2, lvF=4, lv7=8, lvH=12, lvlate=3, NB=5, nA=7, nB=7,
        wo_start=19, wo_per=6, qpoll_fill=3, ml_fill=24, gu_fill=28, q_rounds=6, ml_rounds=10, mlsleep=2, all_rounds=4, forcesc1=False, spec=True, tlb=0, wstart=26, nstart=2, pf='sc1', pfh1='sc1', pfh2='sc1', xf=''):
    a = Asm()
    C = a.comment
    hdr = open("cdna_kernels/" + KNAME + ".s.ref").read().split("; Override launch")[0]
    a.raw(hdr.rstrip())
    a.raw(f"; @launch grid=(256,1,1) block=(448,1,1) lds={LDS_END}")
    a.raw(HEADER.rstrip())
    a.raw('.amdgcn_target "amdgcn-amd-amdhsa--gfx950"')
    a.raw(".text"); a.raw(f".globl {KNAME}_kernel"); a.raw(".p2align 12")
    a.raw(".p2align 8"); a.raw(f".type {KNAME}_kernel,@function"); a.raw(f"{KNAME}_kernel:")
    def stamp(i):
        if diag:
            a("s_memrealtime s[64:65]"); a("s_waitcnt lgkmcnt(0)"); a(f"v_writelane_b32 v247, s64, {2*i}"); a(f"v_writelane_b32 v247, s65, {2*i+1}")
    def dump_stamps():
        if diag:
            a("s_mov_b32 exec_lo, -1"); a("s_mov_b32 exec_hi, 0")
            a("s_lshl_b32 s60, s2, 3"); a("s_add_u32 s60, s60, s3"); a("s_lshl_b32 s60, s60, 7"); a(f"s_add_u32 s60, s60, {W_DIAG}")
            a("v_lshl_add_u32 v246, v0, 2, s60")
            a("global_store_dword v246, v247, s[30:31]")
    lbl = [0]
    def newlabel(p):
        lbl[0] += 1; return f"L_{p}_{lbl[0]}"
    def budget():
        a("s_sub_u32 s62, s62, 1"); a("s_cbranch_scc1 L_fail")
    def spin_tail(L, Ld, sleep):
        a(f"s_cbranch_vccnz {Ld}")
        if sleep: a(f"s_sleep {sleep}")
        a("s_sub_u32 s62, s62, 1"); a(f"s_cbranch_scc0 {L}"); a("s_branch L_fail"); a(f"{Ld}:")
    def spin_ge(vtmp, off, val, sleep=0):
        L = newlabel("spin"); Ld = newlabel("spind")
        a(f"{L}:"); a(f"ds_read_b32 {vtmp}, v10 offset:{off}"); a("s_waitcnt lgkmcnt(0)")
        a(f"v_cmp_le_u32 vcc, {val}, {vtmp}"); spin_tail(L, Ld, sleep)
    def spin_all4(vt, off, sleep=0):
        L = newlabel("spin4"); Ld = newlabel("spin4d")
        a(f"{L}:"); a(f"ds_read_b128 v[{vt}:{vt+3}], v10 offset:{off}"); a("s_waitcnt lgkmcnt(0)")
        a(f"v_min_u32 v{vt}, v{vt}, v{vt+1}"); a(f"v_min3_u32 v{vt}, v{vt}, v{vt+2}, v{vt+3}")
        a(f"v_cmp_ne_u32 vcc, 0, v{vt}"); spin_tail(L, Ld, sleep)
    def tagcheck(tags, vacc, vacc2, retry):
        h = (len(tags) + 1) // 2
        t1, t2 = tags[:h], tags[h:]
        a(f"v_xor_b32 {vacc}, s33, {t1[0]}")
        if t2: a(f"v_xor_b32 {vacc2}, s33, {t2[0]}")
        for i in range(1, h):
            a(f"v_bitop3_b32 {vacc}, {t1[i]}, s33, {vacc} bitop3:0xbe")
            if i < len(t2): a(f"v_bitop3_b32 {vacc2}, {t2[i]}, s33, {vacc2} bitop3:0xbe")
        if t2: a(f"v_or_b32 {vacc}, {vacc}, {vacc2}")
        a(f"v_cmp_ne_u32 vcc, 0, {vacc}")
        a(f"s_cbranch_vccnz {retry}")
    def mpoll(loads, name, vt, pre=None, sleep=0, hook=None, sm=72):
        fl = pfh2 if name in ('h2', 'ew') else pf
        n = len(loads)
        for (d, va, off) in loads: a(f"global_load_dwordx4 v[{d}:{d+3}], {va}, s[30:31] offset:{off} {fl}")
        if pre: pre()
        a(f"s_branch L_{name}_chk")
        a(f"L_{name}_retry:")
        if hook: hook()
        if sleep: a(f"s_sleep {sleep}")
        for i, (d, va, off) in enumerate(loads):
            a(f"s_mov_b64 exec, s[{sm+2*i}:{sm+2*i+1}]")
            if n > 1: a(f"s_cbranch_execz L_{name}_sk{i}")
            a(f"global_load_dwordx4 v[{d}:{d+3}], {va}, s[30:31] offset:{off} {fl}")
            if n > 1: a(f"L_{name}_sk{i}:")
        a("s_mov_b64 exec, -1")
        budget()
        a(f"L_{name}_chk:")
        a("s_waitcnt vmcnt(0)")
        for i, (d, va, off) in enumerate(loads): a(f"v_xor_b32 v{vt+i}, s33, v{d+1}")
        for i, (d, va, off) in enumerate(loads): a(f"v_bitop3_b32 v{vt+i}, v{d+3}, s33, v{vt+i} bitop3:0xbe")
        for i, (d, va, off) in enumerate(loads): a(f"v_cmp_ne_u32 s[{sm+2*i}:{sm+2*i+1}], 0, v{vt+i}")
        if n == 1: a(f"s_cmp_lg_u64 s[{sm}:{sm+1}], 0")
        else:
            a(f"s_or_b64 vcc, s[{sm}:{sm+1}], s[{sm+2}:{sm+3}]")
            for i in range(2, n): a(f"s_or_b64 vcc, vcc, s[{sm+2*i}:{sm+2*i+1}]")
        a(f"s_cbranch_scc1 L_{name}_retry")
    def rbf(dst, src):
        a(f"v_cvt_pk_bf16_f32 {dst}, {src}, {src}"); a(f"v_and_b32 {dst}, 0xffff0000, {dst}")
    DPPF = "row_mask:0xf bank_mask:0xf"
    def red16(op, v):
        for m in ("quad_perm:[1,0,3,2]", "quad_perm:[2,3,0,1]", "row_half_mirror", "row_mirror"): a(f"{op}_dpp {v}, {v}, {v} {m} {DPPF}")
    def swapred(op, v, t, which):
        a(f"v_mov_b32 {t}, {v}"); a(f"v_permlane{which}_swap_b32 {v}, {t}"); a(f"{op} {v}, {v}, {t}")
    def noproj(label):
        a("s_sub_u32 s50, s35, 1"); a("s_cmp_ge_u32 s50, 3"); a(f"s_cbranch_scc1 {label}")

    if diag: a("s_memrealtime s[66:67]")
    a("s_cmp_ge_u32 s2, 256")
    a("s_cbranch_scc1 L_end")
    a("s_load_dwordx16 s[8:23], s[0:1], 0")
    a("s_load_dwordx8 s[24:31], s[0:1], 64")
    a("v_lshrrev_b32 v1, 6, v0")
    a("v_and_b32 v0, 63, v0")
    a("v_readfirstlane_b32 s3, v1                ; wave")
    C("s4 = g, s5 = r = id>>3, s6 = b, s7 = j ; duty s35: 0 none, 1 q tile, 2 gate tile, 3 up tile, 4 down-projection tile ; s49 = tile")
    a("s_and_b32 s4, s2, 7"); a("s_lshr_b32 s5, s2, 3"); a("s_and_b32 s6, s5, 3"); a("s_lshr_b32 s7, s5, 2")
    assert 5 * nA + 3 * nB == 56
    a(f"s_mul_i32 s48, s4, {nA}"); a(f"s_mul_i32 s49, s4, {nB}"); a(f"s_add_u32 s49, s49, {4*nA - 4*nB}")
    a("s_cmp_lt_u32 s4, 4"); a("s_cselect_b32 s48, s48, s49"); a(f"s_cselect_b32 s34, {24-nA}, {24-nB}")
    a("s_cmp_eq_u32 s4, 7"); a(f"s_cselect_b32 s34, {24-nA}, s34"); a("s_cselect_b32 s55, 0, 14")
    a("s_cmp_lt_u32 s5, s55"); a("s_cselect_b32 s35, 4, 0")
    a("s_add_u32 s48, s48, s5"); a("s_sub_u32 s48, s48, s34"); a("s_sub_u32 s49, s48, 28")
    a("s_cmp_lt_u32 s48, 28"); a("s_cselect_b32 s49, s48, s49"); a("s_cselect_b32 s48, 2, 3")
    a("s_cmp_ge_u32 s5, s34"); a("s_cselect_b32 s35, s48, s35")
    a("s_lshl_b32 s48, s4, 3"); a("s_add_u32 s48, s48, s5"); a("s_sub_u32 s48, s48, 24")
    a("s_movk_i32 s57, 3584"); a("s_mov_b32 s38, 1605632")
    a("s_cmp_ge_u32 s5, 24"); a("s_cselect_b32 s35, 1, s35"); a("s_cselect_b32 s49, s48, s49"); a("s_cselect_b32 s57, 8192, s57"); a("s_cselect_b32 s38, 3670016, s38")
    a("s_mov_b32 s39, 0x20000")
    C("weight tile: start offset s48, row stride s57, LDS destination s60, pairs of 8-row loads s61")
    a("s_mul_i32 s55, s5, 896"); a("s_add_u32 s55, s55, s4")
    a("s_cmp_eq_u32 s35, 4"); a("s_cselect_b32 s48, s55, s49"); a("s_cselect_b32 s57, 896, s57"); a("s_cselect_b32 s61, 8, 28")
    a(f"s_cselect_b32 s60, {(F2B-BIGW)//1024}, 0"); a("s_lshl_b32 s48, s48, 7"); a("s_lshl_b32 s60, s60, 10"); a(f"s_add_u32 s60, s60, {BIGW}")
    a("s_cmp_eq_u32 s35, 0"); a("s_cselect_b32 s61, 0, s61")
    a("s_lshl_b32 s56, s57, 3")
    a("s_lshl_b32 s52, s6, 3"); a("s_add_u32 s52, s52, s4"); a("s_lshl_b32 s52, s52, 21"); a("s_lshl_b32 s53, s7, 18"); a("s_add_u32 s54, s52, s53")
    a("s_mov_b32 s42, 0x4000000"); a("s_mov_b32 s43, 0x20000")
    a("v_lshlrev_b32 v9, 4, v0")
    a(f"v_mov_b32 v10, {CTRL}")
    C("per-lane source offsets (16-byte chunks permuted inside a row so that the LDS reads are conflict free): v24/v25 tiles, v16..v23 K")
    a("v_lshrrev_b32 v2, 3, v0"); a("v_and_b32 v3, 7, v0"); a("v_and_b32 v8, 2, v2"); a("v_xor_b32 v3, v3, v8")
    a("v_lshlrev_b32 v3, 4, v3")
    a("v_mad_u32_u24 v24, v2, s57, v3"); a("v_xor_b32 v25, 64, v3"); a("v_mad_u32_u24 v25, v2, s57, v25")
    a("v_lshrrev_b32 v28, 5, v0"); a("v_and_b32 v29, 31, v0"); a("v_lshlrev_b32 v30, 9, v28"); a("v_xor_b32 v15, v29, v28")
    for p in range(8):
        if p: a(f"v_xor_b32 v{16+p}, {2*p}, v15"); a(f"v_lshl_add_u32 v{16+p}, v{16+p}, 4, v30")
        else: a("v_lshl_add_u32 v16, v15, 4, v30")
    a("s_mov_b32 s62, 0x100000")
    a("s_cmp_eq_u32 s3, 4")
    a("s_waitcnt lgkmcnt(0)")
    if diag: a("v_writelane_b32 v247, s66, 0"); a("v_writelane_b32 v247, s67, 1")
    a("s_cbranch_scc0 L_others")

    C("---------------- L: loader ----------------")
    if diag == 3: a("s_memrealtime s[84:85]")
    a("s_cmp_eq_u32 s35, 2"); a("s_cselect_b32 s36, s20, s22"); a("s_cselect_b32 s37, s21, s23")
    a("s_cmp_eq_u32 s35, 1"); a("s_cselect_b32 s36, s14, s36"); a("s_cselect_b32 s37, s15, s37")
    a("s_cmp_eq_u32 s35, 4"); a("s_cselect_b32 s36, s24, s36"); a("s_cselect_b32 s37, s25, s37")
    a("s_mov_b32 m0, s60"); a("s_mov_b32 s40, s10"); a("s_mov_b32 s41, s11")
    a("s_setprio 3")
    a("s_mov_b32 s58, 1")
    a("s_cmp_eq_u32 s61, 0"); a("s_cbranch_scc1 L_ld_kv")
    if diag == 3: a("s_memrealtime s[86:87]")
    a("L_tile:")
    for k in range(2):
        a(f"s_waitcnt vmcnt({w0-1})")
        a(f"buffer_load_dwordx4 v{24+k}, s[36:39], s48 offen nt lds")
        a("s_add_u32 m0, m0, 1024"); a("s_add_u32 s48, s48, s56")
    a("s_sub_u32 s61, s61, 1")
    a(f"s_cmp_lg_u32 s61, {28 - min(w0, 24)//2}"); a("s_cbranch_scc1 L_tile_nb"); a("s_barrier"); a("s_movk_i32 s58, 100"); a("L_tile_nb:")
    a("s_cmp_lg_u32 s61, 0"); a("s_cbranch_scc1 L_tile")
    a("L_ld_kv:")
    if diag == 3: a("s_memrealtime s[88:89]")
    C("s50 item (0..15 K, 16..31 V), s51 LDS slot, s52 source offset, s63 ring end, s53 ring distance")
    a("s_mov_b32 s52, s54"); a("s_mov_b32 s50, 0"); a("s_mov_b32 s51, 0"); a(f"s_mov_b32 s63, {NS*SLOT}"); a("s_mov_b32 s53, 5")
    C("loads in flight = base + s46/4: workgroups with more bytes to fetch (and the dies that are dispatched last) get a wider window")
    a("s_cmp_eq_u32 s35, 4"); a(f"s_cselect_b32 s46, {lvF}, {lv0}")
    a("s_sub_u32 s55, s35, 1"); a("s_cmp_lt_u32 s55, 3"); a(f"s_cselect_b32 s46, {lvH}, s46"); a("s_cmp_eq_u32 s7, 7"); a(f"s_cselect_b32 s46, {lv7}, s46")
    if lvlate: a("s_getreg_b32 s55, hwreg(HW_REG_XCC_ID, 0, 4)"); a("s_cmp_ge_u32 s55, 4"); a(f"s_cselect_b32 s55, {lvlate}, 0"); a("s_add_u32 s46, s46, s55")
    a("s_mov_b32 s47, 0")
    NWO = -(-64 // wo_per)
    assert wo_start >= 19 and wo_start + NWO <= 30 and wo_per % 2 == 0 and 17 <= win and win + wdelta + NB - 1 <= 32
    def item_check(c):
        a(f"L_check{c}:")
        a("s_waitcnt lgkmcnt(0)")
        a("v_min3_u32 v40, v40, v41, v42"); a("v_min3_u32 v40, v40, v43, v44")
        a("s_sub_u32 s56, s50, s53")
        if c == "W": a("s_max_u32 s56, s56, 19")
        a("v_readfirstlane_b32 s55, v40")
        a("s_cmp_gt_u32 s55, s56")
        a(f"s_cbranch_scc0 L_slow{c}")
        if c == "P":
            a(f"s_cmp_ge_u32 s50, {32-endboost}"); a("s_cbranch_scc1 L_goPb")
            a("L_levelP:")
        a("s_and_b32 s47, s47, 3"); a("s_add_u32 s47, s47, s46")
        for k in range(NB - 1, 0, -1):
            a(f"s_cmp_ge_u32 s47, {4*k}"); a(f"s_cbranch_scc1 L_go{c}{k}")
    def item_body(c, w, nwo):
        a(f"L_go{c}:")
        if diag == 2:
            a("s_memrealtime s[70:71]"); a("s_waitcnt lgkmcnt(0)"); a("s_mov_b32 m0, s50"); a("v_writelane_b32 v60, s70, m0")
        if nwo:
            a("s_mov_b32 m0, s60")
            for k in range(nwo):
                a(f"s_waitcnt vmcnt({w-1})")
                a(f"buffer_load_dwordx4 v{24+(k&1)}, s[36:39], s48 offen nt lds")
                a("s_add_u32 m0, m0, 1024"); a(f"s_add_u32 s48, s48, {8*896}")
            a("s_mov_b32 s60, m0")
        nsig = max(0, w - 17 - nwo)
        for grp in range(4):
            if grp == 0: a("s_mov_b32 m0, s51")
            else:
                a("s_add_u32 m0, m0, 4096"); a("s_add_u32 s52, s52, 4096")
            if grp == 3:
                a(f"ds_read_b128 v[40:43], v10 offset:{C_CP}"); a(f"ds_read_b32 v44, v10 offset:{C_FP}")
            for q in range(4):
                n = grp * 4 + q
                a(f"s_waitcnt vmcnt({w-1})")
                if n == nsig:
                    a("v_mov_b32 v46, s50"); a(f"ds_write_b32 v10, v46 offset:{C_FILL}")
                a(f"buffer_load_dwordx4 v{16+(n&7)}, s[40:43], s52 offen offset:{1024*q} nt lds")
        a("s_add_u32 s52, s52, 4096")
        a(f"s_add_u32 s51, s51, {SLOT}"); a("s_cmp_eq_u32 s51, s63"); a("s_cselect_b32 s51, 0, s51")
        a("s_add_u32 s50, s50, 1")
        a("s_cmp_eq_u32 s50, 18"); a(f"s_cselect_b32 s63, {5*SLOT}, s63"); a("s_cmp_eq_u32 s50, 23"); a("s_cselect_b32 s53, 1, s53")
    def slow(c):
        a(f"L_slow{c}:")
        budget()
        a(f"ds_read_b128 v[40:43], v10 offset:{C_CP}"); a(f"ds_read_b32 v44, v10 offset:{C_FP}")
        a(f"s_branch L_check{c}")
    a("L_item:")
    a("s_cmp_lg_u32 s50, s58"); a("s_cbranch_scc1 L_nobar"); a("s_barrier"); a("L_nobar:")
    if wstart:
        a(f"s_cmp_ge_u32 s50, {nstart}"); a("s_cbranch_scc1 L_notstart")
        item_body("S", wstart, 0)
        a("s_branch L_item")
        a("L_notstart:")
    else:
        a("s_cmp_lt_u32 s50, 2"); a("s_cbranch_scc1 L_goP")
    a("s_cmp_lt_u32 s50, 5"); a("s_cbranch_scc1 L_levelP")
    item_check("P")
    item_body("P", win, 0)
    a("L_afterP:")
    a("s_cmp_eq_u32 s50, 16"); a("s_cbranch_scc1 L_tov")
    a(f"s_cmp_eq_u32 s50, {wo_start}"); a("s_cbranch_scc1 L_towo")
    a("L_item_next:")
    a("s_cmp_lt_u32 s50, 32"); a("s_cbranch_scc1 L_item")
    stamp(1)
    a("v_mov_b32 v46, 32"); a("v_mov_b32 v47, 33")
    a("s_waitcnt vmcnt(16)")
    a(f"ds_write_b32 v10, v46 offset:{C_FILL}")
    a("s_waitcnt vmcnt(0)")
    a(f"ds_write_b32 v10, v47 offset:{C_FILL}")
    stamp(3); stamp(2)
    if diag == 3:
        for k in range(6): a(f"v_writelane_b32 v247, s{84+k}, {8+k}")
    if diag:
        a("s_lshl_b32 s60, s2, 8"); a(f"s_add_u32 s60, s60, {W_DIAG + 0x80000}"); a("v_lshl_add_u32 v61, v0, 2, s60")
        a("global_store_dword v61, v60, s[30:31]")
    dump_stamps()
    a("s_endpgm")

    C("---------------- all other waves: tag, x, LDS control words ----------------")
    a("L_others:")
    a("s_load_dword s32, s[30:31], 0")
    a("s_cmp_ge_u32 s3, 4"); a("s_cbranch_scc1 L_nox")
    noproj("L_nox")
    a("s_mul_i32 s50, s3, 896")
    a("v_add_u32 v11, s50, v9")
    for i in range(4): a(f"v_mov_b32 v{4+i}, 0")
    a("s_mov_b32 exec_hi, 0x00ffffff")
    a(f"global_load_dwordx4 v[4:7], v11, s[8:9] {xf}")
    a("s_mov_b32 exec_hi, -1")
    a("L_nox:")
    a("s_sub_u32 s50, s35, 1"); a("s_cmp_ge_u32 s50, 3"); a("s_cselect_b32 s51, 1, 0"); a("s_cselect_b32 s52, 4, 1")
    a("v_mov_b32 v12, s52"); a("v_mad_u32_u24 v12, v0, s51, v12")
    a("v_cmp_gt_u32 vcc, 4, v0")
    a("s_cmp_eq_u32 s35, 4"); a(f"s_cselect_b32 s50, 3, {BIG}")
    a("v_cndmask_b32 v12, 0, v12, vcc")
    a("v_mov_b32 v13, s50")
    a("v_cmp_eq_u32 vcc, 4, v0")
    a("v_lshl_add_u32 v14, v0, 2, v10")
    a("v_cndmask_b32 v12, v12, v13, vcc")
    a("ds_write_b32 v14, v12")
    a("s_waitcnt lgkmcnt(0)")
    a("s_mul_i32 s33, s32, 0x9E3779B1"); a("s_add_u32 s33, s33, 0x7F4A7C15")
    a("s_barrier")
    a("v_and_b32 v14, 15, v0"); a("v_lshrrev_b32 v15, 4, v0")
    a("s_cmp_lt_u32 s3, 4"); a("s_cbranch_scc1 L_C")
    a("s_cmp_eq_u32 s3, 5"); a("s_cbranch_scc1 L_Q")
    a("s_branch L_F")

    C("---------------- L: out-of-line pieces ----------------")
    slow("P")
    a("L_tov:")
    a("s_mov_b32 s40, s12"); a("s_mov_b32 s41, s13"); a("s_mov_b32 s52, s54")
    a("v_lshlrev_b32 v15, 1, v28"); a("v_xor_b32 v15, v15, v29")
    for p in range(8):
        f = 4 * (p & 1) + 8 * ((p >> 2) & 1)
        a(f"v_xor_b32 v{16+p}, {f}, v15"); a(f"v_lshl_add_u32 v{16+p}, v{16+p}, 4, v30")
    a("s_mov_b32 s36, s16"); a("s_mov_b32 s37, s17"); a("s_mov_b32 s38, 3670016")
    a(f"s_mul_i32 s48, s4, {512*896}"); a("s_lshl_b32 s55, s7, 7"); a("s_add_u32 s48, s48, s55")
    a("s_movk_i32 s57, 896"); a(f"s_mov_b32 s60, {WOB}")
    a("v_mad_u32_u24 v24, v2, s57, v3"); a("v_xor_b32 v25, 64, v3"); a("v_mad_u32_u24 v25, v2, s57, v25")
    a("s_branch L_item")
    a("L_towo:")
    a("s_cmp_eq_u32 s7, 7"); a("s_cbranch_scc1 L_item")
    a("L_itemW:")
    item_check("W")
    item_body("W", win + wdelta, wo_per)
    a("L_afterW:")
    a(f"s_cmp_lt_u32 s50, {wo_start + NWO}"); a("s_cbranch_scc1 L_itemW")
    a("s_branch L_item_next")
    slow("W")
    item_body("Pb", wboost, 0); a("s_branch L_afterP")
    for k in range(1, NB):
        item_body(f"P{k}", win + k, 0); a("s_branch L_afterP")
        item_body(f"W{k}", win + wdelta + k, wo_per); a("s_branch L_afterW")

    def tile_tr_addr(dst, tau, base):
        a("v_lshrrev_b32 v16, 2, v14"); a("v_lshl_add_u32 v16, v15, 3, v16"); a("v_lshlrev_b32 v16, 7, v16")
        a("v_and_b32 v17, 1, v14"); a("v_lshl_add_u32 v16, v17, 3, v16")
        a("v_and_b32 v17, 1, v15"); a("v_lshrrev_b32 v18, 3, v14"); a("v_lshl_add_u32 v17, v17, 1, v18"); a("v_lshlrev_b32 v17, 1, v17")
        a("v_bfe_u32 v18, v14, 1, 1"); a("v_xor_b32 v17, v17, v18")
        if tau is not None:
            a(f"s_lshl_b32 s50, {tau}, 1"); a("v_xor_b32 v17, s50, v17")
        a(f"v_lshl_add_u32 {dst}, v17, 4, v16"); a(f"v_add_u32 {dst}, {base}, {dst}")
    C("---------------- C: layernorm (one batch row per wave) and the projection tile ----------------")
    a("L_C:")
    a("s_lshl_b32 s50, s3, 2"); a("v_add_u32 v12, s50, v10")
    a("v_mov_b32 v13, 1")
    a("v_mov_b32 v81, s33"); a("v_mov_b32 v83, s33")
    noproj("L_C_noproj")
    tile_tr_addr("v38", "s3", BIGW)
    a("v_and_b32 v17, 3, v14"); a("s_movk_i32 s50, 896"); a("v_mul_u32_u24 v16, s50, v17"); a("v_lshl_add_u32 v39, v15, 4, v16"); a(f"v_add_u32 v39, {XN}, v39")
    a("s_lshl_b32 s50, s49, 4"); a("s_lshl_b32 s52, s3, 2"); a("s_add_u32 s50, s50, s52"); a(f"s_add_u32 s50, s50, {W_QG//16}")
    a("s_lshr_b32 s51, s49, 1"); a("s_lshl_b32 s51, s51, 1"); a("s_add_u32 s51, s51, s35"); a("s_sub_u32 s51, s51, 2"); a("s_lshl_b32 s51, s51, 3")
    a("s_and_b32 s52, s49, 1"); a("s_lshl_b32 s52, s52, 2"); a("s_add_u32 s51, s51, s52"); a("s_add_u32 s51, s51, s3"); a("s_lshl_b32 s51, s51, 4"); a(f"s_add_u32 s51, s51, {W_GU//16}")
    a("s_cmp_eq_u32 s35, 1"); a("s_cselect_b32 s50, s50, s51"); a("s_cselect_b32 s51, 1024, 4")
    a("v_mad_u32_u24 v16, v14, s51, v15"); a("v_add_u32 v16, s50, v16"); a("v_lshlrev_b32 v37, 4, v16")
    a("s_waitcnt vmcnt(0)")
    stamp(1)
    for i in range(4):
        a(f"v_lshlrev_b32 v{16+2*i}, 16, v{4+i}"); a(f"v_and_b32 v{17+2*i}, 0xffff0000, v{4+i}")
    a("v_add_f32 v24, v16, v17"); a("v_add_f32 v25, v18, v19"); a("v_add_f32 v26, v20, v21"); a("v_add_f32 v27, v22, v23")
    a("v_add_f32 v24, v24, v25"); a("v_add_f32 v26, v26, v27"); a("v_add_f32 v24, v24, v26")
    red16("v_add_f32", "v24"); swapred("v_add_f32", "v24", "v25", 16); swapred("v_add_f32", "v24", "v25", 32)
    a(f"v_mul_f32 v24, {hex(f2u(1.0/448))}, v24")
    a("v_mov_b32 v26, 0")
    a("s_mov_b32 exec_hi, 0x00ffffff")
    for i in range(8): a(f"v_sub_f32 v{28+i}, v{16+i}, v24")
    for i in range(8): a(f"v_fmac_f32 v26, v{28+i}, v{28+i}")
    a("s_mov_b32 exec_hi, -1")
    rbf("v25", "v24")
    red16("v_add_f32", "v26"); swapred("v_add_f32", "v26", "v27", 16); swapred("v_add_f32", "v26", "v27", 32)
    a(f"v_mul_f32 v26, {hex(f2u(1.0/448))}, v26")
    rbf("v26", "v26")
    a(f"v_add_f32 v26, {hex(f2u(1e-5))}, v26")
    rbf("v26", "v26")
    a("v_sqrt_f32 v26, v26")
    for i in range(8): a(f"v_sub_f32 v{28+i}, v{16+i}, v25")
    rbf("v26", "v26")
    a("v_rcp_f32 v26, v26")
    for i in range(4): a(f"v_cvt_pk_bf16_f32 v{16+i}, v{28+2*i}, v{29+2*i}")
    for i in range(4):
        a(f"v_lshlrev_b32 v{28+2*i}, 16, v{16+i}"); a(f"v_and_b32 v{29+2*i}, 0xffff0000, v{16+i}")
    for i in range(8): a(f"v_mul_f32 v{28+i}, v{28+i}, v26")
    for i in range(4): a(f"v_cvt_pk_bf16_f32 v{16+i}, v{28+2*i}, v{29+2*i}")
    a(f"v_add_u32 v11, {XN}, v11")
    a("s_mov_b32 exec_hi, 0x00ffffff")
    a("ds_write_b128 v11, v[16:19]")
    a("s_mov_b32 exec_hi, -1")
    a(f"ds_write_b32 v12, v13 offset:{C_XNF}")
    spin_all4(40, C_XNF)
    for s in range(14): a(f"ds_read_b128 v[{84+4*s}:{87+4*s}], v39 offset:{64*s}")
    stamp(2)
    spin_ge("v16", C_FILL, 1)
    for s in range(14):
        a(f"ds_read_b64_tr_b16 v[{140+4*s}:{141+4*s}], v38 offset:{4096*s}")
        a(f"ds_read_b64_tr_b16 v[{142+4*s}:{143+4*s}], v38 offset:{4096*s+512}")
    for s in range(14):
        n = 26 - 2 * s
        if n <= 15 and (s % 2 == 0 or s == 13): a(f"s_waitcnt lgkmcnt({max(0, n-2) if s != 13 else 0})")
        elif s == 0: a("s_waitcnt lgkmcnt(14)")
        c = "0" if s == 0 else "v[48:51]"
        a(f"v_mfma_f32_16x16x32_bf16 v[48:51], v[{140+4*s}:{143+4*s}], v[{84+4*s}:{87+4*s}], {c}")
    a("s_add_u32 s50, s3, 4"); a("v_mov_b32 v16, s50"); a(f"ds_write_b32 v12, v16 offset:{C_CP}")
    a("s_mov_b32 s50, 0x000f000f")
    a("v_cvt_pk_bf16_f32 v80, v48, v49"); a("v_cvt_pk_bf16_f32 v82, v50, v51")
    a("s_mov_b32 exec_lo, s50"); a("s_mov_b32 exec_hi, s50")
    a("s_cmp_eq_u32 s35, 1"); a("s_cbranch_scc1 L_pub_q")
    a("global_store_dwordx4 v37, v[80:83], s[30:31] sc1")
    a("s_branch L_pub_done")
    a("L_pub_q:")
    a("global_store_dwordx4 v37, v[80:83], s[30:31]")
    a("L_pub_done:")
    a("s_mov_b64 exec, -1")
    a("L_C_noproj:")
    stamp(3)
    C("addresses: v20..23 K reads, v24..27 V reads, v28 q, v29 p read, v30 p write, v31..33 control, v34 wo, v35/v248..254 partials, v36/v38 o image, v37 result")
    a("v_xor_b32 v16, v15, v14")
    a("v_lshlrev_b32 v17, 9, v14")
    for s in range(4):
        if s: a(f"v_xor_b32 v{20+s}, {4*s}, v16"); a(f"v_lshl_add_u32 v{20+s}, v{20+s}, 4, v17")
        else: a("v_lshl_add_u32 v20, v16, 4, v17")
    a("v_lshrrev_b32 v16, 2, v14")
    a("v_lshl_add_u32 v17, v15, 3, v16")
    a("v_lshlrev_b32 v17, 9, v17")
    a("v_and_b32 v18, 1, v14"); a("v_lshl_add_u32 v17, v18, 3, v17")
    a("v_and_b32 v18, 1, v15"); a("v_lshl_add_u32 v18, v18, 2, v16"); a("v_lshlrev_b32 v18, 1, v18")
    a("v_bfe_u32 v19, v14, 1, 1")
    a("s_lshl_b32 s50, s3, 3"); a("v_add_u32 v19, s50, v19")
    a("v_xor_b32 v18, v18, v19")
    for tt in range(4):
        if tt: a(f"v_xor_b32 v{24+tt}, {2*tt}, v18"); a(f"v_lshl_add_u32 v{24+tt}, v{24+tt}, 4, v17")
        else: a("v_lshl_add_u32 v24, v18, 4, v17")
    a("v_and_b32 v16, 1, v0")
    a("v_lshlrev_b32 v17, 4, v15")
    a("v_lshl_add_u32 v28, v16, 9, v17"); a(f"v_add_u32 v28, {QI}, v28")
    a("v_lshl_add_u32 v29, v16, 10, v17"); a(f"v_add_u32 v29, {PB}, v29")
    a("v_lshrrev_b32 v16, 5, v0"); a("v_and_b32 v17, 31, v0"); a("s_lshl_b32 s50, s3, 5"); a("v_add_u32 v17, s50, v17")
    a("v_lshlrev_b32 v17, 1, v17"); a("v_lshl_add_u32 v30, v16, 10, v17"); a(f"v_add_u32 v30, {PB}, v30")
    a("v_lshl_add_u32 v31, v16, 4, v10")
    a("v_lshl_add_u32 v33, v16, 2, v10")
    a("s_lshl_b32 s50, s3, 2"); a("v_add_u32 v32, s50, v31")
    tile_tr_addr("v34", "s3", WOB)
    a("s_lshl_b32 s50, s6, 3"); a("s_add_u32 s50, s50, s4"); a("s_lshl_b32 s50, s50, 15"); a("s_lshl_b32 s51, s3, 10"); a("s_add_u32 s50, s50, s51"); a(f"s_add_u32 s50, s50, {W_H1}")
    a("v_add_u32 v16, s50, v9")
    a("s_lshl_b32 s51, s7, 12"); a("v_add_u32 v35, s51, v16")
    for i in range(1, 8):
        a(f"s_add_u32 s51, s7, {i}"); a("s_and_b32 s51, s51, 7"); a("s_lshl_b32 s51, s51, 12"); a(f"v_add_u32 v{247+i}, s51, v16")
    a("v_lshrrev_b32 v16, 5, v0"); a("v_lshlrev_b32 v16, 8, v16"); a("v_and_b32 v17, 1, v15"); a("v_lshl_add_u32 v16, v17, 5, v16"); a("v_add_u32 v16, v16, v14")
    a("s_lshl_b32 s50, s3, 6"); a("v_add_u32 v16, s50, v16"); a("v_lshlrev_b32 v16, 1, v16"); a(f"v_add_u32 v38, {OI}, v16")
    a("v_lshlrev_b32 v36, 4, v15"); a(f"v_add_u32 v36, {OI}, v36")
    a("s_mul_i32 s50, s6, 28"); a("s_lshl_b32 s51, s7, 2"); a("s_add_u32 s50, s50, s51"); a("s_add_u32 s50, s50, s3"); a("s_lshl_b32 s50, s50, 3"); a("s_add_u32 s50, s50, s4")
    a("s_lshl_b32 s50, s50, 7"); a(f"s_add_u32 s50, s50, {W_H2}"); a("v_add_u32 v37, s50, v9")
    a("s_mov_b32 s44, 0xffff0000"); a("s_mov_b32 s45, 0xffff0000"); a("s_mov_b32 s46, 0"); a("s_mov_b32 s47, -1")
    C("---------------- C: scores of every fourth 32-key item ----------------")
    spin_ge("v16", C_QRDY, 1, sleep=1)
    stamp(4)
    qreg = lambda s: 64 + 4 * s if s < 4 else 84 + 4 * (s - 4)
    for s in range(8): a(f"ds_read_b128 v[{qreg(s)}:{qreg(s)+3}], v28 offset:{64*s}")
    a("s_mov_b32 s50, s3")
    a("L_kitem:")
    a("s_add_u32 s51, s50, 2")
    a("s_sub_u32 s52, s50, 9"); a("s_cmp_ge_u32 s50, 9"); a("s_cselect_b32 s52, s52, s50")
    a("s_lshl_b32 s52, s52, 14")
    for s in range(4): a(f"v_add_u32 v{40+s}, s52, v{20+s}")
    spin_ge("v16", C_FILL, "s51", sleep=1)
    for s in range(8):
        for tl in range(2):
            a(f"ds_read_b128 v[{100+8*s+4*tl}:{103+8*s+4*tl}], v{40+(s&3)} offset:{(s>>2)*256 + tl*8192}")
    a("s_add_u32 s51, s50, 4"); a("s_min_u32 s51, s51, 16"); a("s_add_u32 s51, s51, 4")
    a("v_mov_b32 v16, s51")
    a(f"ds_write_b32 v12, v16 offset:{C_CP}")
    a("v_mov_b32 v63, v62"); a("v_mov_b32 v62, v61"); a("v_mov_b32 v61, v60")
    for s in range(8):
        if s % 2 == 0: a(f"s_waitcnt lgkmcnt({13 - 2*s})")
        for tl in range(2):
            c = "0" if s == 0 else f"v[{48+4*tl}:{51+4*tl}]"
            a(f"v_mfma_f32_16x16x32_bf16 v[{48+4*tl}:{51+4*tl}], v[{qreg(s)}:{qreg(s)+3}], v[{100+8*s+4*tl}:{103+8*s+4*tl}], {c}")
    a("v_cndmask_b32 v16, v48, v52, s[44:45]"); a("v_cndmask_b32 v17, v49, v53, s[44:45]"); a("v_cndmask_b32 v16, v16, v17, s[46:47]")
    rbf("v60", "v16")
    a("s_add_u32 s50, s50, 4"); a("s_cmp_lt_u32 s50, 16"); a("s_cbranch_scc1 L_kitem")
    stamp(5)
    C("---------------- C: softmax: exp against the maximum of the 512 keys, rescaled to the maximum and sum of all 4096 ----------------")
    a("v_max_f32 v16, v60, v61"); a("v_max3_f32 v16, v16, v62, v63")
    red16("v_max_f32", "v16"); swapred("v_max_f32", "v16", "v17", 16)
    a(f"ds_write_b32 v32, v16 offset:{C_MX}")
    a(f"ds_write_b32 v12, v13 offset:{C_MXF}")
    spin_all4(40, C_MXF)
    a(f"ds_read_b128 v[40:43], v31 offset:{C_MX}")
    a("s_waitcnt lgkmcnt(0)")
    a("v_max_f32 v16, v40, v41"); a("v_max3_f32 v16, v16, v42, v43")
    a(f"s_mov_b32 s50, {hex(f2u(CEXP))}")
    for i in range(4): a(f"v_sub_f32 v{60+i}, v{60+i}, v16")
    for i in range(4): a(f"v_mul_f32 v{60+i}, s50, v{60+i}")
    for i in range(4): a(f"v_exp_f32 v{60+i}, v{60+i}")
    a("v_add_f32 v17, v60, v61"); a("v_add_f32 v18, v62, v63"); a("v_add_f32 v17, v17, v18")
    red16("v_add_f32", "v17"); swapred("v_add_f32", "v17", "v18", 16)
    a(f"ds_write_b32 v32, v17 offset:{C_LS}")
    a(f"ds_write_b32 v12, v13 offset:{C_PF}")
    for i in range(16): a(f"v_mov_b32 v{64+i}, 0")
    C("p = bf16(exp(s - group max) / group sum), as the reference rounds it: scale by the factor wave 5 derives from the group's entries")
    spin_ge("v16", C_FACF, 1, sleep=1)
    a(f"ds_read_b32 v39, v33 offset:{C_FAC}"); a(f"ds_read_b32 v16, v10 offset:{C_LOC}")
    a("s_waitcnt lgkmcnt(0)"); a("v_readfirstlane_b32 s57, v16")
    for i in range(4): a(f"v_mul_f32 v{60+i}, v{60+i}, v39")
    a("v_cvt_pk_bf16_f32 v40, v63, v62"); a("v_cvt_pk_bf16_f32 v41, v61, v60")
    a("ds_write_b16 v30, v40 offset:0"); a("ds_write_b16_d16_hi v30, v40 offset:256")
    a("ds_write_b16 v30, v41 offset:512"); a("ds_write_b16_d16_hi v30, v41 offset:768")
    a(f"ds_write_b32 v12, v13 offset:{C_P2}")
    spin_all4(40, C_P2)
    stamp(6)
    C("---------------- C: p @ V, 64 head dimensions per wave ----------------")
    a("s_mov_b32 s50, 0"); a(f"s_mov_b32 s52, {7*SLOT}")
    a("L_vitem:")
    a("ds_read_b128 v[44:47], v29")
    a("v_add_u32 v29, 64, v29")
    for tt in range(4): a(f"v_add_u32 v{40+tt}, s52, v{24+tt}")
    a("s_add_u32 s51, s50, 18")
    spin_ge("v16", C_FILL, "s51")
    for tt in range(4):
        a(f"ds_read_b64_tr_b16 v[{96+4*tt}:{97+4*tt}], v{40+tt}")
        a(f"ds_read_b64_tr_b16 v[{98+4*tt}:{99+4*tt}], v{40+tt} offset:2048")
    a("s_add_u32 s51, s50, 21"); a("v_mov_b32 v16, s51")
    a(f"ds_write_b32 v12, v16 offset:{C_CP}")
    a(f"s_add_u32 s52, s52, {SLOT}"); a(f"s_cmp_eq_u32 s52, {5*SLOT}"); a("s_cselect_b32 s52, 0, s52"); a(f"s_cmp_eq_u32 s52, {9*SLOT}"); a("s_cselect_b32 s52, 0, s52")
    for tt in range(4):
        a(f"s_waitcnt lgkmcnt({7-2*tt})")
        a(f"v_mfma_f32_16x16x32_bf16 v[{64+4*tt}:{67+4*tt}], v[44:47], v[{96+4*tt}:{99+4*tt}], v[{64+4*tt}:{67+4*tt}]")
    a("s_add_u32 s50, s50, 1"); a("s_cmp_lt_u32 s50, 14"); a("s_cbranch_scc1 L_vitem")
    if not spec: a("s_cmp_eq_u32 s50, 16"); a("s_cbranch_scc1 L_vdone")
    H1L = [(120 + 4 * i, f"v{248+i}") for i in range(7)]
    a("s_cmp_eq_u32 s50, 15"); a("s_cbranch_scc1 L_first")
    C("after item 13: wo operands")
    for s in range(16):
        r = 150 + 4 * s
        a(f"ds_read_b64_tr_b16 v[{r}:{r+1}], v34 offset:{4096*s}")
        a(f"ds_read_b64_tr_b16 v[{r+2}:{r+3}], v34 offset:{4096*s+512}")
    a("s_branch L_vitem")
    C("after item 14: first look at the partials of the other seven splits")
    a("L_first:")
    if spec:
        a("s_cmp_eq_u32 s7, 7"); a("s_cbranch_scc1 L_last")
        for (d, va) in H1L: a(f"global_load_dwordx4 v[{d}:{d+3}], {va}, s[30:31] {pfh1}")
        C("last item: its operand reads follow the progress word in LDS order, so they are good whenever the word is")
        a("L_last:")
        a("ds_read_b128 v[44:47], v29")
        for tt in range(4): a(f"v_add_u32 v{40+tt}, s52, v{24+tt}")
        a("L_last_spin:")
        a(f"ds_read_b32 v16, v10 offset:{C_FILL}")
        for tt in range(4):
            a(f"ds_read_b64_tr_b16 v[{96+4*tt}:{97+4*tt}], v{40+tt}")
            a(f"ds_read_b64_tr_b16 v[{98+4*tt}:{99+4*tt}], v{40+tt} offset:2048")
        budget()
        a("s_waitcnt lgkmcnt(6)")
        a("v_cmp_gt_u32 vcc, 33, v16"); a("s_cbranch_vccnz L_last_spin")
        for tt in range(4):
            if tt: a(f"s_waitcnt lgkmcnt({6-2*tt})")
            a(f"v_mfma_f32_16x16x32_bf16 v[{64+4*tt}:{67+4*tt}], v[44:47], v[{96+4*tt}:{99+4*tt}], v[{64+4*tt}:{67+4*tt}]")
    else:
        a("s_cmp_eq_u32 s7, 7"); a("s_cbranch_scc1 L_vitem")
        for (d, va) in H1L: a(f"global_load_dwordx4 v[{d}:{d+3}], {va}, s[30:31] {pfh1}")
        a("s_branch L_vitem")
        a("L_vdone:")
        a("s_nop 2")
    stamp(7)
    a("v_cndmask_b32 v16, v64, v72, s[44:45]"); a("v_cndmask_b32 v17, v65, v73, s[44:45]")
    a("v_cndmask_b32 v18, v68, v76, s[44:45]"); a("v_cndmask_b32 v19, v69, v77, s[44:45]")
    a("s_cmp_eq_u32 s57, 1")
    a("v_cndmask_b32 v80, v16, v17, s[46:47]"); a("v_cndmask_b32 v82, v18, v19, s[46:47]")
    a("s_cbranch_scc0 L_st_far")
    a("global_store_dwordx4 v35, v[80:83], s[30:31]")
    a("L_st_done:")
    stamp(8)
    a("s_cmp_eq_u32 s7, 7"); a("s_cbranch_scc1 L_red")
    a("s_waitcnt vmcnt(1)")
    a("L_h1_chk:")
    for i, (d, va) in enumerate(H1L): a(f"v_cmp_ne_u32 s[{68+2*i}:{69+2*i}], s33, v{d+3}")
    a("v_xor_b32 v96, s33, v121"); a("v_xor_b32 v97, s33, v125")
    a("s_or_b64 vcc, s[68:69], s[70:71]"); a("s_or_b64 s[82:83], s[72:73], s[74:75]"); a("s_or_b64 s[84:85], s[76:77], s[78:79]")
    a("v_bitop3_b32 v96, v129, s33, v96 bitop3:0xbe"); a("v_bitop3_b32 v97, v133, s33, v97 bitop3:0xbe")
    a("s_or_b64 vcc, vcc, s[80:81]"); a("s_or_b64 s[82:83], s[82:83], s[84:85]"); a("s_or_b64 vcc, vcc, s[82:83]")
    a("s_cbranch_scc1 L_h1_more")
    a("L_h1_ver:")
    a("v_bitop3_b32 v96, v137, s33, v96 bitop3:0xbe"); a("v_bitop3_b32 v97, v141, s33, v97 bitop3:0xbe")
    a("v_bitop3_b32 v96, v145, s33, v96 bitop3:0xbe"); a("v_or_b32 v96, v96, v97"); a("v_cmp_ne_u32 vcc, 0, v96")
    a("s_cbranch_vccnz L_h1_all")
    stamp(9)
    C("o (512 values, bf16) -> LDS ; o @ wo[512 x 16 columns] per wave")
    a("v_add_f32 v56, v80, v120"); a("v_add_f32 v57, v82, v122")
    a("v_add_f32 v124, v124, v128"); a("v_add_f32 v126, v126, v130")
    a("v_add_f32 v132, v132, v136"); a("v_add_f32 v134, v134, v138")
    a("v_add_f32 v140, v140, v144"); a("v_add_f32 v142, v142, v146")
    a("v_add_f32 v56, v56, v124"); a("v_add_f32 v57, v57, v126")
    a("v_add_f32 v132, v132, v140"); a("v_add_f32 v134, v134, v142")
    a("v_add_f32 v56, v56, v132"); a("v_add_f32 v57, v57, v134")
    a("v_cvt_pk_bf16_f32 v16, v56, v57")
    a("ds_write_b16 v38, v16"); a("ds_write_b16_d16_hi v38, v16 offset:32")
    a(f"ds_write_b32 v12, v13 offset:{C_OF}")
    if spec:
        a("L_o_spin:")
        a(f"ds_read_b128 v[40:43], v10 offset:{C_OF}")
        for s in range(8): a(f"ds_read_b128 v[{84+4*s}:{87+4*s}], v36 offset:{64*s}")
        budget()
        a("s_waitcnt lgkmcnt(8)")
        a("v_min_u32 v40, v40, v41"); a("v_min3_u32 v40, v40, v42, v43"); a("v_cmp_eq_u32 vcc, 0, v40"); a("s_cbranch_vccnz L_o_spin")
        for s in range(8, 16): a(f"ds_read_b128 v[{84+4*s}:{87+4*s}], v36 offset:{64*s}")
    else:
        spin_all4(40, C_OF)
        for s in range(16): a(f"ds_read_b128 v[{84+4*s}:{87+4*s}], v36 offset:{64*s}")
    for s in range(16):
        if s % 4 == 0: a(f"s_waitcnt lgkmcnt({12 - s})")
        acc = 48 + 4 * (s & 1)
        c = "0" if s < 2 else f"v[{acc}:{acc+3}]"
        a(f"v_mfma_f32_16x16x32_bf16 v[{acc}:{acc+3}], v[{84+4*s}:{87+4*s}], v[{150+4*s}:{153+4*s}], {c}")
    a("v_add_f32 v80, v48, v52")
    a(f"v_mov_b32_dpp v82, v80 row_ror:8 {DPPF}")
    a("s_mov_b64 exec, 0xff")
    a("global_store_dwordx4 v37, v[80:83], s[30:31] sc1")
    stamp(10)
    dump_stamps()
    a("s_endpgm")
    a("L_h1_all:")
    for i in range(7): a(f"s_mov_b64 s[{68+2*i}:{69+2*i}], -1")
    a("L_h1_more:")
    a("s_mov_b32 s56, 0")
    for i in range(7):
        a(f"s_cmp_lg_u64 s[{68+2*i}:{69+2*i}], 0"); a("s_addc_u32 s56, s56, s56")
    a("s_sub_u32 s55, s56, 1"); a("s_and_b32 s55, s55, s56"); a("s_cbranch_scc0 L_h1_one")
    for i, (d, va) in enumerate(H1L):
        a(f"s_mov_b64 exec, s[{68+2*i}:{69+2*i}]")
        a(f"global_load_dwordx4 v[{d}:{d+3}], {va}, s[30:31] {pfh1}")
    a("s_mov_b64 exec, -1")
    budget()
    a("s_waitcnt vmcnt(0)")
    a("s_branch L_h1_chk")
    a("L_h1_one:")
    for i in range(6):
        a(f"s_bitcmp1_b32 s56, {6-i}"); a(f"s_cbranch_scc1 L_h1_t{i}")
    for i in (6, 0, 1, 2, 3, 4, 5):
        d, va = H1L[i]
        a(f"L_h1_t{i}:")
        a(f"global_load_dwordx4 v[{d}:{d+3}], {va}, s[30:31] {pfh1}")
        budget()
        a("s_waitcnt vmcnt(0)")
        a(f"v_cmp_ne_u32 vcc, s33, v{d+3}")
        a("v_xor_b32 v96, s33, v121"); a("v_xor_b32 v97, s33, v125")
        a(f"s_cbranch_vccnz L_h1_t{i}")
        a("v_bitop3_b32 v96, v129, s33, v96 bitop3:0xbe"); a("v_bitop3_b32 v97, v133, s33, v97 bitop3:0xbe")
        a("s_branch L_h1_ver")
    a("L_st_far:")
    a("global_store_dwordx4 v35, v[80:83], s[30:31] sc1")
    a("s_branch L_st_done")

    C("---------------- C of j = 7, g < 7: final reduction of 16 columns (batch b, tile 4g + wave) ----------------")
    a("L_red:")
    a("s_cmp_eq_u32 s4, 7"); a("s_cbranch_scc1 L_exit")
    a("s_lshl_b32 s52, s4, 2"); a("s_add_u32 s52, s52, s3"); a("s_mul_i32 s50, s6, 28"); a("s_add_u32 s50, s50, s52")
    a("s_mul_i32 s53, s6, 448"); a("s_lshl_b32 s54, s52, 4"); a("s_add_u32 s53, s53, s54")
    a("v_lshrrev_b32 v16, 5, v0"); a("v_and_b32 v17, 7, v0"); a("v_lshl_add_u32 v18, v16, 3, v17")
    a("v_add_u32 v19, s53, v18"); a("v_lshlrev_b32 v24, 1, v19")
    a("s_mul_i32 s54, s6, 7"); a("s_add_u32 s53, s4, s54"); a("s_lshl_b32 s53, s53, 9")
    a("s_lshl_b32 s54, s3, 6"); a("s_add_u32 s53, s53, s54"); a(f"s_add_u32 s53, s53, {W_OG}")
    a("v_bfe_u32 v19, v18, 1, 1"); a("v_lshlrev_b32 v19, 8, v19"); a("v_lshrrev_b32 v20, 2, v18"); a("v_lshl_add_u32 v19, v20, 4, v19")
    a("v_and_b32 v20, 1, v18"); a("v_lshl_add_u32 v19, v20, 3, v19"); a("v_add_u32 v19, s53, v19")
    a("v_bfe_u32 v21, v0, 3, 2"); a(f"s_movk_i32 s54, {28*512}")
    a("v_mad_u32_u24 v25, v21, s54, v19")
    a(f"v_add_u32 v27, {4*28*512}, v25"); a(f"v_add_u32 v28, {8*28*512}, v25")
    a("v_min_u32 v22, 1, v21"); a("v_add_u32 v22, 12, v22"); a("v_mad_u32_u24 v29, v22, s54, v19")
    a("v_cmp_gt_u32 s[44:45], 2, v21")
    a("s_lshl_b32 s56, s50, 10"); a(f"s_add_u32 s56, s56, {W_H2}"); a("v_add_u32 v26, s56, v9")
    a(f"global_load_ushort v30, v24, s[8:9] {xf}")
    a("s_branch L_og_first")
    a("L_og_retry:")
    budget()
    a("s_waitcnt vmcnt(0)")
    a("L_og_first:")
    for k, va in enumerate(("v25", "v27", "v28", "v29")): a(f"global_load_dwordx2 v[{32+2*k}:{33+2*k}], {va}, s[30:31] {pf}")
    def gate():
        a("s_waitcnt vmcnt(1)")
        tagcheck(["v33", "v35", "v37", "v39"], "v16", "v17", "L_og_retry")
        a("v_cndmask_b32 v38, 0, v38, s[44:45]"); a("v_add_f32 v32, v32, v34"); a("v_add_f32 v36, v36, v38"); a("v_add_f32 v32, v32, v36")
        a(f"v_add_f32_dpp v32, v32, v32 row_ror:8 {DPPF}")
        swapred("v_add_f32", "v32", "v33", 16)
        rbf("v32", "v32")
        a(f"v_mul_f32 v33, {hex(f2u(-LOG2E))}, v32"); a("v_exp_f32 v33, v33"); a("v_add_f32 v33, 1.0, v33"); a("v_rcp_f32 v33, v33")
        a("v_mul_f32 v32, v32, v33"); rbf("v32", "v32")
        a("v_lshlrev_b32 v30, 16, v30")
        stamp(11)
    mpoll([(48, "v26", 0)], "h2", 16, pre=gate)
    stamp(12)
    a("v_permlane32_swap_b32 v48, v50"); a("v_add_f32 v48, v48, v50")
    swapred("v_add_f32", "v48", "v50", 16)
    a(f"v_add_f32_dpp v48, v48, v48 row_ror:8 {DPPF}")
    rbf("v48", "v48")
    a("v_mul_f32 v48, v48, v32"); rbf("v48", "v48")
    a("v_add_f32 v48, v48, v30"); a("v_cvt_pk_bf16_f32 v48, v48, v48")
    a("s_mov_b32 exec_lo, 0xff"); a("s_mov_b32 exec_hi, 0xff")
    a("global_store_short v24, v48, s[26:27]")
    a("L_exit:")
    stamp(13)
    dump_stamps()
    a("s_endpgm")

    nq = [0]
    def needq():
        nq[0] += 1; k = nq[0]
        a("s_cmp_eq_u32 s58, 1"); a(f"s_cbranch_scc0 L_nq_skip{k}")
        a(f"L_nq{k}:")
        a(f"global_load_dwordx4 v[56:59], v30, s[30:31] {pf}")
        budget()
        a("s_waitcnt vmcnt(0)")
        tagcheck(["v57", "v59"], "v18", "v19", f"L_nq{k}")
        a("global_store_dwordx4 v30, v[56:59], s[30:31] sc1")
        a("s_mov_b32 s58, 0")
        a(f"L_nq_skip{k}:")
    C("---------------- Q: q gather ; s58 = 1 while this workgroup's q tile has not been written through ----------------")
    a("L_Q:")
    if tlb == 1:
        a("s_add_u32 s84, s12, s54"); a("s_addc_u32 s85, s13, 0"); a("s_load_dword s86, s[84:85], 0")
        a(f"s_mul_i32 s87, s4, {512*896}"); a("s_add_u32 s88, s16, s87"); a("s_addc_u32 s89, s17, 0"); a("s_load_dword s90, s[88:89], 0"); a(f"s_load_dword s91, s[88:89], {511*896}")
        a(f"s_add_u32 s88, s30, {W_H2}"); a("s_addc_u32 s89, s31, 0"); a("s_load_dword s92, s[88:89], 0"); a("s_load_dword s93, s[26:27], 0")
    if tlb == 2:
        a("v_mov_b32 v16, s54"); a(f"s_mul_i32 s87, s4, {512*896}"); a("v_mov_b32 v17, s87"); a(f"v_mov_b32 v18, {W_H2}")
        a("s_mov_b64 exec, 1")
        a("global_load_dword v32, v16, s[12:13] nt"); a("global_load_dword v33, v17, s[16:17] nt"); a("global_load_dword v34, v18, s[30:31] nt")
        a("s_mov_b64 exec, -1")
    a("s_lshl_b32 s50, s6, 10"); a("s_lshl_b32 s51, s4, 7"); a("s_add_u32 s50, s50, s51"); a("s_lshl_b32 s50, s50, 4"); a(f"s_add_u32 s50, s50, {W_QG}")
    a("v_add_u32 v25, s50, v9")
    a("v_lshlrev_b32 v26, 3, v0"); a(f"v_add_u32 v26, {QI}, v26")
    a("v_mov_b32 v43, s33")
    a("s_lshl_b32 s50, s49, 8"); a(f"s_add_u32 s50, s50, {W_QG}"); a("v_lshlrev_b32 v16, 14, v15"); a("v_lshl_add_u32 v16, v14, 4, v16"); a("v_add_u32 v30, s50, v16")
    a("s_cmp_eq_u32 s35, 1"); a("s_cselect_b32 s58, 1, 0")
    a(f"s_mov_b32 s55, {q_rounds}")
    spin_ge("v16", C_FILL, qpoll_fill, sleep=1)
    stamp(1)
    def qhook():
        a("s_sub_u32 s55, s55, 1"); a("s_cbranch_scc0 L_q_nohook"); needq(); a("L_q_nohook:")
    mpoll([(48, "v25", 0), (52, "v25", 1024)], "q", 16, sleep=4, hook=qhook)
    a("ds_write2_b32 v26, v48, v50 offset0:0 offset1:1")
    a("ds_write2_b32 v26, v52, v54 offset0:128 offset1:129")
    a("v_mov_b32 v16, 1"); a(f"ds_write_b32 v10, v16 offset:{C_QRDY}")
    stamp(2)
    C("(max, sum, die id) entries: one line per workgroup ; 16-lane row k of the gather looks at group ((b+k)&3, g)")
    a("v_and_b32 v17, 1, v0"); a("v_lshlrev_b32 v16, 4, v17")
    a("v_add_u32 v18, s6, v15"); a("v_and_b32 v18, 3, v18"); a("v_lshlrev_b32 v18, 13, v18")
    a("v_lshrrev_b32 v19, 1, v14"); a("v_lshl_add_u32 v18, v19, 7, v18"); a("v_add_u32 v18, v18, v16")
    a("s_lshl_b32 s50, s4, 10"); a(f"s_add_u32 s50, s50, {W_MLG}"); a("v_add_u32 v25, s50, v18")
    a("s_lshl_b32 s51, s6, 13"); a("s_add_u32 s50, s50, s51"); a("s_lshl_b32 s51, s7, 7"); a("s_add_u32 s50, s50, s51"); a("v_add_u32 v24, s50, v16")
    a("v_add_u32 v27, v16, v10")
    a("v_lshl_add_u32 v28, v17, 2, v10")
    a("s_getreg_b32 s52, hwreg(HW_REG_XCC_ID, 0, 4)")
    a("s_xor_b32 s53, s52, s33"); a("v_mov_b32 v41, s53")
    spin_all4(44, C_PF, sleep=4)
    a(f"ds_read_b128 v[44:47], v27 offset:{C_MX}"); a(f"ds_read_b128 v[48:51], v27 offset:{C_LS}")
    a("s_waitcnt lgkmcnt(0)")
    a("v_max_f32 v40, v44, v45"); a("v_max3_f32 v40, v40, v46, v47")
    a("v_add_f32 v48, v48, v49"); a("v_add_f32 v50, v50, v51"); a("v_add_f32 v42, v48, v50")
    a("s_mov_b64 exec, 3")
    a("global_store_dwordx4 v24, v[40:43], s[30:31]")
    a("s_mov_b64 exec, -1")
    a(f"s_mov_b32 s55, {ml_rounds}")
    stamp(3)
    def mlload():
        a(f"global_load_dwordx4 v[48:51], v25, s[30:31] {pf}")
        a("s_waitcnt vmcnt(0)")
        a("v_xor_b32 v16, s33, v49"); a("v_lshrrev_b32 v17, 4, v16"); a("v_bitop3_b32 v17, v51, s33, v17 bitop3:0xbe")
        a("v_cmp_ne_u32 s[56:57], s52, v16"); a("v_cmp_ne_u32 s[60:61], 0, v17")
        a("s_andn2_b64 s[56:57], s[56:57], s[60:61]")
    def mlpub():
        a("s_mov_b64 exec, 3"); a("global_store_dwordx4 v24, v[40:43], s[30:31] sc1"); a("s_mov_b64 exec, -1")
    a("s_branch L_ml_first")
    a("L_ml_retry:")
    budget()
    C("own group incomplete: after a few rounds, or on a foreign die id, write through what was published so far")
    a("s_cmp_eq_u32 s55, 1000"); a("s_cbranch_scc1 L_ml_again")
    a("s_and_b32 s59, s56, 0xffff"); a("s_cbranch_scc1 L_ml_pub")
    a("s_sub_u32 s55, s55, 1"); a("s_cbranch_scc0 L_ml_again")
    a("L_ml_pub:")
    mlpub(); needq()
    a("s_movk_i32 s55, 1000")
    a("L_ml_again:")
    a(f"s_sleep {mlsleep}")
    a("L_ml_first:")
    mlload()
    a("s_and_b32 s59, s60, 0xffff"); a("s_cbranch_scc1 L_ml_retry")
    a("s_and_b32 s59, s56, 0xffff"); a(f"s_cselect_b32 s54, 0, {0 if forcesc1 else 1}"); a("s_cbranch_scc0 L_ml_ok")
    mlpub()
    a("L_ml_ok:")
    C("scale of this split = exp(own max - group max) / group sum")
    a(f"s_mov_b32 s50, {hex(f2u(CEXP))}")
    a("v_mov_b32 v44, v48")
    for m in ("quad_perm:[2,3,0,1]", "row_ror:4", "row_ror:8"): a(f"v_max_f32_dpp v44, v44, v44 {m} {DPPF}")
    a("v_sub_f32 v45, v48, v44"); a("v_sub_f32 v46, v40, v44")
    a("v_mul_f32 v45, s50, v45"); a("v_mul_f32 v46, s50, v46")
    a("v_exp_f32 v45, v45"); a("v_exp_f32 v46, v46")
    a("v_mul_f32 v45, v45, v50")
    for m in ("quad_perm:[2,3,0,1]", "row_ror:4", "row_ror:8"): a(f"v_add_f32_dpp v45, v45, v45 {m} {DPPF}")
    a("v_rcp_f32 v45, v45")
    a("v_mov_b32 v17, s54")
    a("v_mul_f32 v46, v46, v45")
    a("v_mov_b32 v20, 1")
    a("s_mov_b64 exec, 3")
    a(f"ds_write_b32 v28, v46 offset:{C_FAC}")
    a(f"ds_write_b32 v10, v17 offset:{C_LOC}")
    a(f"ds_write_b32 v10, v20 offset:{C_FACF}")
    a("s_mov_b64 exec, -1")
    stamp(4)
    C("are all 32 workgroups of this g on this die?  decides the q write-through and the FFN partial stores")
    a("s_cmp_eq_u32 s35, 4"); a("s_cselect_b32 s59, 1, s58"); a("s_cmp_eq_u32 s59, 0"); a("s_cbranch_scc1 L_q_exit")
    a(f"s_mov_b32 s55, {all_rounds}")
    spin_ge("v16", C_FILL, ml_fill, sleep=8)
    a("L_all:")
    a("s_cmp_lg_u64 s[56:57], 0"); a("s_cbranch_scc1 L_all_no")
    a("s_cmp_eq_u64 s[60:61], 0"); a("s_cbranch_scc1 L_all_yes")
    a("s_sub_u32 s55, s55, 1"); a("s_cbranch_scc1 L_all_no")
    a("s_sleep 8")
    mlload()
    a("s_branch L_all")
    a("L_all_no:")
    needq()
    a("v_mov_b32 v20, 2")
    a("L_all_yes:")
    a(f"ds_write_b32 v10, v20 offset:{C_ALL}")
    a("L_q_exit:")
    stamp(5)
    dump_stamps()
    a("s_endpgm")

    C("---------------- F: h = silu(gate) * up for 128 rows, h @ w2[128 x 64] ----------------")
    a("L_F:")
    a("s_cmp_eq_u32 s2, 255"); a("s_cbranch_scc1 L_E")
    a("s_cmp_eq_u32 s35, 4"); a("s_cbranch_scc0 L_end")
    tile_tr_addr("v20", None, F2B)
    for tau in range(1, 4): a(f"v_xor_b32 v{20+tau}, {32*tau}, v20")
    a("s_lshl_b32 s52, s5, 12"); a(f"s_add_u32 s52, s52, {W_GU}"); a("v_add_u32 v25, s52, v9")
    a("s_mul_i32 s52, s5, 28"); a("s_add_u32 s52, s52, s4"); a("s_lshl_b32 s52, s52, 9"); a(f"s_add_u32 s52, s52, {W_OG}")
    a("v_and_b32 v17, 3, v14"); a("v_lshrrev_b32 v18, 2, v14"); a("v_lshlrev_b32 v18, 6, v18"); a("v_lshl_add_u32 v18, v15, 4, v18")
    a(f"s_movk_i32 s51, {7*512}"); a("v_mad_u32_u24 v16, v17, s51, v18"); a("v_add_u32 v24, s52, v16")
    a("v_bfe_u32 v16, v0, 2, 2"); a("v_lshlrev_b32 v16, 8, v16"); a("v_lshl_add_u32 v16, v15, 5, v16"); a("v_lshl_add_u32 v26, v17, 3, v16"); a(f"v_add_u32 v26, {HA}, v26")
    a("v_lshlrev_b32 v16, 8, v17"); a("v_lshl_add_u32 v27, v15, 4, v16"); a(f"v_add_u32 v27, {HA}, v27")
    a("s_mov_b32 s44, 0xf0f0f0f0"); a("s_mov_b32 s45, 0xf0f0f0f0"); a("s_mov_b32 s46, 0xff00ff00"); a("s_mov_b32 s47, 0xff00ff00")
    spin_ge("v16", C_FILL, 1, sleep=2)
    for s in range(4):
        for tau in range(4):
            r = 128 + (s * 4 + tau) * 4
            a(f"ds_read_b64_tr_b16 v[{r}:{r+1}], v{20+tau} offset:{4096*s}")
            a(f"ds_read_b64_tr_b16 v[{r+2}:{r+3}], v{20+tau} offset:{4096*s+512}")
    a(f"v_mov_b32 v16, {BIG}"); a("s_waitcnt lgkmcnt(0)"); a(f"ds_write_b32 v10, v16 offset:{C_FP}")
    stamp(1)
    spin_ge("v16", C_FILL, gu_fill, sleep=8)
    a("L_h_retry:")
    for i in range(4): a(f"global_load_dwordx4 v[{64+4*i}:{67+4*i}], v25, s[30:31] offset:{1024*i} {pf}")
    budget()
    a("s_waitcnt vmcnt(0)")
    tagcheck([f"v{65+2*i}" for i in range(8)], "v16", "v17", "L_h_retry")
    stamp(2)
    for k in range(4):
        a(f"v_lshlrev_b32 v{84+2*k}, 16, v{64+2*k}"); a(f"v_and_b32 v{85+2*k}, 0xffff0000, v{64+2*k}")
        a(f"v_lshlrev_b32 v{92+2*k}, 16, v{72+2*k}"); a(f"v_and_b32 v{93+2*k}, 0xffff0000, v{72+2*k}")
    a(f"s_mov_b32 s50, {hex(f2u(-LOG2E))}")
    for i in range(8): a(f"v_mul_f32 v{100+i}, s50, v{84+i}")
    for i in range(8): a(f"v_exp_f32 v{100+i}, v{100+i}")
    for i in range(8): a(f"v_add_f32 v{100+i}, 1.0, v{100+i}")
    for i in range(8): a(f"v_rcp_f32 v{100+i}, v{100+i}")
    for i in range(8): a(f"v_mul_f32 v{100+i}, v{100+i}, v{84+i}")
    for i in range(8): rbf(f"v{100+i}", f"v{100+i}")
    for i in range(8): a(f"v_mul_f32 v{100+i}, v{100+i}, v{92+i}")
    for k in range(4): a(f"v_cvt_pk_bf16_f32 v{108+k}, v{100+2*k}, v{101+2*k}")
    a("ds_write_b64 v26, v[108:109]"); a("ds_write_b64 v26, v[110:111] offset:128")
    for s in range(4): a(f"ds_read_b128 v[{64+4*s}:{67+4*s}], v27 offset:{64*s}")
    a("s_waitcnt lgkmcnt(0)")
    for s in range(4):
        for tau in range(4):
            r = 128 + (s * 4 + tau) * 4
            c = "0" if s == 0 else f"v[{84+4*tau}:{87+4*tau}]"
            a(f"v_mfma_f32_16x16x32_bf16 v[{84+4*tau}:{87+4*tau}], v[{r}:{r+3}], v[{64+4*s}:{67+4*s}], {c}")
    for k in (41, 43, 45, 47): a(f"v_mov_b32 v{k}, s33")
    for r in range(4):
        a(f"v_cndmask_b32 v16, v{84+r}, v{88+r}, s[44:45]"); a(f"v_cndmask_b32 v17, v{92+r}, v{96+r}, s[44:45]")
        a(f"v_cndmask_b32 v{40+2*r}, v16, v17, s[46:47]")
    spin_ge("v16", C_ALL, 1, sleep=2)
    a("v_cmp_eq_u32 vcc, 1, v16"); a("s_cbranch_vccz L_og_far")
    a("global_store_dwordx4 v24, v[40:43], s[30:31]")
    a("global_store_dwordx4 v24, v[44:47], s[30:31] offset:256")
    a("s_branch L_exit")
    a("L_og_far:")
    a("global_store_dwordx4 v24, v[40:43], s[30:31] sc1")
    a("global_store_dwordx4 v24, v[44:47], s[30:31] offset:256 sc1")
    a("s_branch L_exit")
    C("---------------- wave 6 of workgroup 255: one result row per batch complete => every workgroup has read the tag word; renew it ----------------")
    a("L_E:")
    for k in range(4): a(f"v_add_u32 v{28+k}, {W_H2 + k*28*1024}, v9")
    spin_ge("v16", C_FILL, 33, sleep=16)
    mpoll([(48 + 4 * k, f"v{28+k}", 0) for k in range(4)], "ew", 16)
    a("s_mov_b64 exec, 1")
    a("v_mov_b32 v16, 0"); a("v_mov_b32 v17, s33")
    a("global_store_dword v16, v17, s[30:31]")
    a("s_branch L_exit")
    a("L_end:")
    a("s_endpgm")
    C("a poll bound ran out")
    a("L_fail:")
    a("s_mov_b64 exec, 1")
    a("s_lshl_b32 s60, s3, 2"); a("s_or_b32 s61, s2, 0xbad00000")
    a("v_mov_b32 v16, s60"); a("v_mov_b32 v17, s61")
    a("global_store_dword v16, v17, s[28:29]")
    a("s_endpgm")
    a.raw('.section .rodata,"a"'); a.raw(".p2align 6"); a.raw(f".amdhsa_kernel {KNAME}_kernel")
    a.raw("  .amdhsa_next_free_vgpr 256"); a.raw("  .amdhsa_next_free_sgpr 96"); a.raw("  .amdhsa_accum_offset 256")
    a.raw("  .amdhsa_group_segment_fixed_size 0"); a.raw("  .amdhsa_kernarg_size 96"); a.raw("  .amdhsa_user_sgpr_count 2")
    a.raw("  .amdhsa_user_sgpr_kernarg_segment_ptr 1"); a.raw("  .amdhsa_system_sgpr_workgroup_id_x 1"); a.raw(".end_amdhsa_kernel")
    return a.text()

STAMPS = {'C': 11, 'L': 4, 'Q': 7, 'F': 4, 'R': 6}
if __name__ == "__main__":
    import ast
    kw = {}
    for x in sys.argv[2:]:
        k, v = x.split("=", 1)
        try: kw[k] = ast.literal_eval(v)
        except Exception: kw[k] = v
    open(sys.argv[1], "w").write(gen(**kw))
```

```python
import sys, struct
from asmlib import Asm
KNAME = "recurrent_scan__gqa_block_cached__glu_gated_swiglu__decode"

SLOT = 16384; NS = 9
BIGW = 6 * SLOT; WOB = 5 * SLOT; F2B = 8 * SLOT
CTRL = BIGW + 57344; XN = CTRL + 256; QI = XN + 3584; PB = QI + 1024; HA = PB + 2048; LDS_END = HA + 1024; OI = XN
assert LDS_END <= 163840
C_CP = 0; C_FP = 16; C_FILL = 32; C_XNF = 48; C_QRDY = 64; C_MXF = 80; C_PF = 96; C_FACF = 112
C_MX = 128; C_LS = 160; C_FAC = 192; C_LOC = 200; C_ALL = 204; C_P2 = 208; C_OF = 224
W_QG = 0x1000; W_GU = 0x20000; W_OG = 0x40000; W_MLG = 0x80000; W_H1 = 0x100000; W_H2 = 0x200000; W_DIAG = 0x400000
BIG = 1000
CEXP = 0.09016844005556021
LOG2E = 1.4426950408889634
def f2u(f): return struct.unpack("<I", struct.pack("<f", f))[0]

HEADER = """;
; Hand-offs between workgroups are 16-byte {value, tag, value, tag} granules in d_ws; tag = hash of a word of d_ws that the launch
; rewrites once every workgroup has read it.  Stores stay in the die's L2 only when the die ids carried by the (max, sum) entries
; prove that all readers sit on the same die; otherwise (or after a few empty polls) they are written through.
"""

def gen(diag=False, win=18, w0=28, wdelta=6, wboost=30, endboost=2, lv0=2, lvF=4, lv7=8, lvH=12, lvlate=3, NB=5, nA=7, nB=7,
        wo_start=19, wo_per=6, qpoll_fill=3, ml_fill=24, gu_fill=28, q_rounds=6, ml_rounds=10, mlsleep=2, mlfull=False, all_rounds=4, forcesc1=False, spec=True, tlb=0, wstart=26, nstart=2, pf='sc1', pfh1='sc1', pfh2='sc1', xf=''):
    a = Asm()
    C = a.comment
    hdr = open("cdna_kernels/" + KNAME + ".s.ref").read().split("; Override launch")[0]
    a.raw(hdr.rstrip())
    a.raw(f"; @launch grid=(256,1,1) block=(448,1,1) lds={LDS_END}")
    a.raw(HEADER.rstrip())
    a.raw('.amdgcn_target "amdgcn-amd-amdhsa--gfx950"')
    a.raw(".text"); a.raw(f".globl {KNAME}_kernel"); a.raw(".p2align 12")
    a.raw(".p2align 8"); a.raw(f".type {KNAME}_kernel,@function"); a.raw(f"{KNAME}_kernel:")
    def stamp(i):
        if diag:
            a("s_memrealtime s[64:65]"); a("s_waitcnt lgkmcnt(0)"); a(f"v_writelane_b32 v247, s64, {2*i}"); a(f"v_writelane_b32 v247, s65, {2*i+1}")
    def dump_stamps():
        if diag:
            a("s_mov_b32 exec_lo, -1"); a("s_mov_b32 exec_hi, 0")
            a("s_lshl_b32 s60, s2, 3"); a("s_add_u32 s60, s60, s3"); a("s_lshl_b32 s60, s60, 7"); a(f"s_add_u32 s60, s60, {W_DIAG}")
            a("v_lshl_add_u32 v246, v0, 2, s60")
            a("global_store_dword v246, v247, s[30:31]")
    lbl = [0]
    def newlabel(p):
        lbl[0] += 1; return f"L_{p}_{lbl[0]}"
    def budget():
        a("s_sub_u32 s62, s62, 1"); a("s_cbranch_scc1 L_fail")
    def spin_tail(L, Ld, sleep):
        a(f"s_cbranch_vccnz {Ld}")
        if sleep: a(f"s_sleep {sleep}")
        a("s_sub_u32 s62, s62, 1"); a(f"s_cbranch_scc0 {L}"); a("s_branch L_fail"); a(f"{Ld}:")
    def spin_ge(vtmp, off, val, sleep=0):
        L = newlabel("spin"); Ld = newlabel("spind")
        a(f"{L}:"); a(f"ds_read_b32 {vtmp}, v10 offset:{off}"); a("s_waitcnt lgkmcnt(0)")
        a(f"v_cmp_le_u32 vcc, {val}, {vtmp}"); spin_tail(L, Ld, sleep)
    def spin_all4(vt, off, sleep=0):
        L = newlabel("spin4"); Ld = newlabel("spin4d")
        a(f"{L}:"); a(f"ds_read_b128 v[{vt}:{vt+3}], v10 offset:{off}"); a("s_waitcnt lgkmcnt(0)")
        a(f"v_min_u32 v{vt}, v{vt}, v{vt+1}"); a(f"v_min3_u32 v{vt}, v{vt}, v{vt+2}, v{vt+3}")
        a(f"v_cmp_ne_u32 vcc, 0, v{vt}"); spin_tail(L, Ld, sleep)
    def tagcheck(tags, vacc, vacc2, retry):
        h = (len(tags) + 1) // 2
        t1, t2 = tags[:h], tags[h:]
        a(f"v_xor_b32 {vacc}, s33, {t1[0]}")
        if t2: a(f"v_xor_b32 {vacc2}, s33, {t2[0]}")
        for i in range(1, h):
            a(f"v_bitop3_b32 {vacc}, {t1[i]}, s33, {vacc} bitop3:0xbe")
            if i < len(t2): a(f"v_bitop3_b32 {vacc2}, {t2[i]}, s33, {vacc2} bitop3:0xbe")
        if t2: a(f"v_or_b32 {vacc}, {vacc}, {vacc2}")
        a(f"v_cmp_ne_u32 vcc, 0, {vacc}")
        a(f"s_cbranch_vccnz {retry}")
    def mpoll(loads, name, vt, pre=None, sleep=0, hook=None, sm=72):
        fl = pfh2 if name in ('h2', 'ew') else pf
        n = len(loads)
        for (d, va, off) in loads: a(f"global_load_dwordx4 v[{d}:{d+3}], {va}, s[30:31] offset:{off} {fl}")
        if pre: pre()
        a(f"s_branch L_{name}_chk")
        a(f"L_{name}_retry:")
        if hook: hook()
        if sleep: a(f"s_sleep {sleep}")
        for i, (d, va, off) in enumerate(loads):
            a(f"s_mov_b64 exec, s[{sm+2*i}:{sm+2*i+1}]")
            if n > 1: a(f"s_cbranch_execz L_{name}_sk{i}")
            a(f"global_load_dwordx4 v[{d}:{d+3}], {va}, s[30:31] offset:{off} {fl}")
            if n > 1: a(f"L_{name}_sk{i}:")
        a("s_mov_b64 exec, -1")
        budget()
        a(f"L_{name}_chk:")
        a("s_waitcnt vmcnt(0)")
        for i, (d, va, off) in enumerate(loads): a(f"v_xor_b32 v{vt+i}, s33, v{d+1}")
        for i, (d, va, off) in enumerate(loads): a(f"v_bitop3_b32 v{vt+i}, v{d+3}, s33, v{vt+i} bitop3:0xbe")
        for i, (d, va, off) in enumerate(loads): a(f"v_cmp_ne_u32 s[{sm+2*i}:{sm+2*i+1}], 0, v{vt+i}")
        if n == 1: a(f"s_cmp_lg_u64 s[{sm}:{sm+1}], 0")
        else:
            a(f"s_or_b64 vcc, s[{sm}:{sm+1}], s[{sm+2}:{sm+3}]")
            for i in range(2, n): a(f"s_or_b64 vcc, vcc, s[{sm+2*i}:{sm+2*i+1}]")
        a(f"s_cbranch_scc1 L_{name}_retry")
    def rbf(dst, src):
        a(f"v_cvt_pk_bf16_f32 {dst}, {src}, {src}"); a(f"v_and_b32 {dst}, 0xffff0000, {dst}")
    DPPF = "row_mask:0xf bank_mask:0xf"
    def red16(op, v):
        for m in ("quad_perm:[1,0,3,2]", "quad_perm:[2,3,0,1]", "row_half_mirror", "row_mirror"): a(f"{op}_dpp {v}, {v}, {v} {m} {DPPF}")
    def swapred(op, v, t, which):
        a(f"v_mov_b32 {t}, {v}"); a(f"v_permlane{which}_swap_b32 {v}, {t}"); a(f"{op} {v}, {v}, {t}")
    def noproj(label):
        a("s_sub_u32 s50, s35, 1"); a("s_cmp_ge_u32 s50, 3"); a(f"s_cbranch_scc1 {label}")

    if diag: a("s_memrealtime s[66:67]")
    a("s_cmp_ge_u32 s2, 256")
    a("s_cbranch_scc1 L_end")
    a("s_load_dwordx16 s[8:23], s[0:1], 0")
    a("s_load_dwordx8 s[24:31], s[0:1], 64")
    a("v_lshrrev_b32 v1, 6, v0")
    a("v_and_b32 v0, 63, v0")
    a("v_readfirstlane_b32 s3, v1                ; wave")
    C("s4 = g, s5 = r = id>>3, s6 = b, s7 = j ; duty s35: 0 none, 1 q tile, 2 gate tile, 3 up tile, 4 down-projection tile ; s49 = tile")
    a("s_and_b32 s4, s2, 7"); a("s_lshr_b32 s5, s2, 3"); a("s_and_b32 s6, s5, 3"); a("s_lshr_b32 s7, s5, 2")
    assert 5 * nA + 3 * nB == 56
    a(f"s_mul_i32 s48, s4, {nA}"); a(f"s_mul_i32 s49, s4, {nB}"); a(f"s_add_u32 s49, s49, {4*nA - 4*nB}")
    a("s_cmp_lt_u32 s4, 4"); a("s_cselect_b32 s48, s48, s49"); a(f"s_cselect_b32 s34, {24-nA}, {24-nB}")
    a("s_cmp_eq_u32 s4, 7"); a(f"s_cselect_b32 s34, {24-nA}, s34"); a("s_cselect_b32 s55, 0, 14")
    a("s_cmp_lt_u32 s5, s55"); a("s_cselect_b32 s35, 4, 0")
    a("s_add_u32 s48, s48, s5"); a("s_sub_u32 s48, s48, s34"); a("s_sub_u32 s49, s48, 28")
    a("s_cmp_lt_u32 s48, 28"); a("s_cselect_b32 s49, s48, s49"); a("s_cselect_b32 s48, 2, 3")
    a("s_cmp_ge_u32 s5, s34"); a("s_cselect_b32 s35, s48, s35")
    a("s_lshl_b32 s48, s4, 3"); a("s_add_u32 s48, s48, s5"); a("s_sub_u32 s48, s48, 24")
    a("s_movk_i32 s57, 3584"); a("s_mov_b32 s38, 1605632")
    a("s_cmp_ge_u32 s5, 24"); a("s_cselect_b32 s35, 1, s35"); a("s_cselect_b32 s49, s48, s49"); a("s_cselect_b32 s57, 8192, s57"); a("s_cselect_b32 s38, 3670016, s38")
    a("s_mov_b32 s39, 0x20000")
    C("weight tile: start offset s48, row stride s57, LDS destination s60, pairs of 8-row loads s61")
    a("s_mul_i32 s55, s5, 896"); a("s_add_u32 s55, s55, s4")
    a("s_cmp_eq_u32 s35, 4"); a("s_cselect_b32 s48, s55, s49"); a("s_cselect_b32 s57, 896, s57"); a("s_cselect_b32 s61, 8, 28")
    a(f"s_cselect_b32 s60, {(F2B-BIGW)//1024}, 0"); a("s_lshl_b32 s48, s48, 7"); a("s_lshl_b32 s60, s60, 10"); a(f"s_add_u32 s60, s60, {BIGW}")
    a("s_cmp_eq_u32 s35, 0"); a("s_cselect_b32 s61, 0, s61")
    a("s_lshl_b32 s56, s57, 3")
    a("s_lshl_b32 s52, s6, 3"); a("s_add_u32 s52, s52, s4"); a("s_lshl_b32 s52, s52, 21"); a("s_lshl_b32 s53, s7, 18"); a("s_add_u32 s54, s52, s53")
    a("s_mov_b32 s42, 0x4000000"); a("s_mov_b32 s43, 0x20000")
    a("v_lshlrev_b32 v9, 4, v0")
    a(f"v_mov_b32 v10, {CTRL}")
    C("per-lane source offsets (16-byte chunks permuted inside a row so that the LDS reads are conflict free): v24/v25 tiles, v16..v23 K")
    a("v_lshrrev_b32 v2, 3, v0"); a("v_and_b32 v3, 7, v0"); a("v_and_b32 v8, 2, v2"); a("v_xor_b32 v3, v3, v8")
    a("v_lshlrev_b32 v3, 4, v3")
    a("v_mad_u32_u24 v24, v2, s57, v3"); a("v_xor_b32 v25, 64, v3"); a("v_mad_u32_u24 v25, v2, s57, v25")
    a("v_lshrrev_b32 v28, 5, v0"); a("v_and_b32 v29, 31, v0"); a("v_lshlrev_b32 v30, 9, v28"); a("v_xor_b32 v15, v29, v28")
    for p in range(8):
        if p: a(f"v_xor_b32 v{16+p}, {2*p}, v15"); a(f"v_lshl_add_u32 v{16+p}, v{16+p}, 4, v30")
        else: a("v_lshl_add_u32 v16, v15, 4, v30")
    a("s_mov_b32 s62, 0x100000")
    a("s_cmp_eq_u32 s3, 4")
    a("s_waitcnt lgkmcnt(0)")
    if diag: a("v_writelane_b32 v247, s66, 0"); a("v_writelane_b32 v247, s67, 1")
    a("s_cbranch_scc0 L_others")

    C("---------------- L: loader ----------------")
    if diag == 3: a("s_memrealtime s[84:85]")
    a("s_cmp_eq_u32 s35, 2"); a("s_cselect_b32 s36, s20, s22"); a("s_cselect_b32 s37, s21, s23")
    a("s_cmp_eq_u32 s35, 1"); a("s_cselect_b32 s36, s14, s36"); a("s_cselect_b32 s37, s15, s37")
    a("s_cmp_eq_u32 s35, 4"); a("s_cselect_b32 s36, s24, s36"); a("s_cselect_b32 s37, s25, s37")
    a("s_mov_b32 m0, s60"); a("s_mov_b32 s40, s10"); a("s_mov_b32 s41, s11")
    a("s_setprio 3")
    a("s_mov_b32 s58, 1")
    a("s_cmp_eq_u32 s61, 0"); a("s_cbranch_scc1 L_ld_kv")
    if diag == 3: a("s_memrealtime s[86:87]")
    a("L_tile:")
    for k in range(2):
        a(f"s_waitcnt vmcnt({w0-1})")
        a(f"buffer_load_dwordx4 v{24+k}, s[36:39], s48 offen nt lds")
        a("s_add_u32 m0, m0, 1024"); a("s_add_u32 s48, s48, s56")
    a("s_sub_u32 s61, s61, 1")
    a(f"s_cmp_lg_u32 s61, {28 - min(w0, 24)//2}"); a("s_cbranch_scc1 L_tile_nb"); a("s_barrier"); a("s_movk_i32 s58, 100"); a("L_tile_nb:")
    a("s_cmp_lg_u32 s61, 0"); a("s_cbranch_scc1 L_tile")
    a("L_ld_kv:")
    if diag == 3: a("s_memrealtime s[88:89]")
    C("s50 item (0..15 K, 16..31 V), s51 LDS slot, s52 source offset, s63 ring end, s53 ring distance")
    a("s_mov_b32 s52, s54"); a("s_mov_b32 s50, 0"); a("s_mov_b32 s51, 0"); a(f"s_mov_b32 s63, {NS*SLOT}"); a("s_mov_b32 s53, 5")
    C("loads in flight = base + s46/4: workgroups with more bytes to fetch (and the dies that are dispatched last) get a wider window")
    a("s_cmp_eq_u32 s35, 4"); a(f"s_cselect_b32 s46, {lvF}, {lv0}")
    a("s_sub_u32 s55, s35, 1"); a("s_cmp_lt_u32 s55, 3"); a(f"s_cselect_b32 s46, {lvH}, s46"); a("s_cmp_eq_u32 s7, 7"); a(f"s_cselect_b32 s46, {lv7}, s46")
    if lvlate: a("s_getreg_b32 s55, hwreg(HW_REG_XCC_ID, 0, 4)"); a("s_cmp_ge_u32 s55, 4"); a(f"s_cselect_b32 s55, {lvlate}, 0"); a("s_add_u32 s46, s46, s55")
    a("s_mov_b32 s47, 0")
    NWO = -(-64 // wo_per)
    assert wo_start >= 19 and wo_start + NWO <= 30 and wo_per % 2 == 0 and 17 <= win and win + wdelta + NB - 1 <= 32
    def item_check(c):
        a(f"L_check{c}:")
        a("s_waitcnt lgkmcnt(0)")
        a("v_min3_u32 v40, v40, v41, v42"); a("v_min3_u32 v40, v40, v43, v44")
        a("s_sub_u32 s56, s50, s53")
        if c == "W": a("s_max_u32 s56, s56, 19")
        a("v_readfirstlane_b32 s55, v40")
        a("s_cmp_gt_u32 s55, s56")
        a(f"s_cbranch_scc0 L_slow{c}")
        if c == "P":
            a(f"s_cmp_ge_u32 s50, {32-endboost}"); a("s_cbranch_scc1 L_goPb")
            a("L_levelP:")
        a("s_and_b32 s47, s47, 3"); a("s_add_u32 s47, s47, s46")
        for k in range(NB - 1, 0, -1):
            a(f"s_cmp_ge_u32 s47, {4*k}"); a(f"s_cbranch_scc1 L_go{c}{k}")
    def item_body(c, w, nwo):
        a(f"L_go{c}:")
        if diag == 2:
            a("s_memrealtime s[70:71]"); a("s_waitcnt lgkmcnt(0)"); a("s_mov_b32 m0, s50"); a("v_writelane_b32 v60, s70, m0")
        if nwo:
            a("s_mov_b32 m0, s60")
            for k in range(nwo):
                a(f"s_waitcnt vmcnt({w-1})")
                a(f"buffer_load_dwordx4 v{24+(k&1)}, s[36:39], s48 offen nt lds")
                a("s_add_u32 m0, m0, 1024"); a(f"s_add_u32 s48, s48, {8*896}")
            a("s_mov_b32 s60, m0")
        nsig = max(0, w - 17 - nwo)
        for grp in range(4):
            if grp == 0: a("s_mov_b32 m0, s51")
            else:
                a("s_add_u32 m0, m0, 4096"); a("s_add_u32 s52, s52, 4096")
            if grp == 3:
                a(f"ds_read_b128 v[40:43], v10 offset:{C_CP}"); a(f"ds_read_b32 v44, v10 offset:{C_FP}")
            for q in range(4):
                n = grp * 4 + q
                a(f"s_waitcnt vmcnt({w-1})")
                if n == nsig:
                    a("v_mov_b32 v46, s50"); a(f"ds_write_b32 v10, v46 offset:{C_FILL}")
                a(f"buffer_load_dwordx4 v{16+(n&7)}, s[40:43], s52 offen offset:{1024*q} nt lds")
        a("s_add_u32 s52, s52, 4096")
        a(f"s_add_u32 s51, s51, {SLOT}"); a("s_cmp_eq_u32 s51, s63"); a("s_cselect_b32 s51, 0, s51")
        a("s_add_u32 s50, s50, 1")
        a("s_cmp_eq_u32 s50, 18"); a(f"s_cselect_b32 s63, {5*SLOT}, s63"); a("s_cmp_eq_u32 s50, 23"); a("s_cselect_b32 s53, 1, s53")
    def slow(c):
        a(f"L_slow{c}:")
        budget()
        a(f"ds_read_b128 v[40:43], v10 offset:{C_CP}"); a(f"ds_read_b32 v44, v10 offset:{C_FP}")
        a(f"s_branch L_check{c}")
    a("L_item:")
    a("s_cmp_lg_u32 s50, s58"); a("s_cbranch_scc1 L_nobar"); a("s_barrier"); a("L_nobar:")
    if wstart:
        a(f"s_cmp_ge_u32 s50, {nstart}"); a("s_cbranch_scc1 L_notstart")
        item_body("S", wstart, 0)
        a("s_branch L_item")
        a("L_notstart:")
    else:
        a("s_cmp_lt_u32 s50, 2"); a("s_cbranch_scc1 L_goP")
    a("s_cmp_lt_u32 s50, 5"); a("s_cbranch_scc1 L_levelP")
    item_check("P")
    item_body("P", win, 0)
    a("L_afterP:")
    a("s_cmp_eq_u32 s50, 16"); a("s_cbranch_scc1 L_tov")
    a(f"s_cmp_eq_u32 s50, {wo_start}"); a("s_cbranch_scc1 L_towo")
    a("L_item_next:")
    a("s_cmp_lt_u32 s50, 32"); a("s_cbranch_scc1 L_item")
    stamp(1)
    a("v_mov_b32 v46, 32"); a("v_mov_b32 v47, 33")
    a("s_waitcnt vmcnt(16)")
    a(f"ds_write_b32 v10, v46 offset:{C_FILL}")
    a("s_waitcnt vmcnt(0)")
    a(f"ds_write_b32 v10, v47 offset:{C_FILL}")
    stamp(3); stamp(2)
    if diag == 3:
        for k in range(6): a(f"v_writelane_b32 v247, s{84+k}, {8+k}")
    if diag:
        a("s_lshl_b32 s60, s2, 8"); a(f"s_add_u32 s60, s60, {W_DIAG + 0x80000}"); a("v_lshl_add_u32 v61, v0, 2, s60")
        a("global_store_dword v61, v60, s[30:31]")
    dump_stamps()
    a("s_endpgm")

    C("---------------- all other waves: tag, x, LDS control words ----------------")
    a("L_others:")
    a("s_load_dword s32, s[30:31], 0")
    a("s_cmp_ge_u32 s3, 4"); a("s_cbranch_scc1 L_nox")
    noproj("L_nox")
    a("s_mul_i32 s50, s3, 896")
    a("v_add_u32 v11, s50, v9")
    for i in range(4): a(f"v_mov_b32 v{4+i}, 0")
    a("s_mov_b32 exec_hi, 0x00ffffff")
    a(f"global_load_dwordx4 v[4:7], v11, s[8:9] {xf}")
    a("s_mov_b32 exec_hi, -1")
    a("L_nox:")
    a("s_sub_u32 s50, s35, 1"); a("s_cmp_ge_u32 s50, 3"); a("s_cselect_b32 s51, 1, 0"); a("s_cselect_b32 s52, 4, 1")
    a("v_mov_b32 v12, s52"); a("v_mad_u32_u24 v12, v0, s51, v12")
    a("v_cmp_gt_u32 vcc, 4, v0")
    a("s_cmp_eq_u32 s35, 4"); a(f"s_cselect_b32 s50, 3, {BIG}")
    a("v_cndmask_b32 v12, 0, v12, vcc")
    a("v_mov_b32 v13, s50")
    a("v_cmp_eq_u32 vcc, 4, v0")
    a("v_lshl_add_u32 v14, v0, 2, v10")
    a("v_cndmask_b32 v12, v12, v13, vcc")
    a("ds_write_b32 v14, v12")
    a("s_waitcnt lgkmcnt(0)")
    a("s_mul_i32 s33, s32, 0x9E3779B1"); a("s_add_u32 s33, s33, 0x7F4A7C15")
    a("s_barrier")
    a("v_and_b32 v14, 15, v0"); a("v_lshrrev_b32 v15, 4, v0")
    a("s_cmp_lt_u32 s3, 4"); a("s_cbranch_scc1 L_C")
    a("s_cmp_eq_u32 s3, 5"); a("s_cbranch_scc1 L_Q")
    a("s_branch L_F")

    C("---------------- L: out-of-line pieces ----------------")
    slow("P")
    a("L_tov:")
    a("s_mov_b32 s40, s12"); a("s_mov_b32 s41, s13"); a("s_mov_b32 s52, s54")
    a("v_lshlrev_b32 v15, 1, v28"); a("v_xor_b32 v15, v15, v29")
    for p in range(8):
        f = 4 * (p & 1) + 8 * ((p >> 2) & 1)
        a(f"v_xor_b32 v{16+p}, {f}, v15"); a(f"v_lshl_add_u32 v{16+p}, v{16+p}, 4, v30")
    a("s_mov_b32 s36, s16"); a("s_mov_b32 s37, s17"); a("s_mov_b32 s38, 3670016")
    a(f"s_mul_i32 s48, s4, {512*896}"); a("s_lshl_b32 s55, s7, 7"); a("s_add_u32 s48, s48, s55")
    a("s_movk_i32 s57, 896"); a(f"s_mov_b32 s60, {WOB}")
    a("v_mad_u32_u24 v24, v2, s57, v3"); a("v_xor_b32 v25, 64, v3"); a("v_mad_u32_u24 v25, v2, s57, v25")
    a("s_branch L_item")
    a("L_towo:")
    a("s_cmp_eq_u32 s7, 7"); a("s_cbranch_scc1 L_item")
    a("L_itemW:")
    item_check("W")
    item_body("W", win + wdelta, wo_per)
    a("L_afterW:")
    a(f"s_cmp_lt_u32 s50, {wo_start + NWO}"); a("s_cbranch_scc1 L_itemW")
    a("s_branch L_item_next")
    slow("W")
    item_body("Pb", wboost, 0); a("s_branch L_afterP")
    for k in range(1, NB):
        item_body(f"P{k}", win + k, 0); a("s_branch L_afterP")
        item_body(f"W{k}", win + wdelta + k, wo_per); a("s_branch L_afterW")

    def tile_tr_addr(dst, tau, base):
        a("v_lshrrev_b32 v16, 2, v14"); a("v_lshl_add_u32 v16, v15, 3, v16"); a("v_lshlrev_b32 v16, 7, v16")
        a("v_and_b32 v17, 1, v14"); a("v_lshl_add_u32 v16, v17, 3, v16")
        a("v_and_b32 v17, 1, v15"); a("v_lshrrev_b32 v18, 3, v14"); a("v_lshl_add_u32 v17, v17, 1, v18"); a("v_lshlrev_b32 v17, 1, v17")
        a("v_bfe_u32 v18, v14, 1, 1"); a("v_xor_b32 v17, v17, v18")
        if tau is not None:
            a(f"s_lshl_b32 s50, {tau}, 1"); a("v_xor_b32 v17, s50, v17")
        a(f"v_lshl_add_u32 {dst}, v17, 4, v16"); a(f"v_add_u32 {dst}, {base}, {dst}")
    C("---------------- C: layernorm (one batch row per wave) and the projection tile ----------------")
    a("L_C:")
    a("s_lshl_b32 s50, s3, 2"); a("v_add_u32 v12, s50, v10")
    a("v_mov_b32 v13, 1")
    a("v_mov_b32 v81, s33"); a("v_mov_b32 v83, s33")
    noproj("L_C_noproj")
    tile_tr_addr("v38", "s3", BIGW)
    a("v_and_b32 v17, 3, v14"); a("s_movk_i32 s50, 896"); a("v_mul_u32_u24 v16, s50, v17"); a("v_lshl_add_u32 v39, v15, 4, v16"); a(f"v_add_u32 v39, {XN}, v39")
    a("s_lshl_b32 s50, s49, 4"); a("s_lshl_b32 s52, s3, 2"); a("s_add_u32 s50, s50, s52"); a(f"s_add_u32 s50, s50, {W_QG//16}")
    a("s_lshr_b32 s51, s49, 1"); a("s_lshl_b32 s51, s51, 1"); a("s_add_u32 s51, s51, s35"); a("s_sub_u32 s51, s51, 2"); a("s_lshl_b32 s51, s51, 3")
    a("s_and_b32 s52, s49, 1"); a("s_lshl_b32 s52, s52, 2"); a("s_add_u32 s51, s51, s52"); a("s_add_u32 s51, s51, s3"); a("s_lshl_b32 s51, s51, 4"); a(f"s_add_u32 s51, s51, {W_GU//16}")
    a("s_cmp_eq_u32 s35, 1"); a("s_cselect_b32 s50, s50, s51"); a("s_cselect_b32 s51, 1024, 4")
    a("v_mad_u32_u24 v16, v14, s51, v15"); a("v_add_u32 v16, s50, v16"); a("v_lshlrev_b32 v37, 4, v16")
    a("s_waitcnt vmcnt(0)")
    stamp(1)
    for i in range(4):
        a(f"v_lshlrev_b32 v{16+2*i}, 16, v{4+i}"); a(f"v_and_b32 v{17+2*i}, 0xffff0000, v{4+i}")
    a("v_add_f32 v24, v16, v17"); a("v_add_f32 v25, v18, v19"); a("v_add_f32 v26, v20, v21"); a("v_add_f32 v27, v22, v23")
    a("v_add_f32 v24, v24, v25"); a("v_add_f32 v26, v26, v27"); a("v_add_f32 v24, v24, v26")
    red16("v_add_f32", "v24"); swapred("v_add_f32", "v24", "v25", 16); swapred("v_add_f32", "v24", "v25", 32)
    a(f"v_mul_f32 v24, {hex(f2u(1.0/448))}, v24")
    a("v_mov_b32 v26, 0")
    a("s_mov_b32 exec_hi, 0x00ffffff")
    for i in range(8): a(f"v_sub_f32 v{28+i}, v{16+i}, v24")
    for i in range(8): a(f"v_fmac_f32 v26, v{28+i}, v{28+i}")
    a("s_mov_b32 exec_hi, -1")
    rbf("v25", "v24")
    red16("v_add_f32", "v26"); swapred("v_add_f32", "v26", "v27", 16); swapred("v_add_f32", "v26", "v27", 32)
    a(f"v_mul_f32 v26, {hex(f2u(1.0/448))}, v26")
    rbf("v26", "v26")
    a(f"v_add_f32 v26, {hex(f2u(1e-5))}, v26")
    rbf("v26", "v26")
    a("v_sqrt_f32 v26, v26")
    for i in range(8): a(f"v_sub_f32 v{28+i}, v{16+i}, v25")
    rbf("v26", "v26")
    a("v_rcp_f32 v26, v26")
    for i in range(4): a(f"v_cvt_pk_bf16_f32 v{16+i}, v{28+2*i}, v{29+2*i}")
    for i in range(4):
        a(f"v_lshlrev_b32 v{28+2*i}, 16, v{16+i}"); a(f"v_and_b32 v{29+2*i}, 0xffff0000, v{16+i}")
    for i in range(8): a(f"v_mul_f32 v{28+i}, v{28+i}, v26")
    for i in range(4): a(f"v_cvt_pk_bf16_f32 v{16+i}, v{28+2*i}, v{29+2*i}")
    a(f"v_add_u32 v11, {XN}, v11")
    a("s_mov_b32 exec_hi, 0x00ffffff")
    a("ds_write_b128 v11, v[16:19]")
    a("s_mov_b32 exec_hi, -1")
    a(f"ds_write_b32 v12, v13 offset:{C_XNF}")
    spin_all4(40, C_XNF)
    for s in range(14): a(f"ds_read_b128 v[{84+4*s}:{87+4*s}], v39 offset:{64*s}")
    stamp(2)
    spin_ge("v16", C_FILL, 1)
    for s in range(14):
        a(f"ds_read_b64_tr_b16 v[{140+4*s}:{141+4*s}], v38 offset:{4096*s}")
        a(f"ds_read_b64_tr_b16 v[{142+4*s}:{143+4*s}], v38 offset:{4096*s+512}")
    for s in range(14):
        n = 26 - 2 * s
        if n <= 15 and (s % 2 == 0 or s == 13): a(f"s_waitcnt lgkmcnt({max(0, n-2) if s != 13 else 0})")
        elif s == 0: a("s_waitcnt lgkmcnt(14)")
        c = "0" if s == 0 else "v[48:51]"
        a(f"v_mfma_f32_16x16x32_bf16 v[48:51], v[{140+4*s}:{143+4*s}], v[{84+4*s}:{87+4*s}], {c}")
    a("s_add_u32 s50, s3, 4"); a("v_mov_b32 v16, s50"); a(f"ds_write_b32 v12, v16 offset:{C_CP}")
    a("s_mov_b32 s50, 0x000f000f")
    a("v_cvt_pk_bf16_f32 v80, v48, v49"); a("v_cvt_pk_bf16_f32 v82, v50, v51")
    a("s_mov_b32 exec_lo, s50"); a("s_mov_b32 exec_hi, s50")
    a("s_cmp_eq_u32 s35, 1"); a("s_cbranch_scc1 L_pub_q")
    a("global_store_dwordx4 v37, v[80:83], s[30:31] sc1")
    a("s_branch L_pub_done")
    a("L_pub_q:")
    a("global_store_dwordx4 v37, v[80:83], s[30:31]")
    a("L_pub_done:")
    a("s_mov_b64 exec, -1")
    a("L_C_noproj:")
    stamp(3)
    C("addresses: v20..23 K reads, v24..27 V reads, v28 q, v29 p read, v30 p write, v31..33 control, v34 wo, v35/v248..254 partials, v36/v38 o image, v37 result")
    a("v_xor_b32 v16, v15, v14")
    a("v_lshlrev_b32 v17, 9, v14")
    for s in range(4):
        if s: a(f"v_xor_b32 v{20+s}, {4*s}, v16"); a(f"v_lshl_add_u32 v{20+s}, v{20+s}, 4, v17")
        else: a("v_lshl_add_u32 v20, v16, 4, v17")
    a("v_lshrrev_b32 v16, 2, v14")
    a("v_lshl_add_u32 v17, v15, 3, v16")
    a("v_lshlrev_b32 v17, 9, v17")
    a("v_and_b32 v18, 1, v14"); a("v_lshl_add_u32 v17, v18, 3, v17")
    a("v_and_b32 v18, 1, v15"); a("v_lshl_add_u32 v18, v18, 2, v16"); a("v_lshlrev_b32 v18, 1, v18")
    a("v_bfe_u32 v19, v14, 1, 1")
    a("s_lshl_b32 s50, s3, 3"); a("v_add_u32 v19, s50, v19")
    a("v_xor_b32 v18, v18, v19")
    for tt in range(4):
        if tt: a(f"v_xor_b32 v{24+tt}, {2*tt}, v18"); a(f"v_lshl_add_u32 v{24+tt}, v{24+tt}, 4, v17")
        else: a("v_lshl_add_u32 v24, v18, 4, v17")
    a("v_and_b32 v16, 1, v0")
    a("v_lshlrev_b32 v17, 4, v15")
    a("v_lshl_add_u32 v28, v16, 9, v17"); a(f"v_add_u32 v28, {QI}, v28")
    a("v_lshl_add_u32 v29, v16, 10, v17"); a(f"v_add_u32 v29, {PB}, v29")
    a("v_lshrrev_b32 v16, 5, v0"); a("v_and_b32 v17, 31, v0"); a("s_lshl_b32 s50, s3, 5"); a("v_add_u32 v17, s50, v17")
    a("v_lshlrev_b32 v17, 1, v17"); a("v_lshl_add_u32 v30, v16, 10, v17"); a(f"v_add_u32 v30, {PB}, v30")
    a("v_lshl_add_u32 v31, v16, 4, v10")
    a("v_lshl_add_u32 v33, v16, 2, v10")
    a("s_lshl_b32 s50, s3, 2"); a("v_add_u32 v32, s50, v31")
    tile_tr_addr("v34", "s3", WOB)
    a("s_lshl_b32 s50, s6, 3"); a("s_add_u32 s50, s50, s4"); a("s_lshl_b32 s50, s50, 15"); a("s_lshl_b32 s51, s3, 10"); a("s_add_u32 s50, s50, s51"); a(f"s_add_u32 s50, s50, {W_H1}")
    a("v_add_u32 v16, s50, v9")
    a("s_lshl_b32 s51, s7, 12"); a("v_add_u32 v35, s51, v16")
    for i in range(1, 8):
        a(f"s_add_u32 s51, s7, {i}"); a("s_and_b32 s51, s51, 7"); a("s_lshl_b32 s51, s51, 12"); a(f"v_add_u32 v{247+i}, s51, v16")
    a("v_lshrrev_b32 v16, 5, v0"); a("v_lshlrev_b32 v16, 8, v16"); a("v_and_b32 v17, 1, v15"); a("v_lshl_add_u32 v16, v17, 5, v16"); a("v_add_u32 v16, v16, v14")
    a("s_lshl_b32 s50, s3, 6"); a("v_add_u32 v16, s50, v16"); a("v_lshlrev_b32 v16, 1, v16"); a(f"v_add_u32 v38, {OI}, v16")
    a("v_lshlrev_b32 v36, 4, v15"); a(f"v_add_u32 v36, {OI}, v36")
    a("s_mul_i32 s50, s6, 28"); a("s_lshl_b32 s51, s7, 2"); a("s_add_u32 s50, s50, s51"); a("s_add_u32 s50, s50, s3"); a("s_lshl_b32 s50, s50, 3"); a("s_add_u32 s50, s50, s4")
    a("s_lshl_b32 s50, s50, 7"); a(f"s_add_u32 s50, s50, {W_H2}"); a("v_add_u32 v37, s50, v9")
    a("s_mov_b32 s44, 0xffff0000"); a("s_mov_b32 s45, 0xffff0000"); a("s_mov_b32 s46, 0"); a("s_mov_b32 s47, -1")
    C("---------------- C: scores of every fourth 32-key item ----------------")
    spin_ge("v16", C_QRDY, 1, sleep=1)
    stamp(4)
    qreg = lambda s: 64 + 4 * s if s < 4 else 84 + 4 * (s - 4)
    for s in range(8): a(f"ds_read_b128 v[{qreg(s)}:{qreg(s)+3}], v28 offset:{64*s}")
    a("s_mov_b32 s50, s3")
    a("L_kitem:")
    a("s_add_u32 s51, s50, 2")
    a("s_sub_u32 s52, s50, 9"); a("s_cmp_ge_u32 s50, 9"); a("s_cselect_b32 s52, s52, s50")
    a("s_lshl_b32 s52, s52, 14")
    for s in range(4): a(f"v_add_u32 v{40+s}, s52, v{20+s}")
    spin_ge("v16", C_FILL, "s51", sleep=1)
    for s in range(8):
        for tl in range(2):
            a(f"ds_read_b128 v[{100+8*s+4*tl}:{103+8*s+4*tl}], v{40+(s&3)} offset:{(s>>2)*256 + tl*8192}")
    a("s_add_u32 s51, s50, 4"); a("s_min_u32 s51, s51, 16"); a("s_add_u32 s51, s51, 4")
    a("v_mov_b32 v16, s51")
    a(f"ds_write_b32 v12, v16 offset:{C_CP}")
    a("v_mov_b32 v63, v62"); a("v_mov_b32 v62, v61"); a("v_mov_b32 v61, v60")
    for s in range(8):
        if s % 2 == 0: a(f"s_waitcnt lgkmcnt({13 - 2*s})")
        for tl in range(2):
            c = "0" if s == 0 else f"v[{48+4*tl}:{51+4*tl}]"
            a(f"v_mfma_f32_16x16x32_bf16 v[{48+4*tl}:{51+4*tl}], v[{qreg(s)}:{qreg(s)+3}], v[{100+8*s+4*tl}:{103+8*s+4*tl}], {c}")
    a("v_cndmask_b32 v16, v48, v52, s[44:45]"); a("v_cndmask_b32 v17, v49, v53, s[44:45]"); a("v_cndmask_b32 v16, v16, v17, s[46:47]")
    rbf("v60", "v16")
    a("s_add_u32 s50, s50, 4"); a("s_cmp_lt_u32 s50, 16"); a("s_cbranch_scc1 L_kitem")
    stamp(5)
    C("---------------- C: softmax: exp against the maximum of the 512 keys, rescaled to the maximum and sum of all 4096 ----------------")
    a("v_max_f32 v16, v60, v61"); a("v_max3_f32 v16, v16, v62, v63")
    red16("v_max_f32", "v16"); swapred("v_max_f32", "v16", "v17", 16)
    a(f"ds_write_b32 v32, v16 offset:{C_MX}")
    a(f"ds_write_b32 v12, v13 offset:{C_MXF}")
    spin_all4(40, C_MXF)
    a(f"ds_read_b128 v[40:43], v31 offset:{C_MX}")
    a("s_waitcnt lgkmcnt(0)")
    a("v_max_f32 v16, v40, v41"); a("v_max3_f32 v16, v16, v42, v43")
    a(f"s_mov_b32 s50, {hex(f2u(CEXP))}")
    for i in range(4): a(f"v_sub_f32 v{60+i}, v{60+i}, v16")
    for i in range(4): a(f"v_mul_f32 v{60+i}, s50, v{60+i}")
    for i in range(4): a(f"v_exp_f32 v{60+i}, v{60+i}")
    a("v_add_f32 v17, v60, v61"); a("v_add_f32 v18, v62, v63"); a("v_add_f32 v17, v17, v18")
    red16("v_add_f32", "v17"); swapred("v_add_f32", "v17", "v18", 16)
    a(f"ds_write_b32 v32, v17 offset:{C_LS}")
    a(f"ds_write_b32 v12, v13 offset:{C_PF}")
    for i in range(16): a(f"v_mov_b32 v{64+i}, 0")
    C("p = bf16(exp(s - group max) / group sum), as the reference rounds it: scale by the factor wave 5 derives from the group's entries")
    spin_ge("v16", C_FACF, 1, sleep=1)
    a(f"ds_read_b32 v39, v33 offset:{C_FAC}"); a(f"ds_read_b32 v16, v10 offset:{C_LOC}")
    a("s_waitcnt lgkmcnt(0)"); a("v_readfirstlane_b32 s57, v16")
    for i in range(4): a(f"v_mul_f32 v{60+i}, v{60+i}, v39")
    a("v_cvt_pk_bf16_f32 v40, v63, v62"); a("v_cvt_pk_bf16_f32 v41, v61, v60")
    a("ds_write_b16 v30, v40 offset:0"); a("ds_write_b16_d16_hi v30, v40 offset:256")
    a("ds_write_b16 v30, v41 offset:512"); a("ds_write_b16_d16_hi v30, v41 offset:768")
    a(f"ds_write_b32 v12, v13 offset:{C_P2}")
    spin_all4(40, C_P2)
    stamp(6)
    C("---------------- C: p @ V, 64 head dimensions per wave ----------------")
    a("s_mov_b32 s50, 0"); a(f"s_mov_b32 s52, {7*SLOT}")
    a("L_vitem:")
    a("ds_read_b128 v[44:47], v29")
    a("v_add_u32 v29, 64, v29")
    for tt in range(4): a(f"v_add_u32 v{40+tt}, s52, v{24+tt}")
    a("s_add_u32 s51, s50, 18")
    spin_ge("v16", C_FILL, "s51")
    for tt in range(4):
        a(f"ds_read_b64_tr_b16 v[{96+4*tt}:{97+4*tt}], v{40+tt}")
        a(f"ds_read_b64_tr_b16 v[{98+4*tt}:{99+4*tt}], v{40+tt} offset:2048")
    a("s_add_u32 s51, s50, 21"); a("v_mov_b32 v16, s51")
    a(f"ds_write_b32 v12, v16 offset:{C_CP}")
    a(f"s_add_u32 s52, s52, {SLOT}"); a(f"s_cmp_eq_u32 s52, {5*SLOT}"); a("s_cselect_b32 s52, 0, s52"); a(f"s_cmp_eq_u32 s52, {9*SLOT}"); a("s_cselect_b32 s52, 0, s52")
    for tt in range(4):
        a(f"s_waitcnt lgkmcnt({7-2*tt})")
        a(f"v_mfma_f32_16x16x32_bf16 v[{64+4*tt}:{67+4*tt}], v[44:47], v[{96+4*tt}:{99+4*tt}], v[{64+4*tt}:{67+4*tt}]")
    a("s_add_u32 s50, s50, 1"); a("s_cmp_lt_u32 s50, 14"); a("s_cbranch_scc1 L_vitem")
    if not spec: a("s_cmp_eq_u32 s50, 16"); a("s_cbranch_scc1 L_vdone")
    H1L = [(120 + 4 * i, f"v{248+i}") for i in range(7)]
    a("s_cmp_eq_u32 s50, 15"); a("s_cbranch_scc1 L_first")
    C("after item 13: wo operands")
    for s in range(16):
        r = 150 + 4 * s
        a(f"ds_read_b64_tr_b16 v[{r}:{r+1}], v34 offset:{4096*s}")
        a(f"ds_read_b64_tr_b16 v[{r+2}:{r+3}], v34 offset:{4096*s+512}")
    a("s_branch L_vitem")
    C("after item 14: first look at the partials of the other seven splits")
    a("L_first:")
    if spec:
        a("s_cmp_eq_u32 s7, 7"); a("s_cbranch_scc1 L_last")
        for (d, va) in H1L: a(f"global_load_dwordx4 v[{d}:{d+3}], {va}, s[30:31] {pfh1}")
        C("last item: its operand reads follow the progress word in LDS order, so they are good whenever the word is")
        a("L_last:")
        a("ds_read_b128 v[44:47], v29")
        for tt in range(4): a(f"v_add_u32 v{40+tt}, s52, v{24+tt}")
        a("L_last_spin:")
        a(f"ds_read_b32 v16, v10 offset:{C_FILL}")
        for tt in range(4):
            a(f"ds_read_b64_tr_b16 v[{96+4*tt}:{97+4*tt}], v{40+tt}")
            a(f"ds_read_b64_tr_b16 v[{98+4*tt}:{99+4*tt}], v{40+tt} offset:2048")
        budget()
        a("s_waitcnt lgkmcnt(6)")
        a("v_cmp_gt_u32 vcc, 33, v16"); a("s_cbranch_vccnz L_last_spin")
        for tt in range(4):
            if tt: a(f"s_waitcnt lgkmcnt({6-2*tt})")
            a(f"v_mfma_f32_16x16x32_bf16 v[{64+4*tt}:{67+4*tt}], v[44:47], v[{96+4*tt}:{99+4*tt}], v[{64+4*tt}:{67+4*tt}]")
    else:
        a("s_cmp_eq_u32 s7, 7"); a("s_cbranch_scc1 L_vitem")
        for (d, va) in H1L: a(f"global_load_dwordx4 v[{d}:{d+3}], {va}, s[30:31] {pfh1}")
        a("s_branch L_vitem")
        a("L_vdone:")
        a("s_nop 2")
    stamp(7)
    a("v_cndmask_b32 v16, v64, v72, s[44:45]"); a("v_cndmask_b32 v17, v65, v73, s[44:45]")
    a("v_cndmask_b32 v18, v68, v76, s[44:45]"); a("v_cndmask_b32 v19, v69, v77, s[44:45]")
    a("s_cmp_eq_u32 s57, 1")
    a("v_cndmask_b32 v80, v16, v17, s[46:47]"); a("v_cndmask_b32 v82, v18, v19, s[46:47]")
    a("s_cbranch_scc0 L_st_far")
    a("global_store_dwordx4 v35, v[80:83], s[30:31]")
    a("L_st_done:")
    stamp(8)
    a("s_cmp_eq_u32 s7, 7"); a("s_cbranch_scc1 L_red")
    a("s_waitcnt vmcnt(1)")
    a("L_h1_chk:")
    for i, (d, va) in enumerate(H1L): a(f"v_cmp_ne_u32 s[{68+2*i}:{69+2*i}], s33, v{d+3}")
    a("v_xor_b32 v96, s33, v121"); a("v_xor_b32 v97, s33, v125")
    a("s_or_b64 vcc, s[68:69], s[70:71]"); a("s_or_b64 s[82:83], s[72:73], s[74:75]"); a("s_or_b64 s[84:85], s[76:77], s[78:79]")
    a("v_bitop3_b32 v96, v129, s33, v96 bitop3:0xbe"); a("v_bitop3_b32 v97, v133, s33, v97 bitop3:0xbe")
    a("s_or_b64 vcc, vcc, s[80:81]"); a("s_or_b64 s[82:83], s[82:83], s[84:85]"); a("s_or_b64 vcc, vcc, s[82:83]")
    a("s_cbranch_scc1 L_h1_more")
    a("L_h1_ver:")
    a("v_bitop3_b32 v96, v137, s33, v96 bitop3:0xbe"); a("v_bitop3_b32 v97, v141, s33, v97 bitop3:0xbe")
    a("v_bitop3_b32 v96, v145, s33, v96 bitop3:0xbe"); a("v_or_b32 v96, v96, v97"); a("v_cmp_ne_u32 vcc, 0, v96")
    a("s_cbranch_vccnz L_h1_all")
    stamp(9)
    C("o (512 values, bf16) -> LDS ; o @ wo[512 x 16 columns] per wave")
    a("v_add_f32 v56, v80, v120"); a("v_add_f32 v57, v82, v122")
    a("v_add_f32 v124, v124, v128"); a("v_add_f32 v126, v126, v130")
    a("v_add_f32 v132, v132, v136"); a("v_add_f32 v134, v134, v138")
    a("v_add_f32 v140, v140, v144"); a("v_add_f32 v142, v142, v146")
    a("v_add_f32 v56, v56, v124"); a("v_add_f32 v57, v57, v126")
    a("v_add_f32 v132, v132, v140"); a("v_add_f32 v134, v134, v142")
    a("v_add_f32 v56, v56, v132"); a("v_add_f32 v57, v57, v134")
    a("v_cvt_pk_bf16_f32 v16, v56, v57")
    a("ds_write_b16 v38, v16"); a("ds_write_b16_d16_hi v38, v16 offset:32")
    a(f"ds_write_b32 v12, v13 offset:{C_OF}")
    if spec:
        a("L_o_spin:")
        a(f"ds_read_b128 v[40:43], v10 offset:{C_OF}")
        for s in range(8): a(f"ds_read_b128 v[{84+4*s}:{87+4*s}], v36 offset:{64*s}")
        budget()
        a("s_waitcnt lgkmcnt(8)")
        a("v_min_u32 v40, v40, v41"); a("v_min3_u32 v40, v40, v42, v43"); a("v_cmp_eq_u32 vcc, 0, v40"); a("s_cbranch_vccnz L_o_spin")
        for s in range(8, 16): a(f"ds_read_b128 v[{84+4*s}:{87+4*s}], v36 offset:{64*s}")
    else:
        spin_all4(40, C_OF)
        for s in range(16): a(f"ds_read_b128 v[{84+4*s}:{87+4*s}], v36 offset:{64*s}")
    for s in range(16):
        if s % 4 == 0: a(f"s_waitcnt lgkmcnt({12 - s})")
        acc = 48 + 4 * (s & 1)
        c = "0" if s < 2 else f"v[{acc}:{acc+3}]"
        a(f"v_mfma_f32_16x16x32_bf16 v[{acc}:{acc+3}], v[{84+4*s}:{87+4*s}], v[{150+4*s}:{153+4*s}], {c}")
    a("v_add_f32 v80, v48, v52")
    a(f"v_mov_b32_dpp v82, v80 row_ror:8 {DPPF}")
    a("s_mov_b64 exec, 0xff")
    a("global_store_dwordx4 v37, v[80:83], s[30:31] sc1")
    stamp(10)
    dump_stamps()
    a("s_endpgm")
    a("L_h1_all:")
    for i in range(7): a(f"s_mov_b64 s[{68+2*i}:{69+2*i}], -1")
    a("L_h1_more:")
    a("s_mov_b32 s56, 0")
    for i in range(7):
        a(f"s_cmp_lg_u64 s[{68+2*i}:{69+2*i}], 0"); a("s_addc_u32 s56, s56, s56")
    a("s_sub_u32 s55, s56, 1"); a("s_and_b32 s55, s55, s56"); a("s_cbranch_scc0 L_h1_one")
    for i, (d, va) in enumerate(H1L):
        a(f"s_mov_b64 exec, s[{68+2*i}:{69+2*i}]")
        a(f"global_load_dwordx4 v[{d}:{d+3}], {va}, s[30:31] {pfh1}")
    a("s_mov_b64 exec, -1")
    budget()
    a("s_waitcnt vmcnt(0)")
    a("s_branch L_h1_chk")
    a("L_h1_one:")
    for i in range(6):
        a(f"s_bitcmp1_b32 s56, {6-i}"); a(f"s_cbranch_scc1 L_h1_t{i}")
    for i in (6, 0, 1, 2, 3, 4, 5):
        d, va = H1L[i]
        a(f"L_h1_t{i}:")
        a(f"global_load_dwordx4 v[{d}:{d+3}], {va}, s[30:31] {pfh1}")
        budget()
        a("s_waitcnt vmcnt(0)")
        a(f"v_cmp_ne_u32 vcc, s33, v{d+3}")
        a("v_xor_b32 v96, s33, v121"); a("v_xor_b32 v97, s33, v125")
        a(f"s_cbranch_vccnz L_h1_t{i}")
        a("v_bitop3_b32 v96, v129, s33, v96 bitop3:0xbe"); a("v_bitop3_b32 v97, v133, s33, v97 bitop3:0xbe")
        a("s_branch L_h1_ver")
    a("L_st_far:")
    a("global_store_dwordx4 v35, v[80:83], s[30:31] sc1")
    a("s_branch L_st_done")

    C("---------------- C of j = 7, g < 7: final reduction of 16 columns (batch b, tile 4g + wave) ----------------")
    a("L_red:")
    a("s_cmp_eq_u32 s4, 7"); a("s_cbranch_scc1 L_exit")
    a("s_lshl_b32 s52, s4, 2"); a("s_add_u32 s52, s52, s3"); a("s_mul_i32 s50, s6, 28"); a("s_add_u32 s50, s50, s52")
    a("s_mul_i32 s53, s6, 448"); a("s_lshl_b32 s54, s52, 4"); a("s_add_u32 s53, s53, s54")
    a("v_lshrrev_b32 v16, 5, v0"); a("v_and_b32 v17, 7, v0"); a("v_lshl_add_u32 v18, v16, 3, v17")
    a("v_add_u32 v19, s53, v18"); a("v_lshlrev_b32 v24, 1, v19")
    a("s_mul_i32 s54, s6, 7"); a("s_add_u32 s53, s4, s54"); a("s_lshl_b32 s53, s53, 9")
    a("s_lshl_b32 s54, s3, 6"); a("s_add_u32 s53, s53, s54"); a(f"s_add_u32 s53, s53, {W_OG}")
    a("v_bfe_u32 v19, v18, 1, 1"); a("v_lshlrev_b32 v19, 8, v19"); a("v_lshrrev_b32 v20, 2, v18"); a("v_lshl_add_u32 v19, v20, 4, v19")
    a("v_and_b32 v20, 1, v18"); a("v_lshl_add_u32 v19, v20, 3, v19"); a("v_add_u32 v19, s53, v19")
    a("v_bfe_u32 v21, v0, 3, 2"); a(f"s_movk_i32 s54, {28*512}")
    a("v_mad_u32_u24 v25, v21, s54, v19")
    a(f"v_add_u32 v27, {4*28*512}, v25"); a(f"v_add_u32 v28, {8*28*512}, v25")
    a("v_min_u32 v22, 1, v21"); a("v_add_u32 v22, 12, v22"); a("v_mad_u32_u24 v29, v22, s54, v19")
    a("v_cmp_gt_u32 s[44:45], 2, v21")
    a("s_lshl_b32 s56, s50, 10"); a(f"s_add_u32 s56, s56, {W_H2}"); a("v_add_u32 v26, s56, v9")
    a(f"global_load_ushort v30, v24, s[8:9] {xf}")
    a("s_branch L_og_first")
    a("L_og_retry:")
    budget()
    a("s_waitcnt vmcnt(0)")
    a("L_og_first:")
    for k, va in enumerate(("v25", "v27", "v28", "v29")): a(f"global_load_dwordx2 v[{32+2*k}:{33+2*k}], {va}, s[30:31] {pf}")
    def gate():
        a("s_waitcnt vmcnt(1)")
        tagcheck(["v33", "v35", "v37", "v39"], "v16", "v17", "L_og_retry")
        a("v_cndmask_b32 v38, 0, v38, s[44:45]"); a("v_add_f32 v32, v32, v34"); a("v_add_f32 v36, v36, v38"); a("v_add_f32 v32, v32, v36")
        a(f"v_add_f32_dpp v32, v32, v32 row_ror:8 {DPPF}")
        swapred("v_add_f32", "v32", "v33", 16)
        rbf("v32", "v32")
        a(f"v_mul_f32 v33, {hex(f2u(-LOG2E))}, v32"); a("v_exp_f32 v33, v33"); a("v_add_f32 v33, 1.0, v33"); a("v_rcp_f32 v33, v33")
        a("v_mul_f32 v32, v32, v33"); rbf("v32", "v32")
        a("v_lshlrev_b32 v30, 16, v30")
        stamp(11)
    mpoll([(48, "v26", 0)], "h2", 16, pre=gate)
    stamp(12)
    a("v_permlane32_swap_b32 v48, v50"); a("v_add_f32 v48, v48, v50")
    swapred("v_add_f32", "v48", "v50", 16)
    a(f"v_add_f32_dpp v48, v48, v48 row_ror:8 {DPPF}")
    rbf("v48", "v48")
    a("v_mul_f32 v48, v48, v32"); rbf("v48", "v48")
    a("v_add_f32 v48, v48, v30"); a("v_cvt_pk_bf16_f32 v48, v48, v48")
    a("s_mov_b32 exec_lo, 0xff"); a("s_mov_b32 exec_hi, 0xff")
    a("global_store_short v24, v48, s[26:27]")
    a("L_exit:")
    stamp(13)
    dump_stamps()
    a("s_endpgm")

    nq = [0]
    def needq():
        nq[0] += 1; k = nq[0]
        a("s_cmp_eq_u32 s58, 1"); a(f"s_cbranch_scc0 L_nq_skip{k}")
        a(f"L_nq{k}:")
        a(f"global_load_dwordx4 v[56:59], v30, s[30:31] {pf}")
        budget()
        a("s_waitcnt vmcnt(0)")
        tagcheck(["v57", "v59"], "v18", "v19", f"L_nq{k}")
        a("global_store_dwordx4 v30, v[56:59], s[30:31] sc1")
        a("s_mov_b32 s58, 0")
        a(f"L_nq_skip{k}:")
    C("---------------- Q: q gather ; s58 = 1 while this workgroup's q tile has not been written through ----------------")
    a("L_Q:")
    if tlb == 1:
        a("s_add_u32 s84, s12, s54"); a("s_addc_u32 s85, s13, 0"); a("s_load_dword s86, s[84:85], 0")
        a(f"s_mul_i32 s87, s4, {512*896}"); a("s_add_u32 s88, s16, s87"); a("s_addc_u32 s89, s17, 0"); a("s_load_dword s90, s[88:89], 0"); a(f"s_load_dword s91, s[88:89], {511*896}")
        a(f"s_add_u32 s88, s30, {W_H2}"); a("s_addc_u32 s89, s31, 0"); a("s_load_dword s92, s[88:89], 0"); a("s_load_dword s93, s[26:27], 0")
    if tlb == 2:
        a("v_mov_b32 v16, s54"); a(f"s_mul_i32 s87, s4, {512*896}"); a("v_mov_b32 v17, s87"); a(f"v_mov_b32 v18, {W_H2}")
        a("s_mov_b64 exec, 1")
        a("global_load_dword v32, v16, s[12:13] nt"); a("global_load_dword v33, v17, s[16:17] nt"); a("global_load_dword v34, v18, s[30:31] nt")
        a("s_mov_b64 exec, -1")
    a("s_lshl_b32 s50, s6, 10"); a("s_lshl_b32 s51, s4, 7"); a("s_add_u32 s50, s50, s51"); a("s_lshl_b32 s50, s50, 4"); a(f"s_add_u32 s50, s50, {W_QG}")
    a("v_add_u32 v25, s50, v9")
    a("v_lshlrev_b32 v26, 3, v0"); a(f"v_add_u32 v26, {QI}, v26")
    a("v_mov_b32 v43, s33")
    a("s_lshl_b32 s50, s49, 8"); a(f"s_add_u32 s50, s50, {W_QG}"); a("v_lshlrev_b32 v16, 14, v15"); a("v_lshl_add_u32 v16, v14, 4, v16"); a("v_add_u32 v30, s50, v16")
    a("s_cmp_eq_u32 s35, 1"); a("s_cselect_b32 s58, 1, 0")
    a(f"s_mov_b32 s55, {q_rounds}")
    spin_ge("v16", C_FILL, qpoll_fill, sleep=1)
    stamp(1)
    def qhook():
        a("s_sub_u32 s55, s55, 1"); a("s_cbranch_scc0 L_q_nohook"); needq(); a("L_q_nohook:")
    mpoll([(48, "v25", 0), (52, "v25", 1024)], "q", 16, sleep=4, hook=qhook)
    a("ds_write2_b32 v26, v48, v50 offset0:0 offset1:1")
    a("ds_write2_b32 v26, v52, v54 offset0:128 offset1:129")
    a("v_mov_b32 v16, 1"); a(f"ds_write_b32 v10, v16 offset:{C_QRDY}")
    stamp(2)
    C("(max, sum, die id) entries: one line per workgroup ; 16-lane row k of the gather looks at group ((b+k)&3, g)")
    a("v_and_b32 v17, 1, v0"); a("v_lshlrev_b32 v16, 4, v17")
    a("v_add_u32 v18, s6, v15"); a("v_and_b32 v18, 3, v18"); a("v_lshlrev_b32 v18, 13, v18")
    a("v_lshrrev_b32 v19, 1, v14"); a("v_lshl_add_u32 v18, v19, 7, v18"); a("v_add_u32 v18, v18, v16")
    a("s_lshl_b32 s50, s4, 10"); a(f"s_add_u32 s50, s50, {W_MLG}"); a("v_add_u32 v25, s50, v18")
    a("s_lshl_b32 s51, s6, 13"); a("s_add_u32 s50, s50, s51"); a("s_lshl_b32 s51, s7, 7"); a("s_add_u32 s50, s50, s51"); a("v_add_u32 v24, s50, v9" if mlfull else "v_add_u32 v24, s50, v16")
    a("v_add_u32 v27, v16, v10")
    a("v_lshl_add_u32 v28, v17, 2, v10")
    a("s_getreg_b32 s52, hwreg(HW_REG_XCC_ID, 0, 4)")
    a("s_xor_b32 s53, s52, s33"); a("v_mov_b32 v41, s53")
    spin_all4(44, C_PF, sleep=4)
    a(f"ds_read_b128 v[44:47], v27 offset:{C_MX}"); a(f"ds_read_b128 v[48:51], v27 offset:{C_LS}")
    a("s_waitcnt lgkmcnt(0)")
    a("v_max_f32 v40, v44, v45"); a("v_max3_f32 v40, v40, v46, v47")
    a("v_add_f32 v48, v48, v49"); a("v_add_f32 v50, v50, v51"); a("v_add_f32 v42, v48, v50")
    a("s_mov_b64 exec, 0xff" if mlfull else "s_mov_b64 exec, 3")
    a("global_store_dwordx4 v24, v[40:43], s[30:31]")
    a("s_mov_b64 exec, -1")
    a(f"s_mov_b32 s55, {ml_rounds}")
    stamp(3)
    def mlload():
        a(f"global_load_dwordx4 v[48:51], v25, s[30:31] {pf}")
        a("s_waitcnt vmcnt(0)")
        a("v_xor_b32 v16, s33, v49"); a("v_lshrrev_b32 v17, 4, v16"); a("v_bitop3_b32 v17, v51, s33, v17 bitop3:0xbe")
        a("v_cmp_ne_u32 s[56:57], s52, v16"); a("v_cmp_ne_u32 s[60:61], 0, v17")
        a("s_andn2_b64 s[56:57], s[56:57], s[60:61]")
    def mlpub():
        a("s_mov_b64 exec, 0xff" if mlfull else "s_mov_b64 exec, 3"); a("global_store_dwordx4 v24, v[40:43], s[30:31] sc1"); a("s_mov_b64 exec, -1")
    a("s_branch L_ml_first")
    a("L_ml_retry:")
    budget()
    C("own group incomplete: after a few rounds, or on a foreign die id, write through what was published so far")
    a("s_cmp_eq_u32 s55, 1000"); a("s_cbranch_scc1 L_ml_again")
    a("s_and_b32 s59, s56, 0xffff"); a("s_cbranch_scc1 L_ml_pub")
    a("s_sub_u32 s55, s55, 1"); a("s_cbranch_scc0 L_ml_again")
    a("L_ml_pub:")
    mlpub(); needq()
    a("s_movk_i32 s55, 1000")
    a("L_ml_again:")
    a(f"s_sleep {mlsleep}")
    a("L_ml_first:")
    mlload()
    a("s_and_b32 s59, s60, 0xffff"); a("s_cbranch_scc1 L_ml_retry")
    a("s_and_b32 s59, s56, 0xffff"); a(f"s_cselect_b32 s54, 0, {0 if forcesc1 else 1}"); a("s_cbranch_scc0 L_ml_ok")
    mlpub()
    a("L_ml_ok:")
    C("scale of this split = exp(own max - group max) / group sum")
    a(f"s_mov_b32 s50, {hex(f2u(CEXP))}")
    a("v_mov_b32 v44, v48")
    for m in ("quad_perm:[2,3,0,1]", "row_ror:4", "row_ror:8"): a(f"v_max_f32_dpp v44, v44, v44 {m} {DPPF}")
    a("v_sub_f32 v45, v48, v44"); a("v_sub_f32 v46, v40, v44")
    a("v_mul_f32 v45, s50, v45"); a("v_mul_f32 v46, s50, v46")
    a("v_exp_f32 v45, v45"); a("v_exp_f32 v46, v46")
    a("v_mul_f32 v45, v45, v50")
    for m in ("quad_perm:[2,3,0,1]", "row_ror:4", "row_ror:8"): a(f"v_add_f32_dpp v45, v45, v45 {m} {DPPF}")
    a("v_rcp_f32 v45, v45")
    a("v_mov_b32 v17, s54")
    a("v_mul_f32 v46, v46, v45")
    a("v_mov_b32 v20, 1")
    a("s_mov_b64 exec, 3")
    a(f"ds_write_b32 v28, v46 offset:{C_FAC}")
    a(f"ds_write_b32 v10, v17 offset:{C_LOC}")
    a(f"ds_write_b32 v10, v20 offset:{C_FACF}")
    a("s_mov_b64 exec, -1")
    stamp(4)
    C("are all 32 workgroups of this g on this die?  decides the q write-through and the FFN partial stores")
    a("s_cmp_eq_u32 s35, 4"); a("s_cselect_b32 s59, 1, s58"); a("s_cmp_eq_u32 s59, 0"); a("s_cbranch_scc1 L_q_exit")
    a(f"s_mov_b32 s55, {all_rounds}")
    spin_ge("v16", C_FILL, ml_fill, sleep=8)
    a("L_all:")
    a("s_cmp_lg_u64 s[56:57], 0"); a("s_cbranch_scc1 L_all_no")
    a("s_cmp_eq_u64 s[60:61], 0"); a("s_cbranch_scc1 L_all_yes")
    a("s_sub_u32 s55, s55, 1"); a("s_cbranch_scc1 L_all_no")
    a("s_sleep 8")
    mlload()
    a("s_branch L_all")
    a("L_all_no:")
    needq()
    a("v_mov_b32 v20, 2")
    a("L_all_yes:")
    a(f"ds_write_b32 v10, v20 offset:{C_ALL}")
    a("L_q_exit:")
    stamp(5)
    dump_stamps()
    a("s_endpgm")

    C("---------------- F: h = silu(gate) * up for 128 rows, h @ w2[128 x 64] ----------------")
    a("L_F:")
    a("s_cmp_eq_u32 s2, 255"); a("s_cbranch_scc1 L_E")
    a("s_cmp_eq_u32 s35, 4"); a("s_cbranch_scc0 L_end")
    tile_tr_addr("v20", None, F2B)
    for tau in range(1, 4): a(f"v_xor_b32 v{20+tau}, {32*tau}, v20")
    a("s_lshl_b32 s52, s5, 12"); a(f"s_add_u32 s52, s52, {W_GU}"); a("v_add_u32 v25, s52, v9")
    a("s_mul_i32 s52, s5, 28"); a("s_add_u32 s52, s52, s4"); a("s_lshl_b32 s52, s52, 9"); a(f"s_add_u32 s52, s52, {W_OG}")
    a("v_and_b32 v17, 3, v14"); a("v_lshrrev_b32 v18, 2, v14"); a("v_lshlrev_b32 v18, 6, v18"); a("v_lshl_add_u32 v18, v15, 4, v18")
    a(f"s_movk_i32 s51, {7*512}"); a("v_mad_u32_u24 v16, v17, s51, v18"); a("v_add_u32 v24, s52, v16")
    a("v_bfe_u32 v16, v0, 2, 2"); a("v_lshlrev_b32 v16, 8, v16"); a("v_lshl_add_u32 v16, v15, 5, v16"); a("v_lshl_add_u32 v26, v17, 3, v16"); a(f"v_add_u32 v26, {HA}, v26")
    a("v_lshlrev_b32 v16, 8, v17"); a("v_lshl_add_u32 v27, v15, 4, v16"); a(f"v_add_u32 v27, {HA}, v27")
    a("s_mov_b32 s44, 0xf0f0f0f0"); a("s_mov_b32 s45, 0xf0f0f0f0"); a("s_mov_b32 s46, 0xff00ff00"); a("s_mov_b32 s47, 0xff00ff00")
    spin_ge("v16", C_FILL, 1, sleep=2)
    for s in range(4):
        for tau in range(4):
            r = 128 + (s * 4 + tau) * 4
            a(f"ds_read_b64_tr_b16 v[{r}:{r+1}], v{20+tau} offset:{4096*s}")
            a(f"ds_read_b64_tr_b16 v[{r+2}:{r+3}], v{20+tau} offset:{4096*s+512}")
    a(f"v_mov_b32 v16, {BIG}"); a("s_waitcnt lgkmcnt(0)"); a(f"ds_write_b32 v10, v16 offset:{C_FP}")
    stamp(1)
    spin_ge("v16", C_FILL, gu_fill, sleep=8)
    a("L_h_retry:")
    for i in range(4): a(f"global_load_dwordx4 v[{64+4*i}:{67+4*i}], v25, s[30:31] offset:{1024*i} {pf}")
    budget()
    a("s_waitcnt vmcnt(0)")
    tagcheck([f"v{65+2*i}" for i in range(8)], "v16", "v17", "L_h_retry")
    stamp(2)
    for k in range(4):
        a(f"v_lshlrev_b32 v{84+2*k}, 16, v{64+2*k}"); a(f"v_and_b32 v{85+2*k}, 0xffff0000, v{64+2*k}")
        a(f"v_lshlrev_b32 v{92+2*k}, 16, v{72+2*k}"); a(f"v_and_b32 v{93+2*k}, 0xffff0000, v{72+2*k}")
    a(f"s_mov_b32 s50, {hex(f2u(-LOG2E))}")
    for i in range(8): a(f"v_mul_f32 v{100+i}, s50, v{84+i}")
    for i in range(8): a(f"v_exp_f32 v{100+i}, v{100+i}")
    for i in range(8): a(f"v_add_f32 v{100+i}, 1.0, v{100+i}")
    for i in range(8): a(f"v_rcp_f32 v{100+i}, v{100+i}")
    for i in range(8): a(f"v_mul_f32 v{100+i}, v{100+i}, v{84+i}")
    for i in range(8): rbf(f"v{100+i}", f"v{100+i}")
    for i in range(8): a(f"v_mul_f32 v{100+i}, v{100+i}, v{92+i}")
    for k in range(4): a(f"v_cvt_pk_bf16_f32 v{108+k}, v{100+2*k}, v{101+2*k}")
    a("ds_write_b64 v26, v[108:109]"); a("ds_write_b64 v26, v[110:111] offset:128")
    for s in range(4): a(f"ds_read_b128 v[{64+4*s}:{67+4*s}], v27 offset:{64*s}")
    a("s_waitcnt lgkmcnt(0)")
    for s in range(4):
        for tau in range(4):
            r = 128 + (s * 4 + tau) * 4
            c = "0" if s == 0 else f"v[{84+4*tau}:{87+4*tau}]"
            a(f"v_mfma_f32_16x16x32_bf16 v[{84+4*tau}:{87+4*tau}], v[{r}:{r+3}], v[{64+4*s}:{67+4*s}], {c}")
    for k in (41, 43, 45, 47): a(f"v_mov_b32 v{k}, s33")
    for r in range(4):
        a(f"v_cndmask_b32 v16, v{84+r}, v{88+r}, s[44:45]"); a(f"v_cndmask_b32 v17, v{92+r}, v{96+r}, s[44:45]")
        a(f"v_cndmask_b32 v{40+2*r}, v16, v17, s[46:47]")
    spin_ge("v16", C_ALL, 1, sleep=2)
    a("v_cmp_eq_u32 vcc, 1, v16"); a("s_cbranch_vccz L_og_far")
    a("global_store_dwordx4 v24, v[40:43], s[30:31]")
    a("global_store_dwordx4 v24, v[44:47], s[30:31] offset:256")
    a("s_branch L_exit")
    a("L_og_far:")
    a("global_store_dwordx4 v24, v[40:43], s[30:31] sc1")
    a("global_store_dwordx4 v24, v[44:47], s[30:31] offset:256 sc1")
    a("s_branch L_exit")
    C("---------------- wave 6 of workgroup 255: one result row per batch complete => every workgroup has read the tag word; renew it ----------------")
    a("L_E:")
    for k in range(4): a(f"v_add_u32 v{28+k}, {W_H2 + k*28*1024}, v9")
    spin_ge("v16", C_FILL, 33, sleep=16)
    mpoll([(48 + 4 * k, f"v{28+k}", 0) for k in range(4)], "ew", 16)
    a("s_mov_b64 exec, 1")
    a("v_mov_b32 v16, 0"); a("v_mov_b32 v17, s33")
    a("global_store_dword v16, v17, s[30:31] sc1")
    a("s_branch L_exit")
    a("L_end:")
    a("s_endpgm")
    C("a poll bound ran out")
    a("L_fail:")
    a("s_mov_b64 exec, 1")
    a("s_lshl_b32 s60, s3, 2"); a("s_or_b32 s61, s2, 0xbad00000")
    a("v_mov_b32 v16, s60"); a("v_mov_b32 v17, s61")
    a("global_store_dword v16, v17, s[28:29]")
    a("s_endpgm")
    a.raw('.section .rodata,"a"'); a.raw(".p2align 6"); a.raw(f".amdhsa_kernel {KNAME}_kernel")
    a.raw("  .amdhsa_next_free_vgpr 256"); a.raw("  .amdhsa_next_free_sgpr 96"); a.raw("  .amdhsa_accum_offset 256")
    a.raw("  .amdhsa_group_segment_fixed_size 0"); a.raw("  .amdhsa_kernarg_size 96"); a.raw("  .amdhsa_user_sgpr_count 2")
    a.raw("  .amdhsa_user_sgpr_kernarg_segment_ptr 1"); a.raw("  .amdhsa_system_sgpr_workgroup_id_x 1"); a.raw(".end_amdhsa_kernel")
    return a.text()

STAMPS = {'C': 11, 'L': 4, 'Q': 7, 'F': 4, 'R': 6}
if __name__ == "__main__":
    import ast
    kw = {}
    for x in sys.argv[2:]:
        k, v = x.split("=", 1)
        try: kw[k] = ast.literal_eval(v)
        except Exception: kw[k] = v
    open(sys.argv[1], "w").write(gen(**kw))
```
